```python
import torch

def _softmax(x, axis=-1):
    return torch.softmax(x, dim=axis)
def _gelu(x):
    return torch.nn.functional.gelu(x, approximate="tanh")
def _silu(x):
    return torch.nn.functional.silu(x)
def _sigmoid(x):
    return torch.sigmoid(x)
def _layernorm(x, axis=-1, eps=1e-5):
    m = x.mean(dim=axis, keepdim=True)
    v = x.var(dim=axis, keepdim=True, unbiased=False)
    return (x - m) / torch.sqrt(v + eps)
def _scatter_add(tgt, idx, src, axis=0):
    return tgt.clone().index_add_(axis, idx, src)
def _segment_sum(src, seg, n):
    out = torch.zeros((n,) + src.shape[1:], dtype=src.dtype)
    return out.index_add_(0, seg, src)
def _pad(x, pw):
    flat = tuple(v for pair in reversed(pw) for v in pair)
    return torch.nn.functional.pad(x, flat)

kernel_name = 'gated_mix__mha_block__softmax_full_mha__prompt'

def setup_inputs():

    _w = (lambda a: (lambda t: t.to(torch.bfloat16) if t.is_floating_point() else t)(torch.as_tensor(a)))
    def _A_setup():
        B, S, D, H = 1, 2048, 448, 16
        return {
            "x": _w((lambda *s: torch.randn(*s, dtype=torch.bfloat16) * 0.05)(B, S, D)),
            "wqkv": _w((lambda *s: torch.randn(*s, dtype=torch.bfloat16) * 0.8)(D, 3 * D)),
            "wo": _w((lambda *s: torch.randn(*s, dtype=torch.bfloat16) * 0.05)(D, D)),
        }
    _A_in = _A_setup()

    def _B_setup():
        B, S, D = 1, 2048, 448
        return {
            "x": _w((lambda *s: torch.randn(*s, dtype=torch.bfloat16) * 0.05)(B, S, D)),
            "wqkv": _w((lambda *s: torch.randn(*s, dtype=torch.bfloat16) * 0.8)(D, 3 * D)),
            "wo": _w((lambda *s: torch.randn(*s, dtype=torch.bfloat16) * 0.05)(D, D)),
        }
    _B_in = _B_setup()

    return {
        "A_x": _A_in["x"],
        "A_wqkv": _A_in["wqkv"],
        "A_wo": _A_in["wo"],
        "B_x": _B_in["x"],
        "B_wqkv": _B_in["wqkv"],
        "B_wo": _B_in["wo"],
        "gate_w": _w((lambda *s: torch.randn(*s, dtype=torch.bfloat16) * 0.05)(448) * 16.0),
    }

def reference(A_x, A_wqkv, A_wo, B_x, B_wqkv, B_wo, gate_w):
    def _A_ref(x, wqkv, wo):
        B, S, D = x.shape
        H = 16
        Dh = D // H
        qkv = (lambda x, *d: x.permute(*d))((x @ wqkv).reshape(B, S, 3, H, Dh), 2, 0, 3, 1, 4)
        q, k, v = qkv[0], qkv[1], qkv[2]
        scores = torch.einsum("bhqd,bhkd->bhqk", q, k) * (Dh ** -0.5)
        p = _softmax(scores, axis=-1)
        o = torch.einsum("bhqk,bhkd->bhqd", p, v)
        return (lambda x, *d: x.permute(*d))(o, 0, 2, 1, 3).reshape(B, S, D) @ wo

    def _B_ref(x, wqkv, wo):
        B, S, D = x.shape
        H = 16; Dh = D // H
        qkv = (lambda x, *d: x.permute(*d))((x @ wqkv).reshape(B, S, 3, H, Dh), 2, 0, 3, 1, 4)
        q, k, v = qkv[0], qkv[1], qkv[2]
        scale = Dh ** -0.5
        scores = torch.einsum("bhqd,bhkd->bhqk", q, k) * scale
        p = _softmax(scores, axis=-1)
        o = torch.einsum("bhqk,bhkd->bhqd", p, v)
        return (lambda x, *d: x.permute(*d))(o, 0, 2, 1, 3).reshape(B, S, D) @ wo

    x = A_x
    g = _sigmoid((x * gate_w).sum(-1, keepdims=True))
    a = _A_ref(x, A_wqkv, A_wo)
    b = _B_ref(x, B_wqkv, B_wo)
    return g * a + (1 - g) * b
```

```python
import re
class Asm:
    def __init__(self):
        self.lines=[]
    def e(self, s):
        for l in s.strip().split("\n"):
            l=l.strip()
            if l: self.lines.append("    "+l)
    def label(self, s): self.lines.append(s+":")
    def raw(self, s): self.lines.append(s)
    def c(self, s): self.lines.append("    ; "+s)
    def text(self): return "\n".join(self.lines)+"\n"

def vr(base, n=1):
    return f"v{base}" if n==1 else f"v[{base}:{base+n-1}]"
def sr(base, n=1):
    return f"s{base}" if n==1 else f"s[{base}:{base+n-1}]"

_reg=re.compile(r'^(-|\|)?(abs\()?([vsa])(?:(\d+)|\[(\d+):(\d+)\])\)?\|?$')
def regs(tok):
    tok=tok.strip()
    if tok in ("vcc",): return {("s","vcc")}
    if tok=="exec": return {("s","exec")}
    if tok=="m0": return {("s","m0")}
    m=_reg.match(tok)
    if not m: return set()
    k=m.group(3)
    if m.group(4) is not None: return {(k,int(m.group(4)))}
    return {(k,i) for i in range(int(m.group(5)),int(m.group(6))+1)}
TRANS=("v_exp_","v_log_","v_rcp_","v_rsq_","v_sqrt_","v_sin_","v_cos_")
def parse(line):
    l=line.split(";")[0].strip()
    if not l or l.endswith(":") or l.startswith("."): return None
    p=l.split(None,1)
    mn=p[0]; ops=[]
    if len(p)>1:
        rest=p[1]
        ops=[o.strip() for o in re.split(r',(?![^\[]*\])',rest)]
        last=ops[-1].split()
        mods=last[1:]; ops[-1]=last[0] if last else ""
    else: mods=[]
    d=dict(mn=mn,ops=ops,mods=mods,w=set(),r=set(),states=1,kind="other",line=l)
    R=lambda i: regs(ops[i]) if i<len(ops) else set()
    if mn=="s_nop": d["states"]=int(ops[0],0)+1; d["kind"]="nop"
    elif mn.startswith("v_mfma"):
        d["kind"]="mfma"; d["w"]=R(0); d["A"]=R(1); d["B"]=R(2); d["C"]=R(3); d["r"]=d["A"]|d["B"]|d["C"]
        d["passes"]=8 if "32x32x16" in mn else 4
    elif mn.startswith("v_cmp"):
        d["kind"]="valu"; d["w"]=R(0); d["r"]=R(1)|R(2)
    elif mn.startswith("v_readfirstlane") or mn.startswith("v_readlane"):
        d["kind"]="valu"; d["w"]=R(0); d["r"]=R(1); d["rl"]=True
    elif mn.startswith("v_permlane"):
        d["kind"]="valu"; d["w"]=R(0)|R(1); d["r"]=R(0)|R(1); d["perm"]=True
    elif mn.startswith("v_"):
        d["kind"]="valu"; d["w"]=R(0)
        for i in range(1,len(ops)): d["r"]|=R(i)
        if mn.startswith("v_fmac") or mn.startswith("v_dot2c") or "UNUSED_PRESERVE" in l: d["r"]|=R(0)
        if mn.startswith("v_cndmask") and len(ops)==3: d["r"]|={("s","vcc")}
        if mn.startswith("v_cndmask_b32") and len(ops)==4: pass
        if any(mn.startswith(t) for t in TRANS): d["trans"]=True
        if "dpp" in l or "row_" in l or "quad_perm" in l: d["dpp"]=True
    elif mn.startswith("ds_read") or mn.startswith("ds_bpermute"):
        d["kind"]="ds"; d["w"]=R(0); d["r"]=set().union(*[R(i) for i in range(1,len(ops))])
    elif mn.startswith("ds_write"):
        d["kind"]="ds"; d["r"]=set().union(*[R(i) for i in range(len(ops))])
    elif mn.startswith("buffer_load") or mn.startswith("global_load"):
        d["kind"]="vmem"
        if "lds" in mods:
            d["r"]=set().union(*[R(i) for i in range(len(ops))])|{("s","m0")}; d["dma"]=True
        else:
            d["w"]=R(0); d["r"]=set().union(*[R(i) for i in range(1,len(ops))])
    elif mn.startswith("buffer_store") or mn.startswith("global_store") or mn.startswith("buffer_atomic") or mn.startswith("global_atomic"):
        d["kind"]="vmem"; d["r"]=set().union(*[R(i) for i in range(len(ops))]); d["store"]=True
        if mn.startswith("buffer_store"): d["data"]=R(0)
        else: d["data"]=R(1)
        d["wide"]=("x4" in mn or "x3" in mn)
    elif mn.startswith("s_"):
        d["kind"]="salu"
        if mn.startswith("s_cmp") or mn.startswith("s_cbranch") or mn.startswith("s_branch") or mn in("s_waitcnt","s_barrier","s_setprio","s_endpgm","s_sleep"): pass
        else:
            d["w"]=R(0)
            for i in range(1,len(ops)): d["r"]|=R(i)
    return d
def check(lines, name=""):
    ins=[x for x in (parse(l) for l in lines) if x]
    errs=[]
    W=24
    for i,c in enumerate(ins):
        dist=0
        for j in range(i-1,max(-1,i-W-1),-1):
            p=ins[j]
            def need(n,why):
                if dist<n: errs.append(f"{name}: [{why}] need {n} have {dist}:\n    {p['line']}\n    {c['line']}")
            vw={x for x in p["w"] if x[0] in "va"}
            sw={x for x in p["w"] if x[0]=="s"}
            if p["kind"]=="valu":
                if c["kind"]=="mfma" and vw & c["r"]: need(2,"valu->mfma")
                if c["kind"]=="valu" and p.get("trans") and not c.get("trans") and vw & c["r"]: need(1,"trans->valu")
                if c["kind"]=="valu" and c.get("rl") and vw & c["r"]: need(1,"valu->readlane")
                if c["kind"]=="valu" and c.get("perm") and vw & c["r"]: need(2,"valu->permlane")
                if c["kind"]=="valu" and c.get("dpp") and vw & c["r"]: need(2,"valu->dpp")
                if c["kind"]=="vmem" and sw & c["r"]: need(5,"valu sgpr->vmem")
                if c["kind"]=="valu" and sw & c["r"]: need(2,"valu sgpr->valu")
                if "sdwa" in p["mn"] or "op_sel" in p["line"]:
                    if c["kind"]=="valu" and vw & (c["r"]|c["w"]): need(1,"sdwa->valu")
            if p["kind"]=="mfma":
                n=12 if p["passes"]==8 else 8
                if c["kind"]=="valu" and p["w"] & (c["r"]|c["w"]): need(n,"mfma->valu")
                if c["kind"] in("ds","vmem") and p["w"] & (c["r"]|c["w"]): need(n,"mfma->mem")
                if c["kind"]=="mfma":
                    if p["w"] & (c["A"]|c["B"]): need(n,"mfma->mfma AB")
                    if p["w"] & c["C"] and p["w"]!=c["C"]: need(10 if p["passes"]==8 else 6,"mfma->mfma C partial")
                    if p["w"] & c["w"] and not (p["w"]==c["C"]) and p["w"]!=c["w"]: need(n,"mfma WAW partial")
                if c["kind"]=="valu" and p["C"] & c["w"]: need(7 if p["passes"]==8 else 3,"mfma C WAR")
            if p["kind"]=="salu" and ("s","m0") in p["w"] and c.get("dma"): need(1,"m0->dma")
            if p.get("store") and p.get("wide"):
                if c["kind"]=="valu" and p["data"] & c["w"]: need(2,"store data WAR")
                if c["kind"] in("ds","vmem") and p["data"] & c["w"]: need(1,"store data WAR(mem)")
            dist+=p["states"]
            if dist>=20: break
    return errs
```

```python
import sys, math
from asm import Asm, vr, sr, check
NAME="gated_mix__mha_block__softmax_full_mha__prompt"
WS_KV=0; WS_Q=8<<20; WS_O=12<<20; WS_G=16<<20; WS_END=WS_G+8192
XB=2048*448*2; WB=448*1344*2; WOB=448*448*2
QSCALE=math.log2(math.e)/math.sqrt(28.0)
import struct
def f2u(f): return struct.unpack("<I",struct.pack("<f",f))[0]

def prologue_ptrs(a):
    a.e("""
    s_load_dwordx16 s[16:31], s[0:1], 0
    s_load_dwordx4 s[32:35], s[0:1], 64
    """)
def srd(a, d, lo, hi, size):
    a.e(f"""
    s_mov_b32 s{d}, {lo}
    s_mov_b32 s{d+1}, {hi}
    s_mov_b32 s{d+2}, {size}
    s_mov_b32 s{d+3}, 0x20000
    """)
def decode_pair(a):
    a.e("""
    s_and_b32 s3, s2, 7
    s_lshr_b32 s4, s2, 3
    s_and_b32 s5, s4, 3
    s_lshl_b32 s3, s3, 2
    s_add_u32 s5, s5, s3
    s_lshr_b32 s6, s4, 2
    s_lshr_b32 s7, s5, 4
    s_and_b32 s8, s5, 15
    """)

def k1(a):
    L="K1"
    WLDS=0; XLDS=448*192; GLDS=XLDS+8*8192
    vLane=1; vX=[10,11]; vW=12; vG=13; vXr=[14,15,16,17]; vWr=[18,19]; vGr=20; vOnes=21; vSt=22
    xf=24
    wf=[[40,44,48],[52,56,60]]
    acc=[64,80,96]
    pk=112
    SX=40; SW=44; SG=48; SWS=52
    a.e(f"s_cmp_ge_u32 s2, 256\ns_cbranch_scc1 {L}_done")
    prologue_ptrs(a)
    decode_pair(a)
    a.e(f"""
    v_and_b32 v{vLane}, 63, v0
    v_lshrrev_b32 v2, 6, v0
    v_lshrrev_b32 v3, 3, v{vLane}
    v_readfirstlane_b32 s9, v2
    v_and_b32 v4, 7, v{vLane}
    v_lshrrev_b32 v5, 4, v{vLane}
    v_xor_b32 v4, v4, v5
    v_mul_u32_u24 v3, 896, v3
    v_lshl_add_u32 v{vX[0]}, v4, 4, v3
    v_xor_b32 v{vX[1]}, 64, v{vX[0]}
    v_mul_u32_u24 v3, 43, v{vLane}
    v_lshrrev_b32 v3, 9, v3
    v_mul_u32_u24 v4, 12, v3
    v_sub_u32 v4, v{vLane}, v4
    v_lshrrev_b32 v5, 2, v4
    v_and_b32 v4, 3, v4
    v_mul_u32_u24 v3, 2688, v3
    v_mul_u32_u24 v5, 896, v5
    v_lshlrev_b32 v4, 4, v4
    v_add3_u32 v{vW}, v3, v4, v5
    v_lshlrev_b32 v{vG}, 4, v{vLane}
    v_and_b32 v3, 31, v{vLane}
    v_lshrrev_b32 v4, 5, v{vLane}
    v_bfe_u32 v5, v{vLane}, 1, 3
    v_xor_b32 v5, v5, v4
    v_lshlrev_b32 v5, 4, v5
    v_lshl_add_u32 v5, v3, 7, v5
    s_lshl_b32 s57, s9, 13
    s_add_u32 s57, s57, {XLDS}
    v_add_u32 v{vXr[0]}, s57, v5
    v_xor_b32 v{vXr[1]}, 32, v{vXr[0]}
    v_xor_b32 v{vXr[2]}, 64, v{vXr[0]}
    v_xor_b32 v{vXr[3]}, 96, v{vXr[0]}
    v_lshlrev_b32 v6, 4, v4
    v_add_u32 v{vGr}, {GLDS}, v6
    v_lshrrev_b32 v5, 4, v{vLane}
    v_and_b32 v6, 1, v5
    v_lshrrev_b32 v5, 1, v5
    v_bfe_u32 v7, v{vLane}, 2, 2
    v_lshl_add_u32 v5, v5, 3, v7
    v_mul_u32_u24 v5, 192, v5
    v_lshl_add_u32 v5, v6, 5, v5
    v_and_b32 v6, 3, v{vLane}
    v_lshl_add_u32 v{vWr[0]}, v6, 3, v5
    v_add_u32 v{vWr[1]}, {14*3072}, v{vWr[0]}
    v_cmp_eq_u32 vcc, 28, v3
    v_mov_b32 v6, 0x3f803f80
    v_mov_b32 v7, 0
    v_cndmask_b32 v{vOnes}, v7, v6, vcc
    v_lshlrev_b32 v{vSt}, 4, v{vLane}
    """)
    assert XLDS%128==0
    for r in range(48): a.e(f"v_mov_b32 v{acc[0]+r}, 0")
    a.e("s_waitcnt lgkmcnt(0)")
    a.e("""
    s_cmp_eq_u32 s7, 0
    s_mov_b32 s36, s16
    s_mov_b32 s37, s17
    s_cselect_b32 s38, s18, s24
    s_cselect_b32 s39, s19, s25
    """)
    srd(a,SX,"s36","s37",XB); srd(a,SW,"s38","s39",WB); srd(a,SG,"s28","s29",896); srd(a,SWS,"s34","s35",WS_END)
    a.e(f"""
    s_lshl_b32 s56, s6, 3
    s_add_u32 s56, s56, s9
    s_mov_b32 s10, s56
    s_mul_i32 s56, s56, {32*896}
    s_mul_i32 s58, s9, {4*2688}
    s_mul_i32 s59, s8, 56
    s_add_u32 s58, s58, s59
    s_mul_i32 s59, s9, {4*192}
    s_mov_b32 s60, 0x10000000
    s_mov_b32 s61, 0x10000000
    s_mov_b32 s62, -1
    s_mov_b32 s63, 0xffff
    s_mov_b32 s64, -1
    s_mov_b32 s65, 0xffffff
    """)
    def dmaX(kc):
        slot=kc&1
        for j in range(4):
            a.e(f"""
            s_add_u32 m0, s57, {slot*4096+j*1024}
            s_add_u32 s66, s56, {8*j*896+kc*128}
            buffer_load_dwordx4 v{vX[j&1]}, s[{SX}:{SX+3}], s66 offen lds
            """)
    def dmaW(i):
        a.e(f"""
        s_add_u32 m0, s59, {WLDS+i*6144}
        s_add_u32 s66, s58, {i*32*2688}
        buffer_load_dwordx4 v{vW}, s[{SW}:{SW+3}], s66 offen lds
        """)
    a.e(f"""
    s_mov_b64 exec, s[64:65]
    s_mov_b32 m0, {GLDS}
    s_nop 0
    buffer_load_dwordx4 v{vG}, s[{SG}:{SG+3}], 0 offen lds
    s_mov_b64 exec, -1
    """)
    dmaX(0)
    a.e("s_mov_b64 exec, s[62:63]"); dmaW(0); dmaW(1); a.e("s_mov_b64 exec, -1")
    dmaX(1)
    a.e("s_mov_b64 exec, s[62:63]")
    for i in range(2,14): dmaW(i)
    a.e("s_mov_b64 exec, -1")
    def wreads(ks,buf):
        base=vWr[0] if ks<14 else vWr[1]
        o=(ks%14)*3072
        for t in range(3):
            r=wf[buf][t]
            a.e(f"ds_read_b64_tr_b16 v[{r}:{r+1}], v{base} offset:{o+t*64}")
            a.e(f"ds_read_b64_tr_b16 v[{r+2}:{r+3}], v{base} offset:{o+t*64+768}")
        r=wf[buf][0]
        a.e(f"""
        s_mov_b64 exec, s[60:61]
        ds_read_b128 v[{r}:{r+3}], v{vGr} offset:{ks*32}
        s_mov_b64 exec, -1
        """)
    vmX=[18,16,4,4,4,4,0]
    for kc in range(7):
        a.e(f"s_waitcnt vmcnt({vmX[kc]})")
        for kk in range(4):
            a.e(f"ds_read_b128 v[{xf+4*kk}:{xf+4*kk+3}], v{vXr[kk]} offset:{(kc&1)*4096}")
        if kc==0: a.e("s_waitcnt vmcnt(16)\ns_barrier")
        if kc==1: a.e("s_waitcnt vmcnt(14)\ns_barrier")
        if kc==2: a.e("s_barrier")
        wreads(4*kc,0)
        a.e("s_waitcnt lgkmcnt(7)")
        if kc+2<=6: dmaX(kc+2)
        for kk in range(4):
            ks=4*kc+kk; buf=kk&1
            if kk<3:
                wreads(ks+1,buf^1); a.e("s_waitcnt lgkmcnt(7)")
            else: a.e("s_waitcnt lgkmcnt(0)")
            x=f"v[{xf+4*kk}:{xf+4*kk+3}]"
            for t in range(3):
                w=f"v[{wf[buf][t]}:{wf[buf][t]+3}]"; c=f"v[{acc[t]}:{acc[t]+15}]"
                if t<2: a.e(f"v_mfma_f32_32x32x16_bf16 {c}, {w}, {x}, {c}")
                else:   a.e(f"v_mfma_f32_32x32x16_bf16 {c}, {x}, {w}, {c}")
    a.e("s_nop 15")
    a.e(f"""
    s_lshl_b32 s11, s5, 17
    s_lshl_b32 s13, s10, 11
    s_add_u32 s11, s11, s13
    s_add_u32 s11, s11, {WS_Q}
    s_lshl_b32 s12, s5, 18
    s_lshr_b32 s13, s10, 2
    s_lshl_b32 s13, s13, 14
    s_add_u32 s12, s12, s13
    s_and_b32 s13, s10, 3
    s_lshl_b32 s13, s13, 11
    s_add_u32 s12, s12, s13
    s_add_u32 s14, s12, 8192
    s_mov_b32 s67, {hex(f2u(QSCALE))}
    s_mov_b32 s68, 0
    s_mov_b32 s69, -1
    s_mov_b32 s70, 0xf0000000
    s_mov_b32 s71, 0xf0000000
    """)
    a.e(f"""
    v_mul_f32 v2, {hex(f2u(-math.log2(math.e)))}, v{acc[0]+12}
    v_exp_f32 v2, v2
    s_nop 0
    v_add_f32 v2, 1.0, v2
    v_rcp_f32 v2, v2
    """)
    for r in range(16): a.e(f"v_mul_f32 v{acc[0]+r}, s67, v{acc[0]+r}")
    for t in range(3):
        for i in range(8): a.e(f"v_cvt_pk_bf16_f32 v{acc[t]+i}, v{acc[t]+2*i}, v{acc[t]+2*i+1}")
    a.e(f"""
    s_mov_b64 exec, s[68:69]
    v_mov_b32 v{acc[0]+6}, 0
    v_mov_b32 v{acc[0]+7}, 0
    v_mov_b32 v{acc[1]+6}, 0x3f80
    v_mov_b32 v{acc[1]+7}, 0
    s_mov_b64 exec, s[70:71]
    """)
    for i in range(8): a.e(f"v_mov_b32 v{acc[2]+i}, v{vOnes}")
    a.e("s_mov_b64 exec, -1")
    for t,so in ((0,"s11"),(1,"s12"),(2,"s14")):
        for c in range(2):
            r=acc[t]+4*c
            a.e(f"buffer_store_dwordx4 v[{r}:{r+3}], v{vSt}, s[{SWS}:{SWS+3}], {so} offen offset:{c*1024}")
    a.e(f"""
    s_cmp_lg_u32 s5, 0
    s_cbranch_scc1 {L}_done
    v_and_b32 v3, 31, v{vLane}
    v_lshlrev_b32 v3, 2, v3
    s_lshl_b32 s13, s10, 7
    s_add_u32 s13, s13, {WS_G}
    s_mov_b64 exec, s[68:69]
    buffer_store_dword v2, v3, s[{SWS}:{SWS+3}], s13 offen
    """)
    a.label(f"{L}_done")
    a.e("s_endpgm")
    return dict(vgpr=120,sgpr=80,lds=GLDS+1024,grid=256,block=512)

def k2(a):
    L="K2"
    vL=1; vD=2; vG=3; vT=4
    q0=8; q1=12; S=[16,32]; P=48; O=56; kA=72; kB=76; vA=80; vB=84
    vM=88
    SKV=40; SWS=52
    FLAG=65536
    a.e(f"s_cmp_ge_u32 s2, 256\ns_cbranch_scc1 {L}_done")
    a.e("s_load_dwordx4 s[32:35], s[0:1], 64")
    decode_pair(a)
    a.e(f"""
    v_and_b32 v{vT}, 63, v0
    v_lshlrev_b32 v{vL}, 4, v{vT}
    v_lshlrev_b32 v{vD}, 4, v0
    v_lshrrev_b32 v5, 6, v0
    s_nop 0
    v_readfirstlane_b32 s9, v5
    s_lshl_b32 s10, s6, 3
    s_lshl_b32 s12, s5, 18
    s_waitcnt lgkmcnt(0)
    s_add_u32 s10, s10, s9
    s_add_u32 s36, s34, s12
    s_addc_u32 s37, s35, 0
    """)
    srd(a,SKV,"s36","s37",256*1024); srd(a,SWS,"s34","s35",WS_END)
    a.e(f"""
    s_lshl_b32 s11, s5, 17
    s_lshl_b32 s13, s10, 11
    s_add_u32 s11, s11, s13
    s_add_u32 s14, s11, {WS_O}
    s_add_u32 s11, s11, {WS_Q}
    s_lshl_b32 s13, s10, 7
    s_add_u32 s13, s13, {WS_G}
    v_and_b32 v5, 31, v{vT}
    v_lshlrev_b32 v5, 2, v5
    buffer_load_dwordx4 v[{q0}:{q0+3}], v{vL}, s[{SWS}:{SWS+3}], s11 offen
    buffer_load_dwordx4 v[{q1}:{q1+3}], v{vL}, s[{SWS}:{SWS+3}], s11 offen offset:1024
    buffer_load_dword v{vG}, v5, s[{SWS}:{SWS+3}], s13 offen
    s_lshl_b32 s57, s9, 10
    s_mov_b32 s58, 0
    s_mov_b32 s68, 0
    s_mov_b32 s69, -1
    """)
    def dma(slot):
        a.e(f"""
        s_add_u32 m0, s57, {slot*16384}
        s_add_u32 s59, s58, 8192
        buffer_load_dwordx4 v{vD}, s[{SKV}:{SKV+3}], s58 offen lds
        s_add_u32 m0, s57, {slot*16384+8192}
        s_add_u32 s58, s58, 16384
        buffer_load_dwordx4 v{vD}, s[{SKV}:{SKV+3}], s59 offen lds
        """)
    a.label(f"{L}_restart")
    for s in range(3): dma(s)
    for r in range(16): a.e(f"v_mov_b32 v{O+r}, 0")
    for r in range(4): a.e(f"v_mov_b32 v{P+4+r}, 0\nv_mov_b32 v{vB+r}, 0")
    a.e(f"""
    v_mov_b32 v5, {FLAG}
    v_mov_b32 v6, 0
    ds_write_b32 v5, v6
    s_waitcnt vmcnt(4) lgkmcnt(0)
    s_barrier
    """)
    Ko=lambda tt,c: (tt//4%4)*16384+(tt%4)*2048+c*1024
    Vo=lambda tt,c: Ko(tt,c)+8192
    rd=lambda r,off: a.e(f"ds_read_b128 v[{r}:{r+3}], v{vL} offset:{off}")
    R4=lambda r: f"v[{r}:{r+3}]"
    R16=lambda r: f"v[{r}:{r+15}]"
    rd(kA,Ko(0,0)); rd(kB,Ko(0,1))
    a.e("s_waitcnt lgkmcnt(0)")
    a.e(f"v_mfma_f32_32x32x16_bf16 {R16(S[0])}, {R4(kA)}, {R4(q0)}, 0")
    a.e(f"v_mfma_f32_32x32x16_bf16 {R16(S[0])}, {R4(kB)}, {R4(q1)}, {R16(S[0])}")
    rd(kA,Ko(1,0)); rd(kB,Ko(1,1))
    rd(vA,Vo(0,0))
    a.e("s_nop 7\ns_nop 3")
    s0=S[0]
    a.e(f"v_max3_f32 v{vM}, v{s0}, v{s0+1}, v{s0+2}")
    for i in range(3,15,2): a.e(f"v_max3_f32 v{vM}, v{vM}, v{s0+i}, v{s0+i+1}")
    a.e(f"""
    v_max_f32 v{vM}, v{vM}, v{s0+15}
    v_mov_b32 v5, v{vM}
    s_nop 0
    v_mov_b32 v6, v{vM}
    s_nop 1
    v_permlane32_swap_b32 v5, v6
    s_nop 1
    v_max_f32 v{vM}, v5, v6
    v_and_b32 v{vM}, 0xffff0000, v{vM}
    v_lshrrev_b32 v5, 16, v{vM}
    v_xor_b32 v5, 0x8000, v5
    s_mov_b64 exec, s[68:69]
    v_mov_b32 v{q1+2}, v5
    s_mov_b64 exec, -1
    """)
    for r in range(16): a.e(f"v_sub_f32 v{s0+r}, v{s0+r}, v{vM}")
    a.e("s_waitcnt lgkmcnt(0)")
    a.e("s_mov_b32 s60, 4")
    a.raw(".p2align 6")
    a.label(f"{L}_loop")
    body_start=len(a.lines)
    for tt in range(16):
        sc=S[tt%2]; sn=S[(tt+1)%2]
        if tt%4==2:
            a.e("s_waitcnt vmcnt(2)\ns_barrier")
            dma((tt//4+3)%4)
        a.e(f"s_setprio {(3,2,1,0)[(tt-2)%4]}")
        def grp(g,regp):
            for j in range(4): a.e(f"v_exp_f32 v{sc+4*g+j}, v{sc+4*g+j}")
            a.e(f"v_cvt_pk_bf16_f32 v{regp}, v{sc+4*g}, v{sc+4*g+1}")
            a.e(f"v_cvt_pk_bf16_f32 v{regp+1}, v{sc+4*g+2}, v{sc+4*g+3}")
        a.e("s_waitcnt lgkmcnt(3)")
        a.e(f"v_mfma_f32_32x32x16_bf16 {R16(sn)}, {R4(kA)}, {R4(q0)}, 0")
        rd(kA,Ko(tt+2,0))
        grp(0,P)
        a.e("s_waitcnt lgkmcnt(3)")
        a.e(f"v_mfma_f32_32x32x16_bf16 {R16(sn)}, {R4(kB)}, {R4(q1)}, {R16(sn)}")
        rd(kB,Ko(tt+2,1))
        grp(1,P+2)
        a.e("s_waitcnt lgkmcnt(3)")
        a.e(f"v_mfma_f32_32x32x16_bf16 {R16(O)}, {R4(vB)}, {R4(P+4)}, {R16(O)}")
        rd(vB,Vo(tt,1))
        grp(2,P+4)
        a.e("s_waitcnt lgkmcnt(3)")
        a.e(f"v_mfma_f32_32x32x16_bf16 {R16(O)}, {R4(vA)}, {R4(P)}, {R16(O)}")
        rd(vA,Vo(tt+1,0))
        grp(3,P+6)
    a.e(f"""
    s_sub_u32 s60, s60, 1
    s_cmp_lg_u32 s60, 0
    s_cbranch_scc1 {L}_loop
    """)
    body_end=len(a.lines)
    a.e("s_setprio 0")
    a.e("s_waitcnt lgkmcnt(0)")
    a.e(f"v_mfma_f32_32x32x16_bf16 {R16(O)}, {R4(vB)}, {R4(P+4)}, {R16(O)}")
    a.e("s_nop 15")
    def lsum():
        a.e(f"""
        v_mov_b32 v5, v{O+12}
        v_mov_b32 v6, v{O+12}
        s_nop 1
        v_permlane32_swap_b32 v5, v6
        """)
    lsum()
    a.e(f"v_mul_f32 v7, 0, v{O}")
    for r in range(1,16): a.e(f"v_fmac_f32 v7, 0, v{O+r}")
    a.e(f"""
    v_cmp_u_f32 vcc, v7, v7
    s_nop 0
    s_mov_b64 s[62:63], vcc
    v_cmp_nle_f32 vcc, 0x35800000, v6
    s_nop 0
    s_or_b64 s[62:63], s[62:63], vcc
    v_cmp_nge_f32 vcc, 0x4e800000, v6
    s_nop 0
    s_or_b64 s[62:63], s[62:63], vcc
    v_mov_b32 v5, {FLAG}
    v_mov_b32 v7, 1
    s_cmp_eq_u64 s[62:63], 0
    s_cbranch_scc1 {L}_ok
    ds_write_b32 v5, v7
    """)
    a.label(f"{L}_ok")
    a.e(f"""
    s_waitcnt lgkmcnt(0)
    s_barrier
    ds_read_b32 v7, v5
    s_waitcnt lgkmcnt(0)
    v_readfirstlane_b32 s61, v7
    s_nop 3
    s_cmp_lg_u32 s61, 0
    s_cbranch_scc1 {L}_slow
    """)
    a.label(f"{L}_final")
    lsum()
    a.e(f"""
    s_waitcnt vmcnt(0)
    v_rcp_f32 v6, v6
    v_sub_f32 v7, 1.0, v{vG}
    s_cmp_eq_u32 s7, 0
    s_cselect_b64 vcc, -1, 0
    v_cndmask_b32 v7, v7, v{vG}, vcc
    v_mul_f32 v6, v6, v7
    """)
    for r in range(16): a.e(f"v_mul_f32 v{O+r}, v{O+r}, v6")
    for i in range(8): a.e(f"v_cvt_pk_bf16_f32 v{O+i}, v{O+2*i}, v{O+2*i+1}")
    a.e(f"""
    s_mov_b64 exec, s[68:69]
    v_mov_b32 v{O+6}, 0
    v_mov_b32 v{O+7}, 0
    s_mov_b64 exec, -1
    s_nop 0
    buffer_store_dwordx4 v[{O}:{O+3}], v{vL}, s[{SWS}:{SWS+3}], s14 offen
    buffer_store_dwordx4 v[{O+4}:{O+7}], v{vL}, s[{SWS}:{SWS+3}], s14 offen offset:1024
    """)
    a.label(f"{L}_done")
    a.e("s_endpgm")
    fast_end=len(a.lines)
    a.label(f"{L}_slow")
    a.e(f"""
    s_waitcnt vmcnt(0)
    s_barrier
    s_mov_b64 exec, s[68:69]
    v_mov_b32 v{q1+2}, 0
    s_mov_b64 exec, -1
    v_mov_b32 v{vM}, 0xff800000
    s_mov_b32 s58, 0
    s_mov_b32 s60, 16
    """)
    for r in range(16): a.e(f"v_mov_b32 v{O+r}, 0")
    a.label(f"{L}_sloop")
    sl0=len(a.lines)
    dma(0)
    a.e("s_waitcnt vmcnt(0)\ns_barrier")
    sc=S[0]
    for i in range(4):
        rd(kA,Ko(i,0)); rd(kB,Ko(i,1)); rd(vA,Vo(i,0)); rd(vB,Vo(i,1))
        a.e("s_waitcnt lgkmcnt(0)")
        a.e(f"v_mfma_f32_32x32x16_bf16 {R16(sc)}, {R4(kA)}, {R4(q0)}, 0")
        a.e(f"v_mfma_f32_32x32x16_bf16 {R16(sc)}, {R4(kB)}, {R4(q1)}, {R16(sc)}")
        a.e("s_nop 15")
        a.e(f"v_max3_f32 v5, v{sc}, v{sc+1}, v{sc+2}")
        for k in range(3,15,2): a.e(f"v_max3_f32 v5, v5, v{sc+k}, v{sc+k+1}")
        a.e(f"""
        v_max_f32 v5, v5, v{sc+15}
        s_nop 0
        v_mov_b32 v6, v5
        s_nop 1
        v_permlane32_swap_b32 v5, v6
        s_nop 1
        v_max3_f32 v5, v5, v6, v{vM}
        v_sub_f32 v6, v{vM}, v5
        v_exp_f32 v6, v6
        v_mov_b32 v{vM}, v5
        """)
        for r in range(16): a.e(f"v_sub_f32 v{sc+r}, v{sc+r}, v5")
        for r in range(16): a.e(f"v_exp_f32 v{sc+r}, v{sc+r}")
        for r in range(16): a.e(f"v_mul_f32 v{O+r}, v{O+r}, v6")
        for k in range(8): a.e(f"v_cvt_pk_bf16_f32 v{P+k}, v{sc+2*k}, v{sc+2*k+1}")
        a.e("s_nop 1")
        a.e(f"v_mfma_f32_32x32x16_bf16 {R16(O)}, {R4(vA)}, {R4(P)}, {R16(O)}")
        a.e(f"v_mfma_f32_32x32x16_bf16 {R16(O)}, {R4(vB)}, {R4(P+4)}, {R16(O)}")
        a.e("s_nop 15")
    a.e(f"""
    s_barrier
    s_sub_u32 s60, s60, 1
    s_cmp_lg_u32 s60, 0
    s_cbranch_scc1 {L}_sloop
    s_branch {L}_final
    """)
    a.loops=[(body_start,body_end),(sl0,len(a.lines))]
    return dict(vgpr=96,sgpr=80,lds=98304,grid=256,block=512)

def k3(a):
    L="K3"
    vT=1; vL=2; vD=3; vA=[4,5]
    of=8
    wf=[[72,76],[80,84]]
    acc=[88,104]
    SWS=52; SWA=40; SWB=44; SO=48
    a.e(f"s_cmp_ge_u32 s2, 224\ns_cbranch_scc1 {L}_done")
    prologue_ptrs(a)
    a.e(f"""
    s_and_b32 s3, s2, 7
    s_lshr_b32 s4, s2, 3
    s_and_b32 s5, s4, 3
    s_lshl_b32 s3, s3, 2
    s_add_u32 s5, s5, s3
    s_lshr_b32 s6, s4, 2
    v_and_b32 v{vT}, 63, v0
    v_lshrrev_b32 v6, 6, v0
    v_lshlrev_b32 v{vL}, 4, v{vT}
    v_readfirstlane_b32 s9, v6
    v_lshrrev_b32 v6, 3, v{vT}
    v_mul_u32_u24 v6, 896, v6
    v_and_b32 v7, 7, v{vT}
    v_bfe_u32 v8, v{vT}, 4, 1
    v_lshlrev_b32 v8, 2, v8
    v_xor_b32 v7, v7, v8
    v_lshl_add_u32 v{vD}, v7, 4, v6
    s_and_b32 s10, s9, 1
    s_lshr_b32 s11, s9, 1
    s_waitcnt lgkmcnt(0)
    """)
    srd(a,SWS,"s34","s35",WS_END); srd(a,SWA,"s20","s21",WOB); srd(a,SWB,"s26","s27",WOB); srd(a,SO,"s30","s31",XB)
    a.e(f"""
    s_lshl_b32 s12, s5, 1
    s_add_u32 s12, s12, s10
    s_lshl_b32 s12, s12, 11
    s_lshl_b32 s13, s11, 20
    s_add_u32 s12, s12, s13
    s_add_u32 s12, s12, {WS_O}
    """)
    for i in range(8):
        a.e(f"s_add_u32 s14, s12, {i*131072}")
        for c in range(2):
            r=of+8*i+4*c
            a.e(f"buffer_load_dwordx4 v[{r}:{r+3}], v{vL}, s[{SWS}:{SWS+3}], s14 offen offset:{c*1024}")
    a.e(f"""
    s_mul_i32 s15, s9, {8*896}
    s_lshl_b32 s13, s6, 7
    s_add_u32 s15, s15, s13
    s_lshl_b32 s57, s9, 10
    """)
    for b,sw in ((0,SWA),(1,SWB)):
        for i in range(8):
            a.e(f"""
            s_add_u32 m0, s57, {b*65536+i*8192}
            s_add_u32 s14, s15, {i*64*896}
            buffer_load_dwordx4 v{vD}, s[{sw}:{sw+3}], s14 offen lds
            """)
    a.e(f"""
    v_lshrrev_b32 v6, 4, v{vT}
    v_and_b32 v7, 1, v6
    v_lshrrev_b32 v6, 1, v6
    v_bfe_u32 v72, v{vT}, 2, 2
    v_lshl_add_u32 v6, v6, 2, v72
    v_lshlrev_b32 v6, 7, v6
    v_lshrrev_b32 v72, 1, v72
    v_lshl_add_u32 v6, v72, 6, v6
    v_lshl_add_u32 v6, v7, 5, v6
    v_and_b32 v7, 3, v{vT}
    v_lshl_add_u32 v6, v7, 3, v6
    s_lshr_b32 s13, s11, 1
    s_lshl_b32 s13, s13, 16
    s_and_b32 s14, s11, 1
    s_mul_i32 s14, s14, {8*28*128}
    s_add_u32 s13, s13, s14
    v_add_u32 v{vA[0]}, s13, v6
    v_xor_b32 v{vA[1]}, 64, v{vA[0]}
    """)
    for r in range(32): a.e(f"v_mov_b32 v{acc[0]+r}, 0")
    a.e("s_waitcnt vmcnt(0)\ns_barrier")
    def wr(step,buf):
        i,c=step//2,step%2
        o=(i*28+16*c)*128
        for nt in range(2):
            r=wf[buf][nt]
            a.e(f"ds_read_b64_tr_b16 v[{r}:{r+1}], v{vA[nt]} offset:{o}")
            a.e(f"ds_read_b64_tr_b16 v[{r+2}:{r+3}], v{vA[nt]} offset:{o+1024}")
    wr(0,0)
    for step in range(16):
        buf=step&1
        if step<15:
            wr(step+1,buf^1); a.e("s_waitcnt lgkmcnt(4)")
        else: a.e("s_waitcnt lgkmcnt(0)")
        i,c=step//2,step%2
        r=of+8*i+4*c
        for nt in range(2):
            cc=f"v[{acc[nt]}:{acc[nt]+15}]"
            a.e(f"v_mfma_f32_32x32x16_bf16 {cc}, v[{wf[buf][nt]}:{wf[buf][nt]+3}], v[{r}:{r+3}], {cc}")
    a.e("s_nop 15\ns_barrier")
    a.e(f"""
    s_lshl_b32 s13, s9, 13
    v_add_u32 v6, s13, v{vL}
    """)
    for nt in range(2):
        for g in range(4):
            r=acc[nt]+4*g
            a.e(f"ds_write_b128 v6, v[{r}:{r+3}] offset:{nt*4096+g*1024}")
    a.e(f"""
    s_waitcnt lgkmcnt(0)
    s_barrier
    s_lshr_b32 s11, s9, 1
    s_and_b32 s11, s11, 1
    s_lshr_b32 s12, s9, 2
    s_lshl_b32 s13, s10, 13
    s_lshl_b32 s14, s11, 12
    s_add_u32 s13, s13, s14
    s_lshl_b32 s14, s12, 11
    s_add_u32 s13, s13, s14
    v_add_u32 v6, s13, v{vL}
    """)
    for kq in range(4):
        if kq==2: a.e(f"v_add_u32 v6, {4*8192}, v6")
        for g in range(2):
            r=8+kq*8+g*4
            a.e(f"ds_read_b128 v[{r}:{r+3}], v6 offset:{(kq&1)*16384+g*1024}")
    a.e("s_waitcnt lgkmcnt(0)")
    for k in range(8):
        a.e(f"v_add_f32 v{8+k}, v{8+k}, v{16+k}")
        a.e(f"v_add_f32 v{24+k}, v{24+k}, v{32+k}")
    for k in range(8): a.e(f"v_add_f32 v{8+k}, v{8+k}, v{24+k}")
    a.e(f"""
    v_cvt_pk_bf16_f32 v40, v8, v9
    v_cvt_pk_bf16_f32 v41, v10, v11
    v_cvt_pk_bf16_f32 v42, v12, v13
    v_cvt_pk_bf16_f32 v43, v14, v15
    v_and_b32 v6, 31, v{vT}
    v_lshrrev_b32 v7, 5, v{vT}
    v_permlane32_swap_b32 v40, v42
    v_permlane32_swap_b32 v41, v43
    v_mul_u32_u24 v6, 896, v6
    v_lshl_add_u32 v6, v7, 4, v6
    s_lshl_b32 s13, s5, 1
    s_add_u32 s13, s13, s10
    s_mul_i32 s13, s13, {32*896}
    s_lshl_b32 s14, s6, 7
    s_add_u32 s13, s13, s14
    s_lshl_b32 s14, s11, 6
    s_add_u32 s13, s13, s14
    s_lshl_b32 s14, s12, 5
    s_add_u32 s13, s13, s14
    buffer_store_dwordx4 v[40:43], v6, s[{SO}:{SO+3}], s13 offen
    """)
    a.label(f"{L}_done")
    a.e("s_endpgm")
    return dict(vgpr=120,sgpr=80,lds=131072,grid=224,block=512)

HDR=open("cdna_kernels/"+NAME+".s.ref").read().split(";   offset  72")[0]
def build(path):
    ks=[("qkv_kernel",k1),("attn_kernel",k2),("oproj_kernel",k3)]
    out=[]; meta=[]; body=[]
    errs=[]
    for name,fn in ks:
        a=Asm(); info=fn(a); meta.append((name,info))
        lines=a.lines
        errs+=check(lines,name)
        for (s,e) in getattr(a,"loops",[]):
            errs+=check(lines[s:e]+lines[s:e],name+"-loop")
        body.append(f".globl {name}\n.p2align 8\n.type {name},@function\n{name}:\n"+a.text())
    t=HDR+";   offset  72: d_ws      268435456 bytes workspace\n"
    for name,info in meta:
        t+=f"; @launch kernel={name} grid=({info['grid']},1,1) block=({info['block']},1,1) lds={info['lds']}\n"
    t+='.amdgcn_target "amdgcn-amd-amdhsa--gfx950"\n.text\n'
    t+="".join(body)
    t+='.section .rodata,"a"\n'
    for name,info in meta:
        t+=f""".p2align 6
.amdhsa_kernel {name}
  .amdhsa_next_free_vgpr {info['vgpr']}
  .amdhsa_next_free_sgpr {info['sgpr']}
  .amdhsa_accum_offset {info['vgpr']}
  .amdhsa_group_segment_fixed_size 0
  .amdhsa_kernarg_size 80
  .amdhsa_user_sgpr_count 2
  .amdhsa_user_sgpr_kernarg_segment_ptr 1
  .amdhsa_system_sgpr_workgroup_id_x 1
.end_amdhsa_kernel
"""
    open(path,"w").write(t)
    open("launch.txt","w").write("".join(f"{n} {i['grid']} {i['block']} {i['lds']}\n" for n,i in meta))
    for e in errs: print("HAZARD",e)
    print("hazard errors:",len(errs))
if __name__=="__main__":
    build(sys.argv[1] if len(sys.argv)>1 else "cdna_kernels/"+NAME+".s")
```

```python
import sys, math, struct
from asm import Asm, check
NAME="gated_mix__mha_block__softmax_full_mha__prompt"
WS_KV=0; WS_O=8<<20; WS_FKV=16<<20; WS_FO=(16<<20)+65536; WS_DBG=17<<20; WS_END=(18<<20)
XB=2048*448*2; WB=448*1344*2; WOB=448*448*2
QSCALE=math.log2(math.e)/math.sqrt(28.0)
def f2u(f): return struct.unpack("<I",struct.pack("<f",f))[0]
import os
DBG=False
DMASC=os.environ.get('DMASC','sc1')
STSC=os.environ.get('STSC','sc1')
NST=12
def stamp(a,i):
    if DBG: a.e(f"s_memtime s[{72+2*i}:{73+2*i}]\ns_waitcnt lgkmcnt(0)")
def stamp_rt(a,i):
    if DBG: a.e(f"s_memrealtime s[{72+2*i}:{73+2*i}]\ns_waitcnt lgkmcnt(0)")
def stamp_out(a,n,srdws,t0,tag):
    if not DBG: return
    a.e("s_cmp_lg_u32 s9, 0")
    a.e(f"s_cbranch_scc1 STMP{tag}_skip")
    a.e(f"s_lshl_b32 s70, s2, 6\ns_add_u32 s70, s70, {WS_DBG}")
    a.e(f"s_mov_b64 exec, 1\nv_mov_b32 v{t0+1}, 0")
    for i in range(n):
        a.e(f"v_mov_b32 v{t0}, s{72+2*i}")
        a.e(f"buffer_store_dword v{t0}, v{t0+1}, s[{srdws}:{srdws+3}], s70 offen offset:{4*i}")
        a.e("s_nop 1")
    a.e("s_mov_b64 exec, -1")
    a.label(f"STMP{tag}_skip")
def srd(a, d, lo, hi, size):
    a.e(f"s_mov_b32 s{d}, {lo}\ns_mov_b32 s{d+1}, {hi}\ns_mov_b32 s{d+2}, {size}\ns_mov_b32 s{d+3}, 0x20000")
R4=lambda r: f"v[{r}:{r+3}]"
R16=lambda r: f"v[{r}:{r+15}]"
MF="v_mfma_f32_32x32x16_bf16"

def fused(a):
    L="F"
    WLDS=0; RB=448*192; GLDS=RB+65536; FLAG=GLDS+1024; LDS_TOTAL=163840
    SX=40; SW=44; SG=48; SWS=52; SKV=36; SDB=12
    vLane=1; vL=2; vD=3; vGate=4
    vX=[10,11]; vW=12; vG=13; vXr=[14,15,16,17]; vWr=[18,19]; vGr=20; vOnes=21
    xf=24; wf=[[40,44,48],[52,56,60]]; acc=[64,80,96]
    a.e(f"s_cmp_ge_u32 s2, 256\ns_cbranch_scc1 {L}_done")
    stamp(a,0); stamp_rt(a,1)
    a.e("""
    s_load_dwordx16 s[16:31], s[0:1], 0
    s_load_dwordx4 s[32:35], s[0:1], 64
    s_and_b32 s3, s2, 7
    s_lshr_b32 s4, s2, 3
    s_and_b32 s5, s4, 3
    s_lshl_b32 s3, s3, 2
    s_add_u32 s5, s5, s3
    s_lshr_b32 s6, s4, 2
    s_lshr_b32 s7, s5, 4
    s_and_b32 s8, s5, 15
    """)
    a.e(f"""
    v_and_b32 v{vLane}, 63, v0
    v_lshrrev_b32 v5, 6, v0
    v_lshrrev_b32 v6, 3, v{vLane}
    v_readfirstlane_b32 s9, v5
    v_and_b32 v7, 7, v{vLane}
    v_lshrrev_b32 v5, 4, v{vLane}
    v_xor_b32 v7, v7, v5
    v_mul_u32_u24 v6, 896, v6
    v_lshl_add_u32 v{vX[0]}, v7, 4, v6
    v_xor_b32 v{vX[1]}, 64, v{vX[0]}
    v_mul_u32_u24 v6, 43, v{vLane}
    v_lshrrev_b32 v6, 9, v6
    v_mul_u32_u24 v7, 12, v6
    v_sub_u32 v7, v{vLane}, v7
    v_lshrrev_b32 v5, 2, v7
    v_and_b32 v7, 3, v7
    v_mul_u32_u24 v6, 2688, v6
    v_mul_u32_u24 v5, 896, v5
    v_lshlrev_b32 v7, 4, v7
    v_add3_u32 v{vW}, v6, v7, v5
    v_lshlrev_b32 v{vL}, 4, v{vLane}
    v_lshlrev_b32 v{vD}, 4, v0
    v_and_b32 v6, 31, v{vLane}
    v_lshrrev_b32 v7, 5, v{vLane}
    v_bfe_u32 v5, v{vLane}, 1, 3
    v_xor_b32 v5, v5, v7
    v_lshlrev_b32 v5, 4, v5
    v_lshl_add_u32 v5, v6, 7, v5
    s_lshl_b32 s57, s9, 13
    s_add_u32 s57, s57, {RB}
    v_add_u32 v{vXr[0]}, s57, v5
    v_xor_b32 v{vXr[1]}, 32, v{vXr[0]}
    v_xor_b32 v{vXr[2]}, 64, v{vXr[0]}
    v_xor_b32 v{vXr[3]}, 96, v{vXr[0]}
    v_lshlrev_b32 v7, 4, v7
    v_add_u32 v{vGr}, {GLDS}, v7
    v_cmp_eq_u32 vcc, 28, v6
    v_mov_b32 v6, 0x3f803f80
    v_mov_b32 v7, 0
    v_cndmask_b32 v{vOnes}, v7, v6, vcc
    v_lshrrev_b32 v5, 4, v{vLane}
    v_and_b32 v6, 1, v5
    v_lshrrev_b32 v5, 1, v5
    v_bfe_u32 v7, v{vLane}, 2, 2
    v_lshl_add_u32 v5, v5, 3, v7
    v_mul_u32_u24 v5, 192, v5
    v_lshl_add_u32 v5, v6, 5, v5
    v_and_b32 v6, 3, v{vLane}
    v_lshl_add_u32 v{vWr[0]}, v6, 3, v5
    v_add_u32 v{vWr[1]}, {14*3072}, v{vWr[0]}
    """)
    assert RB%128==0
    a.e("""
    s_lshl_b32 s10, s6, 3
    s_add_u32 s10, s10, s9
    s_mul_i32 s56, s10, 28672
    s_mul_i32 s58, s9, 10752
    s_mul_i32 s59, s8, 56
    s_add_u32 s58, s58, s59
    s_mul_i32 s59, s9, 768
    s_mov_b32 s60, 0x10000000
    s_mov_b32 s61, 0x10000000
    s_mov_b32 s62, -1
    s_mov_b32 s63, 0xffff
    s_mov_b32 s64, -1
    s_mov_b32 s65, 0xffffff
    s_waitcnt lgkmcnt(0)
    s_cmp_eq_u32 s7, 0
    s_cselect_b32 s38, s18, s24
    s_cselect_b32 s39, s19, s25
    """)
    stamp(a,2)
    srd(a,SX,"s16","s17",XB); srd(a,SW,"s38","s39",WB); srd(a,SG,"s28","s29",896)
    def dmaX(kc):
        slot=kc&1
        for j in range(4):
            a.e(f"""
            s_add_u32 m0, s57, {slot*4096+j*1024}
            s_add_u32 s66, s56, {8*j*896+kc*128}
            buffer_load_dwordx4 v{vX[j&1]}, s[{SX}:{SX+3}], s66 offen lds
            """)
    def dmaW(i):
        a.e(f"""
        s_add_u32 m0, s59, {WLDS+i*6144}
        s_add_u32 s66, s58, {i*32*2688}
        buffer_load_dwordx4 v{vW}, s[{SW}:{SW+3}], s66 offen lds
        """)
    a.e(f"""
    s_mov_b64 exec, s[64:65]
    s_mov_b32 m0, {GLDS}
    s_nop 0
    buffer_load_dwordx4 v{vL}, s[{SG}:{SG+3}], 0 offen lds
    s_mov_b64 exec, -1
    """)
    dmaX(0)
    a.e("s_mov_b64 exec, s[62:63]"); dmaW(0); dmaW(1); a.e("s_mov_b64 exec, -1")
    dmaX(1)
    a.e("s_mov_b64 exec, s[62:63]")
    for i in range(2,14): dmaW(i)
    a.e("s_mov_b64 exec, -1")
    srd(a,SWS,"s34","s35",WS_END); srd(a,SDB,"s32","s33",256)
    a.e(f"""
    s_or_b32 s3, s2, s9
    s_cmp_lg_u32 s3, 0
    s_cbranch_scc1 {L}_notag
    s_memrealtime s[70:71]
    s_waitcnt lgkmcnt(0)
    s_or_b32 s70, s70, 1
    v_mov_b32 v5, s70
    v_mov_b32 v6, 0
    s_mov_b64 exec, 1
    buffer_store_dword v5, v6, s[{SDB}:{SDB+3}], 0 offen sc1
    s_mov_b64 exec, -1
    """)
    a.label(f"{L}_notag")
    a.e("""
    s_lshl_b32 s3, s5, 18
    s_add_u32 s36, s34, s3
    s_addc_u32 s37, s35, 0
    s_mov_b32 s38, 0x40000
    s_mov_b32 s39, 0x20000
    """)
    for r in range(48): a.e(f"v_mov_b32 v{acc[0]+r}, 0")
    def wreads(ks,buf):
        base=vWr[0] if ks<14 else vWr[1]
        o=(ks%14)*3072
        for t in range(3):
            r=wf[buf][t]
            a.e(f"ds_read_b64_tr_b16 v[{r}:{r+1}], v{base} offset:{o+t*64}")
            a.e(f"ds_read_b64_tr_b16 v[{r+2}:{r+3}], v{base} offset:{o+t*64+768}")
        r=wf[buf][0]
        a.e(f"s_mov_b64 exec, s[60:61]\nds_read_b128 v[{r}:{r+3}], v{vGr} offset:{ks*32}\ns_mov_b64 exec, -1")
    vmX=[18,16,4,4,4,4,0]
    for kc in range(7):
        a.e(f"s_waitcnt vmcnt({vmX[kc]})")
        if kc==6: a.e(f"v_mov_b32 v120, 0\nbuffer_load_dword v121, v120, s[{SDB}:{SDB+3}], 0 offen sc1")
        for kk in range(4):
            a.e(f"ds_read_b128 {R4(xf+4*kk)}, v{vXr[kk]} offset:{(kc&1)*4096}")
        if kc==0: a.e("s_waitcnt vmcnt(16)\ns_barrier")
        if kc==1: a.e("s_waitcnt vmcnt(14)\ns_barrier")
        if kc==2: a.e("s_barrier")
        wreads(4*kc,0)
        a.e("s_waitcnt lgkmcnt(7)")
        if kc+2<=6: dmaX(kc+2)
        for kk in range(4):
            ks=4*kc+kk; buf=kk&1
            if kk<3:
                wreads(ks+1,buf^1); a.e("s_waitcnt lgkmcnt(7)")
            else: a.e("s_waitcnt lgkmcnt(0)")
            x=R4(xf+4*kk)
            for t in range(3):
                w=R4(wf[buf][t]); c=R16(acc[t])
                if t<2: a.e(f"{MF} {c}, {w}, {x}, {c}")
                else:   a.e(f"{MF} {c}, {x}, {w}, {c}")
    stamp(a,4)
    a.e(f"""
    s_lshl_b32 s11, s10, 12
    s_mov_b32 s67, {hex(f2u(QSCALE))}
    s_mov_b32 s68, 0
    s_mov_b32 s69, -1
    s_mov_b32 s70, 0xf0000000
    s_mov_b32 s71, 0xf0000000
    s_nop 7
    """)
    for t in (1,2):
        for i in range(8): a.e(f"v_cvt_pk_bf16_f32 v{acc[t]+i}, v{acc[t]+2*i}, v{acc[t]+2*i+1}")
    a.e(f"""
    s_mov_b64 exec, s[68:69]
    v_mov_b32 v{acc[1]+6}, 0x3f80
    v_mov_b32 v{acc[1]+7}, 0
    s_mov_b64 exec, s[70:71]
    """)
    for i in range(8): a.e(f"v_mov_b32 v{acc[2]+i}, v{vOnes}")
    a.e("s_mov_b64 exec, -1")
    a.e(f"v_add_u32 v5, s57, v{vL}")
    for t in (1,2):
        for c in range(2):
            r=acc[t]+4*c
            a.e(f"buffer_store_dwordx4 {R4(r)}, v{vL}, s[{SKV}:{SKV+3}], s11 offen offset:{(t-1)*2048+c*1024} sc1")
    for t in (1,2):
        for c in range(2):
            r=acc[t]+4*c
            a.e(f"ds_write_b128 v5, {R4(r)} offset:{(t-1)*2048+c*1024}")
    a.e(f"""
    v_mul_f32 v6, {hex(f2u(-math.log2(math.e)))}, v{acc[0]+12}
    v_exp_f32 v6, v6
    s_nop 0
    v_add_f32 v6, 1.0, v6
    v_rcp_f32 v6, v6
    s_nop 0
    v_sub_f32 v7, 1.0, v6
    s_cmp_eq_u32 s7, 0
    s_cselect_b64 vcc, -1, 0
    v_cndmask_b32 v6, v7, v6, vcc
    v_mov_b32 v{vGate}, v6
    s_nop 1
    v_permlane32_swap_b32 v6, v{vGate}
    """)
    for r in range(16): a.e(f"v_mul_f32 v{acc[0]+r}, s67, v{acc[0]+r}")
    for i in range(8): a.e(f"v_cvt_pk_bf16_f32 v{acc[0]+i}, v{acc[0]+2*i}, v{acc[0]+2*i+1}")
    a.e(f"""
    s_mov_b64 exec, s[68:69]
    v_mov_b32 v{acc[0]+6}, 0
    v_mov_b32 v{acc[0]+7}, 0
    s_mov_b64 exec, -1
    """)
    q0=64; q1=68; S=[16,32]; P=48; O=104; kA=56; kB=60; vA=72; vB=76; vM=8; vR=9
    pos=lambda i: (i%8)*8192+((i%16)//8)*4096
    Ko=lambda tt,c: pos(tt)+c*1024
    Vo=lambda tt,c: pos(tt)+2048+c*1024
    rd=lambda r,off: a.e(f"ds_read_b128 {R4(r)}, v{vR} offset:{off}")
    a.e(f"""
    v_add_u32 v{vR}, {RB}, v{vL}
    s_lshr_b32 s57, s9, 2
    s_lshl_b32 s57, s57, 13
    s_and_b32 s3, s9, 3
    s_lshl_b32 s3, s3, 10
    s_add_u32 s57, s57, s3
    s_add_u32 s57, s57, {RB}
    s_lshl_b32 s56, s6, 1
    s_mov_b32 s58, 2
    s_mov_b32 s66, 0x40000000
    """)
    def dma(slot):
        m1=(4*(slot%2))*8192+(slot//2)*4096
        a.e(f"""
        s_add_u32 s59, s58, s56
        s_and_b32 s59, s59, 15
        s_lshl_b32 s59, s59, 14
        s_cmp_lt_u32 s58, 16
        s_cselect_b32 s59, s59, s66
        s_add_u32 m0, s57, {m1}
        s_add_u32 s58, s58, 1
        buffer_load_dwordx4 v{vD}, s[{SKV}:{SKV+3}], s59 offen {DMASC} lds
        s_add_u32 m0, s57, {m1+2*8192}
        s_add_u32 s59, s59, 8192
        buffer_load_dwordx4 v{vD}, s[{SKV}:{SKV+3}], s59 offen {DMASC} lds
        """)
    for r in range(16): a.e(f"v_mov_b32 v{O+r}, 0")
    for r in range(4): a.e(f"v_mov_b32 v{P+4+r}, 0\nv_mov_b32 v{vB+r}, 0")
    a.e(f"""
    v_mov_b32 v5, {FLAG}
    v_mov_b32 v6, 0
    ds_write_b32 v5, v6
    s_waitcnt lgkmcnt(0)
    s_barrier
    """)
    stamp(a,5)
    rd(kA,Ko(0,0)); rd(kB,Ko(0,1))
    a.e("s_waitcnt lgkmcnt(0)")
    a.e(f"{MF} {R16(S[0])}, {R4(kA)}, {R4(q0)}, 0")
    a.e(f"{MF} {R16(S[0])}, {R4(kB)}, {R4(q1)}, {R16(S[0])}")
    rd(kA,Ko(1,0)); rd(kB,Ko(1,1)); rd(vA,Vo(0,0))
    a.e("s_nop 7\ns_nop 3")
    s0=S[0]
    a.e(f"v_max3_f32 v{vM}, v{s0}, v{s0+1}, v{s0+2}")
    for i in range(3,15,2): a.e(f"v_max3_f32 v{vM}, v{vM}, v{s0+i}, v{s0+i+1}")
    a.e(f"""
    v_max_f32 v{vM}, v{vM}, v{s0+15}
    v_mov_b32 v5, v{vM}
    s_nop 0
    v_mov_b32 v6, v{vM}
    s_nop 1
    v_permlane32_swap_b32 v5, v6
    s_nop 1
    v_max_f32 v{vM}, v5, v6
    v_and_b32 v{vM}, 0xffff0000, v{vM}
    v_lshrrev_b32 v5, 16, v{vM}
    v_xor_b32 v5, 0x8000, v5
    s_mov_b64 exec, s[68:69]
    v_mov_b32 v{q1+2}, v5
    s_mov_b64 exec, -1
    """)
    for r in range(16): a.e(f"v_sub_f32 v{s0+r}, v{s0+r}, v{vM}")
    a.e("s_waitcnt lgkmcnt(0)")
    a.e("s_mov_b32 s60, 4")
    a.e(f"""
    v_lshlrev_b32 v10, 7, v{vLane}
    s_lshl_b32 s61, s5, 10
    s_add_u32 s61, s61, {WS_FKV}
    """)
    def gettag():
        a.label(f"{L}_tag")
        a.e(f"""
        v_readfirstlane_b32 s71, v121
        s_nop 3
        s_cmp_lg_u32 s71, 0
        s_cbranch_scc1 {L}_tagok
        s_sleep 2
        buffer_load_dword v121, v120, s[{SDB}:{SDB+3}], 0 offen sc1
        s_waitcnt vmcnt(0)
        s_branch {L}_tag
        """)
        a.label(f"{L}_tagok")
    def poll(soff,mask_lo,tag):
        a.e(f"s_mov_b32 exec_lo, {mask_lo}\ns_mov_b32 exec_hi, 0")
        a.label(f"{L}_poll{tag}")
        a.e(f"""
        buffer_load_dword v12, v10, s[{SWS}:{SWS+3}], {soff} offen sc1
        s_waitcnt vmcnt(0)
        v_cmp_ne_u32 vcc, s71, v12
        s_nop 1
        s_cmp_eq_u64 vcc, 0
        s_cbranch_scc1 {L}_pdone{tag}
        s_sleep 2
        s_branch {L}_poll{tag}
        """)
        a.label(f"{L}_pdone{tag}")
        a.e("s_mov_b64 exec, -1")
    def signal(soff,tag):
        a.e(f"""
        s_cmp_lg_u32 s9, 0
        s_cbranch_scc1 {L}_nosig{tag}
        v_mov_b32 v12, s71
        s_mov_b64 exec, 1
        buffer_store_dword v12, v120, s[{SWS}:{SWS+3}], {soff} offen sc1
        s_mov_b64 exec, -1
        """)
        a.label(f"{L}_nosig{tag}")
    a.raw(".p2align 6")
    a.label(f"{L}_loop")
    body_start=len(a.lines)
    for tt in range(16):
        sc=S[tt%2]; sn=S[(tt+1)%2]
        if tt==2:
            a.e(f"s_cmp_eq_u32 s60, 4\ns_cbranch_scc0 {L}_b1")
            a.e("s_waitcnt vmcnt(0)\ns_barrier")
            gettag()
            a.e("s_lshl_b32 s3, s6, 7\ns_add_u32 s3, s3, s61")
            signal("s3","kv")
            a.e(f"s_branch {L}_b1x")
            a.label(f"{L}_b1")
            a.e("s_waitcnt vmcnt(2)\ns_barrier")
            dma(3)
            a.label(f"{L}_b1x")
        elif tt%4==2:
            a.e("s_waitcnt vmcnt(2)\ns_barrier")
            dma((tt//4+3)%4)
        if tt==4:
            a.e(f"s_cmp_eq_u32 s60, 4\ns_cbranch_scc0 {L}_np")
            poll("s61","0xff","kv")
            stamp(a,3)
            dma(2); dma(3)
            a.label(f"{L}_np")
        a.e(f"s_setprio {(3,2,1,0)[(tt-2)%4]}")
        def grp(g,regp):
            for j in range(4): a.e(f"v_exp_f32 v{sc+4*g+j}, v{sc+4*g+j}")
            a.e(f"v_cvt_pk_bf16_f32 v{regp}, v{sc+4*g}, v{sc+4*g+1}")
            a.e(f"v_cvt_pk_bf16_f32 v{regp+1}, v{sc+4*g+2}, v{sc+4*g+3}")
        a.e("s_waitcnt lgkmcnt(3)")
        a.e(f"{MF} {R16(sn)}, {R4(kA)}, {R4(q0)}, 0")
        rd(kA,Ko(tt+2,0))
        grp(0,P)
        a.e("s_waitcnt lgkmcnt(3)")
        a.e(f"{MF} {R16(sn)}, {R4(kB)}, {R4(q1)}, {R16(sn)}")
        rd(kB,Ko(tt+2,1))
        grp(1,P+2)
        a.e("s_waitcnt lgkmcnt(3)")
        a.e(f"{MF} {R16(O)}, {R4(vB)}, {R4(P+4)}, {R16(O)}")
        rd(vB,Vo(tt,1))
        grp(2,P+4)
        a.e("s_waitcnt lgkmcnt(3)")
        a.e(f"{MF} {R16(O)}, {R4(vA)}, {R4(P)}, {R16(O)}")
        rd(vA,Vo(tt+1,0))
        grp(3,P+6)
    a.e(f"s_sub_u32 s60, s60, 1\ns_cmp_lg_u32 s60, 0\ns_cbranch_scc1 {L}_loop")
    body_end=len(a.lines)
    a.e("s_setprio 0\ns_waitcnt lgkmcnt(0)")
    stamp(a,6)
    a.e(f"{MF} {R16(O)}, {R4(vB)}, {R4(P+4)}, {R16(O)}")
    a.e("s_nop 15")
    def lsum():
        a.e(f"v_mov_b32 v5, v{O+12}\nv_mov_b32 v6, v{O+12}\ns_nop 1\nv_permlane32_swap_b32 v5, v6")
    lsum()
    a.e(f"v_mul_f32 v7, 0, v{O}")
    for r in range(1,16): a.e(f"v_fmac_f32 v7, 0, v{O+r}")
    a.e(f"""
    v_cmp_u_f32 vcc, v7, v7
    s_nop 0
    s_mov_b64 s[62:63], vcc
    v_cmp_nle_f32 vcc, 0x35800000, v6
    s_nop 0
    s_or_b64 s[62:63], s[62:63], vcc
    v_cmp_nge_f32 vcc, 0x4e800000, v6
    s_nop 0
    s_or_b64 s[62:63], s[62:63], vcc
    v_mov_b32 v5, {FLAG}
    v_mov_b32 v7, 1
    s_cmp_eq_u64 s[62:63], 0
    s_cbranch_scc1 {L}_ok
    ds_write_b32 v5, v7
    """)
    a.label(f"{L}_ok")
    a.e(f"""
    s_waitcnt vmcnt(0) lgkmcnt(0)
    s_barrier
    ds_read_b32 v7, v5
    s_waitcnt lgkmcnt(0)
    v_readfirstlane_b32 s61, v7
    s_nop 3
    s_cmp_lg_u32 s61, 0
    s_cbranch_scc1 {L}_slow
    """)
    a.label(f"{L}_final")
    lsum()
    a.e(f"""
    v_rcp_f32 v6, v6
    s_nop 0
    v_mul_f32 v6, v6, v{vGate}
    """)
    for r in range(16): a.e(f"v_mul_f32 v{O+r}, v{O+r}, v6")
    for i in range(8): a.e(f"v_cvt_pk_bf16_f32 v{O+i}, v{O+2*i}, v{O+2*i+1}")
    a.e(f"""
    s_lshl_b32 s11, s5, 17
    s_lshl_b32 s3, s10, 11
    s_add_u32 s11, s11, s3
    s_add_u32 s11, s11, {WS_O}
    s_mov_b64 exec, s[68:69]
    v_mov_b32 v{O+6}, 0
    v_mov_b32 v{O+7}, 0
    s_mov_b64 exec, -1
    s_lshl_b32 s61, s6, 12
    s_add_u32 s61, s61, {WS_FO}
    s_lshl_b32 s3, s5, 7
    s_add_u32 s3, s3, s61
    buffer_store_dwordx4 {R4(O)}, v{vL}, s[{SWS}:{SWS+3}], s11 offen sc1
    buffer_store_dwordx4 {R4(O+4)}, v{vL}, s[{SWS}:{SWS+3}], s11 offen offset:1024 sc1
    s_waitcnt vmcnt(0)
    s_barrier
    """)
    signal("s3","o")
    a.e("s_mov_b32 s59, s61")
    stamp(a,7)
    a.e(f"s_cmp_ge_u32 s5, 28\ns_cbranch_scc1 {L}_end")
    of=16; wfo=[[80,84],[88,92]]; acc3=[96,112]; vA3=[14,15]; vD3=13
    SWA=40; SWB=44; SO=48
    a.e(f"""
    s_mul_i32 s3, s5, 37
    s_lshr_b32 s4, s3, 8
    s_mul_i32 s3, s4, 7
    s_sub_u32 s3, s5, s3
    s_lshl_b32 s11, s6, 2
    s_add_u32 s4, s4, s11
    v_lshrrev_b32 v6, 3, v{vLane}
    v_mul_u32_u24 v6, 896, v6
    v_and_b32 v7, 7, v{vLane}
    v_bfe_u32 v5, v{vLane}, 4, 1
    v_lshlrev_b32 v5, 2, v5
    v_xor_b32 v7, v7, v5
    v_lshl_add_u32 v{vD3}, v7, 4, v6
    s_and_b32 s60, s9, 1
    s_lshr_b32 s61, s9, 1
    """)
    srd(a,SWA,"s20","s21",WOB); srd(a,SWB,"s26","s27",WOB); srd(a,SO,"s30","s31",XB)
    a.e(f"""
    s_mul_i32 s62, s9, {8*896}
    s_lshl_b32 s63, s3, 7
    s_add_u32 s62, s62, s63
    s_lshl_b32 s57, s9, 10
    """)
    for b,sw in ((0,SWA),(1,SWB)):
        for i in range(8):
            a.e(f"""
            s_add_u32 m0, s57, {b*65536+i*8192}
            s_add_u32 s63, s62, {i*64*896}
            buffer_load_dwordx4 v{vD3}, s[{sw}:{sw+3}], s63 offen lds
            """)
    a.e(f"""
    v_lshrrev_b32 v6, 4, v{vLane}
    v_and_b32 v7, 1, v6
    v_lshrrev_b32 v6, 1, v6
    v_bfe_u32 v5, v{vLane}, 2, 2
    v_lshl_add_u32 v6, v6, 2, v5
    v_lshlrev_b32 v6, 7, v6
    v_lshrrev_b32 v5, 1, v5
    v_lshl_add_u32 v6, v5, 6, v6
    v_lshl_add_u32 v6, v7, 5, v6
    v_and_b32 v7, 3, v{vLane}
    v_lshl_add_u32 v6, v7, 3, v6
    s_lshr_b32 s62, s61, 1
    s_lshl_b32 s62, s62, 16
    s_and_b32 s63, s61, 1
    s_mul_i32 s63, s63, {8*28*128}
    s_add_u32 s62, s62, s63
    v_add_u32 v{vA3[0]}, s62, v6
    v_xor_b32 v{vA3[1]}, 64, v{vA3[0]}
    s_lshl_b32 s62, s4, 1
    s_add_u32 s62, s62, s60
    s_lshl_b32 s62, s62, 11
    s_lshl_b32 s63, s61, 20
    s_add_u32 s62, s62, s63
    s_add_u32 s62, s62, {WS_O}
    """)
    for r in range(32): a.e(f"v_mov_b32 v{acc3[0]+r}, 0")
    a.e(f"s_waitcnt vmcnt(0)\ns_cmp_lg_u32 s9, 0\ns_cbranch_scc1 {L}_nopoll")
    poll("s59","-1","o")
    a.label(f"{L}_nopoll")
    a.e("s_barrier")
    stamp(a,8)
    for i in range(8):
        a.e(f"s_add_u32 s63, s62, {i*131072}")
        for c in range(2):
            a.e(f"buffer_load_dwordx4 {R4(of+8*i+4*c)}, v{vL}, s[{SWS}:{SWS+3}], s63 offen offset:{c*1024} sc1")
    def wr(step,buf):
        i,c=step//2,step%2
        o=(i*28+16*c)*128
        for nt in range(2):
            r=wfo[buf][nt]
            a.e(f"ds_read_b64_tr_b16 v[{r}:{r+1}], v{vA3[nt]} offset:{o}")
            a.e(f"ds_read_b64_tr_b16 v[{r+2}:{r+3}], v{vA3[nt]} offset:{o+1024}")
    wr(0,0)
    for step in range(16):
        buf=step&1
        if step<15:
            wr(step+1,buf^1); a.e(f"s_waitcnt vmcnt({15-step}) lgkmcnt(4)")
        else: a.e("s_waitcnt vmcnt(0) lgkmcnt(0)")
        i,c=step//2,step%2
        for nt in range(2):
            cc=R16(acc3[nt])
            a.e(f"{MF} {cc}, {R4(wfo[buf][nt])}, {R4(of+8*i+4*c)}, {cc}")
    a.e("s_nop 15\ns_barrier")
    stamp(a,9)
    a.e(f"s_lshl_b32 s62, s9, 13\nv_add_u32 v6, s62, v{vL}")
    for nt in range(2):
        for g in range(4):
            a.e(f"ds_write_b128 v6, {R4(acc3[nt]+4*g)} offset:{nt*4096+g*1024}")
    a.e(f"""
    s_waitcnt lgkmcnt(0)
    s_barrier
    s_lshr_b32 s61, s9, 1
    s_and_b32 s61, s61, 1
    s_lshr_b32 s56, s9, 2
    s_lshl_b32 s62, s60, 13
    s_lshl_b32 s63, s61, 12
    s_add_u32 s62, s62, s63
    s_lshl_b32 s63, s56, 11
    s_add_u32 s62, s62, s63
    v_add_u32 v6, s62, v{vL}
    """)
    for kq in range(4):
        if kq==2: a.e(f"v_add_u32 v6, {4*8192}, v6")
        for g in range(2):
            a.e(f"ds_read_b128 {R4(16+kq*8+g*4)}, v6 offset:{(kq&1)*16384+g*1024}")
    a.e("s_waitcnt lgkmcnt(0)")
    for k in range(8):
        a.e(f"v_add_f32 v{16+k}, v{16+k}, v{24+k}")
        a.e(f"v_add_f32 v{32+k}, v{32+k}, v{40+k}")
    for k in range(8): a.e(f"v_add_f32 v{16+k}, v{16+k}, v{32+k}")
    a.e(f"""
    v_cvt_pk_bf16_f32 v48, v16, v17
    v_cvt_pk_bf16_f32 v49, v18, v19
    v_cvt_pk_bf16_f32 v50, v20, v21
    v_cvt_pk_bf16_f32 v51, v22, v23
    v_and_b32 v6, 31, v{vLane}
    v_lshrrev_b32 v7, 5, v{vLane}
    v_permlane32_swap_b32 v48, v50
    v_permlane32_swap_b32 v49, v51
    v_mul_u32_u24 v6, 896, v6
    v_lshl_add_u32 v6, v7, 4, v6
    s_lshl_b32 s62, s4, 1
    s_add_u32 s62, s62, s60
    s_mul_i32 s62, s62, {32*896}
    s_lshl_b32 s63, s3, 7
    s_add_u32 s62, s62, s63
    s_lshl_b32 s63, s61, 6
    s_add_u32 s62, s62, s63
    s_lshl_b32 s63, s56, 5
    s_add_u32 s62, s62, s63
    buffer_store_dwordx4 v[48:51], v6, s[{SO}:{SO+3}], s62 offen
    """)
    a.label(f"{L}_end")
    if DBG:
        a.e("s_waitcnt vmcnt(0)"); stamp(a,10); stamp_rt(a,11); stamp_out(a,12,SWS,60,"f")
    a.label(f"{L}_done")
    a.e("s_endpgm")
    a.label(f"{L}_slow")
    a.e(f"""
    s_mov_b64 exec, s[68:69]
    v_mov_b32 v{q1+2}, 0
    s_mov_b64 exec, -1
    v_mov_b32 v{vM}, 0xff800000
    s_mov_b32 s58, 0
    s_mov_b32 s60, 16
    """)
    for r in range(16): a.e(f"v_mov_b32 v{O+r}, 0")
    a.label(f"{L}_sloop")
    sl0=len(a.lines)
    dma(0)
    a.e("s_waitcnt vmcnt(0)\ns_barrier")
    sc=S[0]
    for i in range(4):
        rd(kA,Ko(i,0)); rd(kB,Ko(i,1)); rd(vA,Vo(i,0)); rd(vB,Vo(i,1))
        a.e("s_waitcnt lgkmcnt(0)")
        a.e(f"{MF} {R16(sc)}, {R4(kA)}, {R4(q0)}, 0")
        a.e(f"{MF} {R16(sc)}, {R4(kB)}, {R4(q1)}, {R16(sc)}")
        a.e("s_nop 15")
        a.e(f"v_max3_f32 v5, v{sc}, v{sc+1}, v{sc+2}")
        for k in range(3,15,2): a.e(f"v_max3_f32 v5, v5, v{sc+k}, v{sc+k+1}")
        a.e(f"""
        v_max_f32 v5, v5, v{sc+15}
        s_nop 0
        v_mov_b32 v6, v5
        s_nop 1
        v_permlane32_swap_b32 v5, v6
        s_nop 1
        v_max3_f32 v5, v5, v6, v{vM}
        v_sub_f32 v6, v{vM}, v5
        v_exp_f32 v6, v6
        v_mov_b32 v{vM}, v5
        """)
        for r in range(16): a.e(f"v_sub_f32 v{sc+r}, v{sc+r}, v5")
        for r in range(16): a.e(f"v_exp_f32 v{sc+r}, v{sc+r}")
        for r in range(16): a.e(f"v_mul_f32 v{O+r}, v{O+r}, v6")
        for k in range(8): a.e(f"v_cvt_pk_bf16_f32 v{P+k}, v{sc+2*k}, v{sc+2*k+1}")
        a.e("s_nop 1")
        a.e(f"{MF} {R16(O)}, {R4(vA)}, {R4(P)}, {R16(O)}")
        a.e(f"{MF} {R16(O)}, {R4(vB)}, {R4(P+4)}, {R16(O)}")
        a.e("s_nop 15")
    a.e(f"""
    s_barrier
    s_sub_u32 s60, s60, 1
    s_cmp_lg_u32 s60, 0
    s_cbranch_scc1 {L}_sloop
    s_branch {L}_final
    """)
    a.loops=[(body_start,body_end),(sl0,len(a.lines))]
    return dict(vgpr=128,sgpr=(100 if DBG else 72),lds=LDS_TOTAL,grid=256,block=512)

HDR=open("cdna_kernels/"+NAME+".s.ref").read().split("; Override")[0]
def build(path):
    name=NAME+"_kernel"
    a=Asm(); info=fused(a)
    errs=check(a.lines,name)
    for (s,e) in a.loops: errs+=check(a.lines[s:e]+a.lines[s:e],name+"-loop")
    t=HDR+f"; @launch grid=({info['grid']},1,1) block=({info['block']},1,1) lds={info['lds']}\n"
    t+='.amdgcn_target "amdgcn-amd-amdhsa--gfx950"\n.text\n'
    t+=f".globl {name}\n.p2align 8\n.type {name},@function\n{name}:\n"+a.text()
    t+=f""".section .rodata,"a"
.p2align 6
.amdhsa_kernel {name}
  .amdhsa_next_free_vgpr {info['vgpr']}
  .amdhsa_next_free_sgpr {info['sgpr']}
  .amdhsa_accum_offset {info['vgpr']}
  .amdhsa_group_segment_fixed_size 0
  .amdhsa_kernarg_size 80
  .amdhsa_user_sgpr_count 2
  .amdhsa_user_sgpr_kernarg_segment_ptr 1
  .amdhsa_system_sgpr_workgroup_id_x 1
.end_amdhsa_kernel
"""
    open(path,"w").write(t)
    open("launch.txt","w").write(f"{name} {info['grid']} {info['block']} {info['lds']}\n")
    for e in errs: print("HAZARD",e)
    print("hazard errors:",len(errs))
if __name__=="__main__":
    if len(sys.argv)>2 and sys.argv[2]=="dbg": DBG=True
    build(sys.argv[1] if len(sys.argv)>1 else "cdna_kernels/"+NAME+".s")
```

```python
import sys, math, struct
from asm import Asm, check
NAME="gated_mix__mha_block__softmax_full_mha__prompt"
WS_KV=0; WS_O=8<<20; WS_FKV=16<<20; WS_FO=(16<<20)+65536; WS_DBG=17<<20; WS_END=(18<<20)
XB=2048*448*2; WB=448*1344*2; WOB=448*448*2
QSCALE=math.log2(math.e)/math.sqrt(28.0)
def f2u(f): return struct.unpack("<I",struct.pack("<f",f))[0]
import os
DBG=False
DMASC=os.environ.get('DMASC','sc1')
STSC=os.environ.get('STSC','sc1')
NST=12
P1DBG=os.environ.get('P1DBG','')
def stamp1(a,i):
    if DBG and P1DBG: a.e(f"s_memtime s[{72+2*i}:{73+2*i}]\ns_waitcnt lgkmcnt(0)")
def stamp(a,i):
    if P1DBG and i in (3,6,7,8,9): return
    if DBG: a.e(f"s_memtime s[{72+2*i}:{73+2*i}]\ns_waitcnt lgkmcnt(0)")
def stamp_rt(a,i):
    if DBG: a.e(f"s_memrealtime s[{72+2*i}:{73+2*i}]\ns_waitcnt lgkmcnt(0)")
def stamp_out(a,n,srdws,t0,tag):
    if not DBG: return
    a.e("s_cmp_lg_u32 s9, 0")
    a.e(f"s_cbranch_scc1 STMP{tag}_skip")
    a.e(f"s_lshl_b32 s70, s2, 6\ns_add_u32 s70, s70, {WS_DBG}")
    a.e(f"s_mov_b64 exec, 1\nv_mov_b32 v{t0+1}, 0")
    for i in range(n):
        a.e(f"v_mov_b32 v{t0}, s{72+2*i}")
        a.e(f"buffer_store_dword v{t0}, v{t0+1}, s[{srdws}:{srdws+3}], s70 offen offset:{4*i}")
        a.e("s_nop 1")
    a.e("s_mov_b64 exec, -1")
    a.label(f"STMP{tag}_skip")
def srd(a, d, lo, hi, size):
    a.e(f"s_mov_b32 s{d}, {lo}\ns_mov_b32 s{d+1}, {hi}\ns_mov_b32 s{d+2}, {size}\ns_mov_b32 s{d+3}, 0x20000")
R4=lambda r: f"v[{r}:{r+3}]"
R16=lambda r: f"v[{r}:{r+15}]"
MF="v_mfma_f32_32x32x16_bf16"

def fused(a):
    L="F"
    WLDS=0; XLDS=49152; GLDS=XLDS+8*12288; FLAG=GLDS+1024; RB=0; LDS_TOTAL=163840
    SX=40; SW=44; SG=48; SWS=52; SKV=36; SDB=12
    vLane=1; vL=2; vD=3; vGate=4
    vX=[10,11]; vXw=[22,23]; xs=128; vW=12; vG=13; vXr=[14,15,16,17]; vWr=[18,19]; vGr=20; vOnes=21
    xf=24; wf=[[40,44,48],[52,56,60]]; acc=[64,80,96]
    a.e(f"s_cmp_ge_u32 s2, 256\ns_cbranch_scc1 {L}_done")
    stamp(a,0); stamp_rt(a,1)
    a.e("""
    s_load_dwordx16 s[16:31], s[0:1], 0
    s_load_dwordx4 s[32:35], s[0:1], 64
    s_lshr_b32 s4, s2, 3
    s_bfe_u32 s7, s2, 0x10002
    s_bfe_u32 s3, s2, 0x10001
    s_lshl_b32 s3, s3, 3
    s_and_b32 s8, s4, 7
    s_add_u32 s8, s8, s3
    s_and_b32 s3, s2, 1
    s_lshl_b32 s3, s3, 2
    s_lshr_b32 s6, s4, 3
    s_add_u32 s6, s6, s3
    s_lshl_b32 s5, s7, 4
    s_add_u32 s5, s5, s8
    """)
    a.e(f"""
    v_and_b32 v{vLane}, 63, v0
    v_lshrrev_b32 v5, 6, v0
    v_lshrrev_b32 v6, 3, v{vLane}
    v_readfirstlane_b32 s9, v5
    v_and_b32 v7, 7, v{vLane}
    v_lshrrev_b32 v5, 4, v{vLane}
    v_xor_b32 v7, v7, v5
    v_mul_u32_u24 v6, 896, v6
    v_lshl_add_u32 v{vX[0]}, v7, 4, v6
    v_xor_b32 v{vX[1]}, 64, v{vX[0]}
    v_mul_u32_u24 v6, 43, v{vLane}
    v_lshrrev_b32 v6, 9, v6
    v_mul_u32_u24 v7, 12, v6
    v_sub_u32 v7, v{vLane}, v7
    v_lshrrev_b32 v5, 2, v7
    v_and_b32 v7, 3, v7
    v_mul_u32_u24 v6, 2688, v6
    v_mul_u32_u24 v5, 896, v5
    v_lshlrev_b32 v7, 4, v7
    v_add3_u32 v{vW}, v6, v7, v5
    v_lshlrev_b32 v{vL}, 4, v{vLane}
    v_lshlrev_b32 v{vD}, 4, v0
    v_and_b32 v6, 31, v{vLane}
    v_lshrrev_b32 v7, 5, v{vLane}
    v_bfe_u32 v5, v{vLane}, 1, 3
    v_xor_b32 v5, v5, v7
    v_lshlrev_b32 v5, 4, v5
    v_lshl_add_u32 v5, v6, 7, v5
    s_mul_i32 s57, s9, 12288
    s_add_u32 s57, s57, {XLDS}
    v_add_u32 v{vXr[0]}, s57, v5
    v_xor_b32 v{vXr[1]}, 32, v{vXr[0]}
    v_xor_b32 v{vXr[2]}, 64, v{vXr[0]}
    v_xor_b32 v{vXr[3]}, 96, v{vXr[0]}
    v_lshlrev_b32 v7, 4, v7
    v_add_u32 v{vGr}, {GLDS}, v7
    v_cmp_eq_u32 vcc, 28, v6
    v_mov_b32 v6, 0x3f803f80
    v_mov_b32 v7, 0
    v_cndmask_b32 v{vOnes}, v7, v6, vcc
    v_lshrrev_b32 v5, 4, v{vLane}
    v_and_b32 v6, 1, v5
    v_lshrrev_b32 v5, 1, v5
    v_bfe_u32 v7, v{vLane}, 2, 2
    v_lshl_add_u32 v5, v5, 3, v7
    v_mul_u32_u24 v5, 192, v5
    v_lshl_add_u32 v5, v6, 5, v5
    v_and_b32 v6, 3, v{vLane}
    v_lshl_add_u32 v{vWr[0]}, v6, 3, v5
    """)
    assert XLDS%128==0
    a.e("""
    s_lshl_b32 s10, s6, 3
    s_add_u32 s10, s10, s9
    s_mul_i32 s56, s10, 28672
    s_mul_i32 s58, s9, 10752
    s_mul_i32 s59, s8, 56
    s_add_u32 s58, s58, s59
    s_mul_i32 s59, s9, 768
    s_mov_b32 s60, 0x10000000
    s_mov_b32 s61, 0x10000000
    s_waitcnt lgkmcnt(0)
    s_cmp_eq_u32 s7, 0
    s_cselect_b32 s38, s18, s24
    s_cselect_b32 s39, s19, s25
    """)
    stamp(a,2)
    srd(a,SX,"s16","s17",XB); srd(a,SW,"s38","s39",WB); srd(a,SG,"s28","s29",896)
    a.e("""
    s_mov_b32 s0, -1
    s_mov_b32 s1, 0xffff
    s_mov_b32 s66, -1
    s_mov_b32 s67, 0xffffff
    """)
    def dmaX1(kc,j):
        slot=kc%3
        a.e(f"""
        s_add_u32 m0, s57, {slot*4096+j*1024}
        s_add_u32 s65, s56, {8*j*896+kc*128}
        buffer_load_dwordx4 v{vX[j&1]}, s[{SX}:{SX+3}], s65 offen lds
        """)
    def dmaW1(kc,i):
        a.e(f"""
        s_mov_b64 exec, s[0:1]
        s_add_u32 m0, s59, {WLDS+(kc%4)*12288+i*6144}
        s_add_u32 s65, s58, {(2*kc+i)*32*2688}
        buffer_load_dwordx4 v{vW}, s[{SW}:{SW+3}], s65 offen lds
        s_mov_b64 exec, -1
        """)
    def chunk_ops(kc):
        return [lambda j=j: dmaX1(kc,j) for j in range(4)]+[lambda i=i: dmaW1(kc,i) for i in range(2)]
    DEPTH=int(os.environ.get("P1DEPTH","2"))
    a.e(f"""
    s_mov_b64 exec, s[66:67]
    s_mov_b32 m0, {GLDS}
    s_nop 0
    buffer_load_dwordx4 v{vL}, s[{SG}:{SG+3}], 0 offen lds
    s_mov_b64 exec, -1
    """)
    for kc in range(DEPTH):
        for op in chunk_ops(kc): op()
        if kc<DEPTH-1: a.e("s_barrier")
    stamp1(a,3)
    srd(a,SWS,"s34","s35",WS_END); srd(a,SDB,"s32","s33",256)
    a.e(f"""
    s_or_b32 s3, s2, s9
    s_cmp_lg_u32 s3, 0
    s_cbranch_scc1 {L}_notag
    s_memrealtime s[70:71]
    s_waitcnt lgkmcnt(0)
    s_or_b32 s70, s70, 1
    v_mov_b32 v5, s70
    v_mov_b32 v6, 0
    s_mov_b64 exec, 1
    buffer_store_dword v5, v6, s[{SDB}:{SDB+3}], 0 offen sc1
    s_mov_b64 exec, -1
    """)
    a.label(f"{L}_notag")
    a.e("""
    s_lshl_b32 s3, s5, 18
    s_add_u32 s36, s34, s3
    s_addc_u32 s37, s35, 0
    s_mov_b32 s38, 0x40000
    s_mov_b32 s39, 0x20000
    """)
    for r in range(48): a.e(f"v_mov_b32 v{acc[0]+r}, 0")
    def wreads(ks,buf):
        o=((ks//4)%4)*12288+(ks%4)*3072
        for t in range(3):
            r=wf[buf][t]
            a.e(f"ds_read_b64_tr_b16 v[{r}:{r+1}], v{vWr[0]} offset:{o+t*64}")
            a.e(f"ds_read_b64_tr_b16 v[{r+2}:{r+3}], v{vWr[0]} offset:{o+t*64+768}")
        r=wf[buf][0]
        a.e(f"s_mov_b64 exec, s[60:61]\nds_read_b128 v[{r}:{r+3}], v{vGr} offset:{ks*32}\ns_mov_b64 exec, -1")
    for kc in range(7):
        a.e(f"s_waitcnt vmcnt({6*(min(kc+DEPTH,7)-kc-1)})")
        if kc in (0,1,3,6): stamp1(a,{0:6,1:7,3:8,6:9}[kc])
        if kc==6: a.e(f"v_mov_b32 v120, 0\nbuffer_load_dword v121, v120, s[{SDB}:{SDB+3}], 0 offen sc1")
        for kk in range(4):
            a.e(f"ds_read_b128 {R4(xf+4*kk)}, v{vXr[kk]} offset:{(kc%3)*4096}")
        a.e("s_waitcnt lgkmcnt(0)\ns_barrier")
        wreads(4*kc,0)
        ops=chunk_ops(kc+DEPTH) if kc+DEPTH<7 else []
        for kk in range(4):
            ks=4*kc+kk; buf=kk&1
            if kk<3:
                wreads(ks+1,buf^1); a.e("s_waitcnt lgkmcnt(7)")
            else: a.e("s_waitcnt lgkmcnt(0)")
            x=R4(xf+4*kk)
            for t in range(3):
                w=R4(wf[buf][t]); c=R16(acc[t])
                if t<2: a.e(f"{MF} {c}, {w}, {x}, {c}")
                else:   a.e(f"{MF} {c}, {x}, {w}, {c}")
            for _ in range((2,2,1,1)[kk]):
                if ops: ops.pop(0)()
    stamp(a,4)
    a.e(f"""
    s_lshl_b32 s11, s10, 12
    s_mov_b32 s67, {hex(f2u(QSCALE))}
    s_mov_b32 s68, 0
    s_mov_b32 s69, -1
    s_mov_b32 s70, 0xf0000000
    s_mov_b32 s71, 0xf0000000
    s_nop 7
    """)
    for t in (1,2):
        for i in range(8): a.e(f"v_cvt_pk_bf16_f32 v{acc[t]+i}, v{acc[t]+2*i}, v{acc[t]+2*i+1}")
    a.e(f"""
    s_mov_b64 exec, s[68:69]
    v_mov_b32 v{acc[1]+6}, 0x3f80
    v_mov_b32 v{acc[1]+7}, 0
    s_mov_b64 exec, s[70:71]
    """)
    for i in range(8): a.e(f"v_mov_b32 v{acc[2]+i}, v{vOnes}")
    a.e("s_mov_b64 exec, -1")
    a.e(f"s_lshl_b32 s3, s9, 12\nv_add_u32 v5, s3, v{vL}")
    for t in (1,2):
        for c in range(2):
            r=acc[t]+4*c
            a.e(f"buffer_store_dwordx4 {R4(r)}, v{vL}, s[{SKV}:{SKV+3}], s11 offen offset:{(t-1)*2048+c*1024} sc1")
    a.e("s_barrier")
    for t in (1,2):
        for c in range(2):
            r=acc[t]+4*c
            a.e(f"ds_write_b128 v5, {R4(r)} offset:{(t-1)*2048+c*1024}")
    a.e(f"""
    v_mul_f32 v6, {hex(f2u(-math.log2(math.e)))}, v{acc[0]+12}
    v_exp_f32 v6, v6
    s_nop 0
    v_add_f32 v6, 1.0, v6
    v_rcp_f32 v6, v6
    s_nop 0
    v_sub_f32 v7, 1.0, v6
    s_cmp_eq_u32 s7, 0
    s_cselect_b64 vcc, -1, 0
    v_cndmask_b32 v6, v7, v6, vcc
    v_mov_b32 v{vGate}, v6
    s_nop 1
    v_permlane32_swap_b32 v6, v{vGate}
    """)
    for r in range(16): a.e(f"v_mul_f32 v{acc[0]+r}, s67, v{acc[0]+r}")
    for i in range(8): a.e(f"v_cvt_pk_bf16_f32 v{acc[0]+i}, v{acc[0]+2*i}, v{acc[0]+2*i+1}")
    a.e(f"""
    s_mov_b64 exec, s[68:69]
    v_mov_b32 v{acc[0]+6}, 0
    v_mov_b32 v{acc[0]+7}, 0
    s_mov_b64 exec, -1
    """)
    q0=64; q1=68; S=[16,32]; P=48; O=104; kA=56; kB=60; vA=72; vB=76; vM=8; vR=9
    pos=lambda i: (i%16)*4096
    Ko=lambda tt,c: pos(tt)+c*1024
    Vo=lambda tt,c: pos(tt)+2048+c*1024
    rd=lambda r,off: a.e(f"ds_read_b128 {R4(r)}, v{vR} offset:{off}")
    a.e(f"""
    v_add_u32 v{vR}, {RB}, v{vL}
    s_lshl_b32 s57, s9, 10
    s_lshl_b32 s56, s6, 1
    s_mov_b32 s58, 2
    s_mov_b32 s66, 0x40000000
    """)
    def dma(slot):
        m1=slot*16384
        a.e(f"""
        s_add_u32 s59, s58, s56
        s_and_b32 s59, s59, 15
        s_lshl_b32 s59, s59, 14
        s_cmp_lt_u32 s58, 16
        s_cselect_b32 s59, s59, s66
        s_add_u32 m0, s57, {m1}
        s_add_u32 s58, s58, 1
        buffer_load_dwordx4 v{vD}, s[{SKV}:{SKV+3}], s59 offen {DMASC} lds
        s_add_u32 m0, s57, {m1+8192}
        s_add_u32 s59, s59, 8192
        buffer_load_dwordx4 v{vD}, s[{SKV}:{SKV+3}], s59 offen {DMASC} lds
        """)
    for r in range(16): a.e(f"v_mov_b32 v{O+r}, 0")
    for r in range(4): a.e(f"v_mov_b32 v{P+4+r}, 0\nv_mov_b32 v{vB+r}, 0")
    a.e(f"""
    v_mov_b32 v5, {FLAG}
    v_mov_b32 v6, 0
    ds_write_b32 v5, v6
    s_waitcnt lgkmcnt(0)
    s_barrier
    """)
    stamp(a,5)
    rd(kA,Ko(0,0)); rd(kB,Ko(0,1))
    a.e("s_waitcnt lgkmcnt(0)")
    a.e(f"{MF} {R16(S[0])}, {R4(kA)}, {R4(q0)}, 0")
    a.e(f"{MF} {R16(S[0])}, {R4(kB)}, {R4(q1)}, {R16(S[0])}")
    rd(kA,Ko(1,0)); rd(kB,Ko(1,1)); rd(vA,Vo(0,0))
    a.e("s_nop 7\ns_nop 3")
    s0=S[0]
    a.e(f"v_max3_f32 v{vM}, v{s0}, v{s0+1}, v{s0+2}")
    for i in range(3,15,2): a.e(f"v_max3_f32 v{vM}, v{vM}, v{s0+i}, v{s0+i+1}")
    a.e(f"""
    v_max_f32 v{vM}, v{vM}, v{s0+15}
    v_mov_b32 v5, v{vM}
    s_nop 0
    v_mov_b32 v6, v{vM}
    s_nop 1
    v_permlane32_swap_b32 v5, v6
    s_nop 1
    v_max_f32 v{vM}, v5, v6
    v_and_b32 v{vM}, 0xffff0000, v{vM}
    v_lshrrev_b32 v5, 16, v{vM}
    v_xor_b32 v5, 0x8000, v5
    s_mov_b64 exec, s[68:69]
    v_mov_b32 v{q1+2}, v5
    s_mov_b64 exec, -1
    """)
    for r in range(16): a.e(f"v_sub_f32 v{s0+r}, v{s0+r}, v{vM}")
    a.e("s_waitcnt lgkmcnt(0)")
    a.e("s_mov_b32 s60, 4")
    a.e(f"""
    v_lshlrev_b32 v10, 7, v{vLane}
    s_lshl_b32 s61, s5, 10
    s_add_u32 s61, s61, {WS_FKV}
    """)
    def gettag():
        a.label(f"{L}_tag")
        a.e(f"""
        v_readfirstlane_b32 s71, v121
        s_nop 3
        s_cmp_lg_u32 s71, 0
        s_cbranch_scc1 {L}_tagok
        s_sleep 2
        buffer_load_dword v121, v120, s[{SDB}:{SDB+3}], 0 offen sc1
        s_waitcnt vmcnt(0)
        s_branch {L}_tag
        """)
        a.label(f"{L}_tagok")
    def poll(soff,mask_lo,tag):
        a.e(f"s_mov_b32 exec_lo, {mask_lo}\ns_mov_b32 exec_hi, 0")
        a.label(f"{L}_poll{tag}")
        a.e(f"""
        buffer_load_dword v12, v10, s[{SWS}:{SWS+3}], {soff} offen sc1
        s_waitcnt vmcnt(0)
        v_cmp_ne_u32 vcc, s71, v12
        s_nop 1
        s_cmp_eq_u64 vcc, 0
        s_cbranch_scc1 {L}_pdone{tag}
        s_sleep 2
        s_branch {L}_poll{tag}
        """)
        a.label(f"{L}_pdone{tag}")
        a.e("s_mov_b64 exec, -1")
    def signal(soff,tag):
        a.e(f"""
        s_cmp_lg_u32 s9, 0
        s_cbranch_scc1 {L}_nosig{tag}
        v_mov_b32 v12, s71
        s_mov_b64 exec, 1
        buffer_store_dword v12, v120, s[{SWS}:{SWS+3}], {soff} offen sc1
        s_mov_b64 exec, -1
        """)
        a.label(f"{L}_nosig{tag}")
    a.raw(".p2align 6")
    a.label(f"{L}_loop")
    body_start=len(a.lines)
    for tt in range(16):
        sc=S[tt%2]; sn=S[(tt+1)%2]
        if tt==2:
            a.e(f"s_cmp_eq_u32 s60, 4\ns_cbranch_scc0 {L}_b1")
            a.e("s_waitcnt vmcnt(0)\ns_barrier")
            gettag()
            a.e("s_lshl_b32 s3, s6, 7\ns_add_u32 s3, s3, s61")
            signal("s3","kv")
            a.e(f"s_branch {L}_b1x")
            a.label(f"{L}_b1")
            a.e("s_waitcnt vmcnt(2)\ns_barrier")
            dma(3)
            a.label(f"{L}_b1x")
        elif tt%4==2:
            a.e("s_waitcnt vmcnt(2)\ns_barrier")
            dma((tt//4+3)%4)
        if tt==4:
            a.e(f"s_cmp_eq_u32 s60, 4\ns_cbranch_scc0 {L}_np")
            poll("s61","0xff","kv")
            stamp(a,3)
            dma(2); dma(3)
            a.label(f"{L}_np")
        a.e(f"s_setprio {(3,2,1,0)[(tt-2)%4]}")
        def grp(g,regp):
            for j in range(4): a.e(f"v_exp_f32 v{sc+4*g+j}, v{sc+4*g+j}")
            a.e(f"v_cvt_pk_bf16_f32 v{regp}, v{sc+4*g}, v{sc+4*g+1}")
            a.e(f"v_cvt_pk_bf16_f32 v{regp+1}, v{sc+4*g+2}, v{sc+4*g+3}")
        a.e("s_waitcnt lgkmcnt(3)")
        a.e(f"{MF} {R16(sn)}, {R4(kA)}, {R4(q0)}, 0")
        rd(kA,Ko(tt+2,0))
        grp(0,P)
        a.e("s_waitcnt lgkmcnt(3)")
        a.e(f"{MF} {R16(sn)}, {R4(kB)}, {R4(q1)}, {R16(sn)}")
        rd(kB,Ko(tt+2,1))
        grp(1,P+2)
        a.e("s_waitcnt lgkmcnt(3)")
        a.e(f"{MF} {R16(O)}, {R4(vB)}, {R4(P+4)}, {R16(O)}")
        rd(vB,Vo(tt,1))
        grp(2,P+4)
        a.e("s_waitcnt lgkmcnt(3)")
        a.e(f"{MF} {R16(O)}, {R4(vA)}, {R4(P)}, {R16(O)}")
        rd(vA,Vo(tt+1,0))
        grp(3,P+6)
    a.e(f"s_sub_u32 s60, s60, 1\ns_cmp_lg_u32 s60, 0\ns_cbranch_scc1 {L}_loop")
    body_end=len(a.lines)
    a.e("s_setprio 0\ns_waitcnt lgkmcnt(0)")
    stamp(a,6)
    a.e(f"{MF} {R16(O)}, {R4(vB)}, {R4(P+4)}, {R16(O)}")
    a.e("s_nop 15")
    def lsum():
        a.e(f"v_mov_b32 v5, v{O+12}\nv_mov_b32 v6, v{O+12}\ns_nop 1\nv_permlane32_swap_b32 v5, v6")
    lsum()
    a.e(f"v_mul_f32 v7, 0, v{O}")
    for r in range(1,16): a.e(f"v_fmac_f32 v7, 0, v{O+r}")
    a.e(f"""
    v_cmp_u_f32 vcc, v7, v7
    s_nop 0
    s_mov_b64 s[62:63], vcc
    v_cmp_nle_f32 vcc, 0x35800000, v6
    s_nop 0
    s_or_b64 s[62:63], s[62:63], vcc
    v_cmp_nge_f32 vcc, 0x4e800000, v6
    s_nop 0
    s_or_b64 s[62:63], s[62:63], vcc
    v_mov_b32 v5, {FLAG}
    v_mov_b32 v7, 1
    s_cmp_eq_u64 s[62:63], 0
    s_cbranch_scc1 {L}_ok
    ds_write_b32 v5, v7
    """)
    a.label(f"{L}_ok")
    a.e(f"""
    s_waitcnt vmcnt(0) lgkmcnt(0)
    s_barrier
    ds_read_b32 v7, v5
    s_waitcnt lgkmcnt(0)
    v_readfirstlane_b32 s61, v7
    s_nop 3
    s_cmp_lg_u32 s61, 0
    s_cbranch_scc1 {L}_slow
    """)
    a.label(f"{L}_final")
    lsum()
    a.e(f"""
    v_rcp_f32 v6, v6
    s_nop 0
    v_mul_f32 v6, v6, v{vGate}
    """)
    for r in range(16): a.e(f"v_mul_f32 v{O+r}, v{O+r}, v6")
    for i in range(8): a.e(f"v_cvt_pk_bf16_f32 v{O+i}, v{O+2*i}, v{O+2*i+1}")
    a.e(f"""
    s_lshl_b32 s11, s5, 17
    s_lshl_b32 s3, s10, 11
    s_add_u32 s11, s11, s3
    s_add_u32 s11, s11, {WS_O}
    s_mov_b64 exec, s[68:69]
    v_mov_b32 v{O+6}, 0
    v_mov_b32 v{O+7}, 0
    s_mov_b64 exec, -1
    s_lshl_b32 s61, s6, 12
    s_add_u32 s61, s61, {WS_FO}
    s_lshl_b32 s3, s5, 7
    s_add_u32 s3, s3, s61
    buffer_store_dwordx4 {R4(O)}, v{vL}, s[{SWS}:{SWS+3}], s11 offen sc1
    buffer_store_dwordx4 {R4(O+4)}, v{vL}, s[{SWS}:{SWS+3}], s11 offen offset:1024 sc1
    s_waitcnt vmcnt(0)
    s_barrier
    """)
    signal("s3","o")
    a.e("s_mov_b32 s59, s61")
    stamp(a,7)
    a.e(f"s_cmp_ge_u32 s5, 28\ns_cbranch_scc1 {L}_end")
    of=16; wfo=[[80,84],[88,92]]; acc3=[96,112]; vA3=[14,15]; vD3=13
    SWA=40; SWB=44; SO=48
    a.e(f"""
    s_mul_i32 s3, s5, 37
    s_lshr_b32 s4, s3, 8
    s_mul_i32 s3, s4, 7
    s_sub_u32 s3, s5, s3
    s_lshl_b32 s11, s6, 2
    s_add_u32 s4, s4, s11
    v_lshrrev_b32 v6, 3, v{vLane}
    v_mul_u32_u24 v6, 896, v6
    v_and_b32 v7, 7, v{vLane}
    v_bfe_u32 v5, v{vLane}, 4, 1
    v_lshlrev_b32 v5, 2, v5
    v_xor_b32 v7, v7, v5
    v_lshl_add_u32 v{vD3}, v7, 4, v6
    s_and_b32 s60, s9, 1
    s_lshr_b32 s61, s9, 1
    """)
    srd(a,SWA,"s20","s21",WOB); srd(a,SWB,"s26","s27",WOB); srd(a,SO,"s30","s31",XB)
    a.e(f"""
    s_mul_i32 s62, s9, {8*896}
    s_lshl_b32 s63, s3, 7
    s_add_u32 s62, s62, s63
    s_lshl_b32 s57, s9, 10
    """)
    for b,sw in ((0,SWA),(1,SWB)):
        for i in range(8):
            a.e(f"""
            s_add_u32 m0, s57, {b*65536+i*8192}
            s_add_u32 s63, s62, {i*64*896}
            buffer_load_dwordx4 v{vD3}, s[{sw}:{sw+3}], s63 offen lds
            """)
    a.e(f"""
    v_lshrrev_b32 v6, 4, v{vLane}
    v_and_b32 v7, 1, v6
    v_lshrrev_b32 v6, 1, v6
    v_bfe_u32 v5, v{vLane}, 2, 2
    v_lshl_add_u32 v6, v6, 2, v5
    v_lshlrev_b32 v6, 7, v6
    v_lshrrev_b32 v5, 1, v5
    v_lshl_add_u32 v6, v5, 6, v6
    v_lshl_add_u32 v6, v7, 5, v6
    v_and_b32 v7, 3, v{vLane}
    v_lshl_add_u32 v6, v7, 3, v6
    s_lshr_b32 s62, s61, 1
    s_lshl_b32 s62, s62, 16
    s_and_b32 s63, s61, 1
    s_mul_i32 s63, s63, {8*28*128}
    s_add_u32 s62, s62, s63
    v_add_u32 v{vA3[0]}, s62, v6
    v_xor_b32 v{vA3[1]}, 64, v{vA3[0]}
    s_lshl_b32 s62, s4, 1
    s_add_u32 s62, s62, s60
    s_lshl_b32 s62, s62, 11
    s_lshl_b32 s63, s61, 20
    s_add_u32 s62, s62, s63
    s_add_u32 s62, s62, {WS_O}
    """)
    for r in range(32): a.e(f"v_mov_b32 v{acc3[0]+r}, 0")
    a.e(f"s_waitcnt vmcnt(0)\ns_cmp_lg_u32 s9, 0\ns_cbranch_scc1 {L}_nopoll")
    poll("s59","-1","o")
    a.label(f"{L}_nopoll")
    a.e("s_barrier")
    stamp(a,8)
    for i in range(8):
        a.e(f"s_add_u32 s63, s62, {i*131072}")
        for c in range(2):
            a.e(f"buffer_load_dwordx4 {R4(of+8*i+4*c)}, v{vL}, s[{SWS}:{SWS+3}], s63 offen offset:{c*1024} sc1")
    def wr(step,buf):
        i,c=step//2,step%2
        o=(i*28+16*c)*128
        for nt in range(2):
            r=wfo[buf][nt]
            a.e(f"ds_read_b64_tr_b16 v[{r}:{r+1}], v{vA3[nt]} offset:{o}")
            a.e(f"ds_read_b64_tr_b16 v[{r+2}:{r+3}], v{vA3[nt]} offset:{o+1024}")
    wr(0,0)
    for step in range(16):
        buf=step&1
        if step<15:
            wr(step+1,buf^1); a.e(f"s_waitcnt vmcnt({15-step}) lgkmcnt(4)")
        else: a.e("s_waitcnt vmcnt(0) lgkmcnt(0)")
        i,c=step//2,step%2
        for nt in range(2):
            cc=R16(acc3[nt])
            a.e(f"{MF} {cc}, {R4(wfo[buf][nt])}, {R4(of+8*i+4*c)}, {cc}")
    a.e("s_nop 15\ns_barrier")
    stamp(a,9)
    a.e(f"s_lshl_b32 s62, s9, 13\nv_add_u32 v6, s62, v{vL}")
    for nt in range(2):
        for g in range(4):
            a.e(f"ds_write_b128 v6, {R4(acc3[nt]+4*g)} offset:{nt*4096+g*1024}")
    a.e(f"""
    s_waitcnt lgkmcnt(0)
    s_barrier
    s_lshr_b32 s61, s9, 1
    s_and_b32 s61, s61, 1
    s_lshr_b32 s56, s9, 2
    s_lshl_b32 s62, s60, 13
    s_lshl_b32 s63, s61, 12
    s_add_u32 s62, s62, s63
    s_lshl_b32 s63, s56, 11
    s_add_u32 s62, s62, s63
    v_add_u32 v6, s62, v{vL}
    """)
    for kq in range(4):
        if kq==2: a.e(f"v_add_u32 v6, {4*8192}, v6")
        for g in range(2):
            a.e(f"ds_read_b128 {R4(16+kq*8+g*4)}, v6 offset:{(kq&1)*16384+g*1024}")
    a.e("s_waitcnt lgkmcnt(0)")
    for k in range(8):
        a.e(f"v_add_f32 v{16+k}, v{16+k}, v{24+k}")
        a.e(f"v_add_f32 v{32+k}, v{32+k}, v{40+k}")
    for k in range(8): a.e(f"v_add_f32 v{16+k}, v{16+k}, v{32+k}")
    a.e(f"""
    v_cvt_pk_bf16_f32 v48, v16, v17
    v_cvt_pk_bf16_f32 v49, v18, v19
    v_cvt_pk_bf16_f32 v50, v20, v21
    v_cvt_pk_bf16_f32 v51, v22, v23
    v_and_b32 v6, 31, v{vLane}
    v_lshrrev_b32 v7, 5, v{vLane}
    v_permlane32_swap_b32 v48, v50
    v_permlane32_swap_b32 v49, v51
    v_mul_u32_u24 v6, 896, v6
    v_lshl_add_u32 v6, v7, 4, v6
    s_lshl_b32 s62, s4, 1
    s_add_u32 s62, s62, s60
    s_mul_i32 s62, s62, {32*896}
    s_lshl_b32 s63, s3, 7
    s_add_u32 s62, s62, s63
    s_lshl_b32 s63, s61, 6
    s_add_u32 s62, s62, s63
    s_lshl_b32 s63, s56, 5
    s_add_u32 s62, s62, s63
    buffer_store_dwordx4 v[48:51], v6, s[{SO}:{SO+3}], s62 offen
    """)
    a.label(f"{L}_end")
    if DBG:
        a.e("s_waitcnt vmcnt(0)"); stamp(a,10); stamp_rt(a,11); stamp_out(a,12,SWS,60,"f")
    a.label(f"{L}_done")
    a.e("s_endpgm")
    a.label(f"{L}_slow")
    a.e(f"""
    s_mov_b64 exec, s[68:69]
    v_mov_b32 v{q1+2}, 0
    s_mov_b64 exec, -1
    v_mov_b32 v{vM}, 0xff800000
    s_mov_b32 s58, 0
    s_mov_b32 s60, 16
    """)
    for r in range(16): a.e(f"v_mov_b32 v{O+r}, 0")
    a.label(f"{L}_sloop")
    sl0=len(a.lines)
    dma(0)
    a.e("s_waitcnt vmcnt(0)\ns_barrier")
    sc=S[0]
    for i in range(4):
        rd(kA,Ko(i,0)); rd(kB,Ko(i,1)); rd(vA,Vo(i,0)); rd(vB,Vo(i,1))
        a.e("s_waitcnt lgkmcnt(0)")
        a.e(f"{MF} {R16(sc)}, {R4(kA)}, {R4(q0)}, 0")
        a.e(f"{MF} {R16(sc)}, {R4(kB)}, {R4(q1)}, {R16(sc)}")
        a.e("s_nop 15")
        a.e(f"v_max3_f32 v5, v{sc}, v{sc+1}, v{sc+2}")
        for k in range(3,15,2): a.e(f"v_max3_f32 v5, v5, v{sc+k}, v{sc+k+1}")
        a.e(f"""
        v_max_f32 v5, v5, v{sc+15}
        s_nop 0
        v_mov_b32 v6, v5
        s_nop 1
        v_permlane32_swap_b32 v5, v6
        s_nop 1
        v_max3_f32 v5, v5, v6, v{vM}
        v_sub_f32 v6, v{vM}, v5
        v_exp_f32 v6, v6
        v_mov_b32 v{vM}, v5
        """)
        for r in range(16): a.e(f"v_sub_f32 v{sc+r}, v{sc+r}, v5")
        for r in range(16): a.e(f"v_exp_f32 v{sc+r}, v{sc+r}")
        for r in range(16): a.e(f"v_mul_f32 v{O+r}, v{O+r}, v6")
        for k in range(8): a.e(f"v_cvt_pk_bf16_f32 v{P+k}, v{sc+2*k}, v{sc+2*k+1}")
        a.e("s_nop 1")
        a.e(f"{MF} {R16(O)}, {R4(vA)}, {R4(P)}, {R16(O)}")
        a.e(f"{MF} {R16(O)}, {R4(vB)}, {R4(P+4)}, {R16(O)}")
        a.e("s_nop 15")
    a.e(f"""
    s_barrier
    s_sub_u32 s60, s60, 1
    s_cmp_lg_u32 s60, 0
    s_cbranch_scc1 {L}_sloop
    s_branch {L}_final
    """)
    a.loops=[(body_start,body_end),(sl0,len(a.lines))]
    return dict(vgpr=128,sgpr=(100 if DBG else 72),lds=LDS_TOTAL,grid=256,block=512)

HDR=open("cdna_kernels/"+NAME+".s.ref").read().split("; Override")[0]
def build(path):
    name=NAME+"_kernel"
    a=Asm(); info=fused(a)
    errs=check(a.lines,name)
    for (s,e) in a.loops: errs+=check(a.lines[s:e]+a.lines[s:e],name+"-loop")
    t=HDR+f"; @launch grid=({info['grid']},1,1) block=({info['block']},1,1) lds={info['lds']}\n"
    t+='.amdgcn_target "amdgcn-amd-amdhsa--gfx950"\n.text\n'
    t+=f".globl {name}\n.p2align 8\n.type {name},@function\n{name}:\n"+a.text()
    t+=f""".section .rodata,"a"
.p2align 6
.amdhsa_kernel {name}
  .amdhsa_next_free_vgpr {info['vgpr']}
  .amdhsa_next_free_sgpr {info['sgpr']}
  .amdhsa_accum_offset {info['vgpr']}
  .amdhsa_group_segment_fixed_size 0
  .amdhsa_kernarg_size 80
  .amdhsa_user_sgpr_count 2
  .amdhsa_user_sgpr_kernarg_segment_ptr 1
  .amdhsa_system_sgpr_workgroup_id_x 1
.end_amdhsa_kernel
"""
    open(path,"w").write(t)
    open("launch.txt","w").write(f"{name} {info['grid']} {info['block']} {info['lds']}\n")
    for e in errs: print("HAZARD",e)
    print("hazard errors:",len(errs))
if __name__=="__main__":
    if len(sys.argv)>2 and sys.argv[2]=="dbg": DBG=True
    build(sys.argv[1] if len(sys.argv)>1 else "cdna_kernels/"+NAME+".s")
```

```python
import sys, math, struct
from asm import Asm, check
NAME="gated_mix__mha_block__softmax_full_mha__prompt"
WS_KV=0; WS_O=8<<20; WS_FKV=16<<20; WS_FO=(16<<20)+65536; WS_DBG=17<<20; WS_END=(18<<20)
XB=2048*448*2; WB=448*1344*2; WOB=448*448*2
QSCALE=math.log2(math.e)/math.sqrt(28.0)
def f2u(f): return struct.unpack("<I",struct.pack("<f",f))[0]
import os
DBG=False
DMASC=os.environ.get('DMASC','sc1')
STSC=os.environ.get('STSC','sc1')
NST=12
P1DBG=os.environ.get('P1DBG','')
def stamp1(a,i):
    if DBG and P1DBG: a.e(f"s_memtime s[{72+2*i}:{73+2*i}]\ns_waitcnt lgkmcnt(0)")
def stamp(a,i):
    if P1DBG and i in (3,6,7,8,9): return
    if DBG: a.e(f"s_memtime s[{72+2*i}:{73+2*i}]\ns_waitcnt lgkmcnt(0)")
def stamp_rt(a,i):
    if DBG: a.e(f"s_memrealtime s[{72+2*i}:{73+2*i}]\ns_waitcnt lgkmcnt(0)")
def stamp_out(a,n,srdws,t0,tag):
    if not DBG: return
    a.e("s_cmp_lg_u32 s9, 0")
    a.e(f"s_cbranch_scc1 STMP{tag}_skip")
    a.e(f"s_lshl_b32 s70, s2, 6\ns_add_u32 s70, s70, {WS_DBG}")
    a.e(f"s_mov_b64 exec, 1\nv_mov_b32 v{t0+1}, 0")
    for i in range(n):
        a.e(f"v_mov_b32 v{t0}, s{72+2*i}")
        a.e(f"buffer_store_dword v{t0}, v{t0+1}, s[{srdws}:{srdws+3}], s70 offen offset:{4*i}")
        a.e("s_nop 1")
    a.e("s_mov_b64 exec, -1")
    a.label(f"STMP{tag}_skip")
def stamp_dbg(a,n,sdb,t0):
    if not (DBG and os.environ.get('TODBG')): return
    wg=int(os.environ['TODBG'])
    a.e(f"s_cmp_lg_u32 s9, 0\ns_cbranch_scc1 SDBG_skip\ns_cmp_lg_u32 s2, {wg}\ns_cbranch_scc1 SDBG_skip")
    a.e(f"s_mov_b64 exec, 1\nv_mov_b32 v{t0+1}, 0")
    for i in range(2,n):
        if i==11: a.e(f"s_sub_u32 s70, s{72+2*i}, s74")
        else: a.e(f"s_sub_u32 s70, s{72+2*i}, s72")
        a.e(f"v_mov_b32 v{t0}, s70")
        a.e(f"buffer_store_dword v{t0}, v{t0+1}, s[{sdb}:{sdb+3}], 0 offen offset:{4*(i-1)}")
        a.e("s_nop 1")
    a.e("s_mov_b64 exec, -1")
    a.label("SDBG_skip")
def srd(a, d, lo, hi, size):
    a.e(f"s_mov_b32 s{d}, {lo}\ns_mov_b32 s{d+1}, {hi}\ns_mov_b32 s{d+2}, {size}\ns_mov_b32 s{d+3}, 0x20000")
R4=lambda r: f"v[{r}:{r+3}]"
R16=lambda r: f"v[{r}:{r+15}]"
MF="v_mfma_f32_32x32x16_bf16"

def fused(a):
    L="F"
    WLDS=0; XLDS=49152; GLDS=XLDS+8*12288; FLAG=GLDS+1024; RB=0; LDS_TOTAL=163840
    SX=40; SW=44; SG=48; SWS=52; SKV=36; SDB=12
    vLane=1; vL=2; vD=3; vGate=4
    vX=[10,11]; vXw=[22,23]; xs=128; vW=12; vG=13; vXr=[14,15,16,17]; vWr=[18,19]; vGr=20; vOnes=21
    xf=24; wf=[[40,44,48],[52,56,60]]; acc=[64,80,96]
    a.e(f"s_cmp_ge_u32 s2, 256\ns_cbranch_scc1 {L}_done")
    stamp(a,0); stamp_rt(a,1)
    a.e("""
    s_load_dwordx16 s[16:31], s[0:1], 0
    s_load_dwordx4 s[32:35], s[0:1], 64
    s_lshr_b32 s4, s2, 3
    s_bfe_u32 s7, s2, 0x10002
    s_bfe_u32 s3, s2, 0x10001
    s_lshl_b32 s3, s3, 3
    s_and_b32 s8, s4, 7
    s_add_u32 s8, s8, s3
    s_and_b32 s3, s2, 1
    s_lshl_b32 s3, s3, 2
    s_lshr_b32 s6, s4, 3
    s_add_u32 s6, s6, s3
    s_lshl_b32 s5, s7, 4
    s_add_u32 s5, s5, s8
    """)
    a.e(f"""
    v_and_b32 v{vLane}, 63, v0
    v_lshrrev_b32 v5, 6, v0
    v_lshrrev_b32 v6, 3, v{vLane}
    v_readfirstlane_b32 s9, v5
    v_and_b32 v7, 7, v{vLane}
    v_lshrrev_b32 v5, 4, v{vLane}
    v_xor_b32 v7, v7, v5
    v_mul_u32_u24 v6, 896, v6
    v_lshl_add_u32 v{vX[0]}, v7, 4, v6
    v_xor_b32 v{vX[1]}, 64, v{vX[0]}
    v_mul_u32_u24 v6, 43, v{vLane}
    v_lshrrev_b32 v6, 9, v6
    v_mul_u32_u24 v7, 12, v6
    v_sub_u32 v7, v{vLane}, v7
    v_lshrrev_b32 v5, 2, v7
    v_and_b32 v7, 3, v7
    v_mul_u32_u24 v6, 2688, v6
    v_mul_u32_u24 v5, 896, v5
    v_lshlrev_b32 v7, 4, v7
    v_add3_u32 v{vW}, v6, v7, v5
    v_lshlrev_b32 v{vL}, 4, v{vLane}
    v_lshlrev_b32 v{vD}, 4, v0
    v_and_b32 v6, 31, v{vLane}
    v_lshrrev_b32 v7, 5, v{vLane}
    v_bfe_u32 v5, v{vLane}, 1, 3
    v_xor_b32 v5, v5, v7
    v_lshlrev_b32 v5, 4, v5
    v_lshl_add_u32 v5, v6, 7, v5
    s_mul_i32 s57, s9, 12288
    s_add_u32 s57, s57, {XLDS}
    v_add_u32 v{vXr[0]}, s57, v5
    v_xor_b32 v{vXr[1]}, 32, v{vXr[0]}
    v_xor_b32 v{vXr[2]}, 64, v{vXr[0]}
    v_xor_b32 v{vXr[3]}, 96, v{vXr[0]}
    v_lshlrev_b32 v7, 4, v7
    v_add_u32 v{vGr}, {GLDS}, v7
    v_cmp_eq_u32 vcc, 28, v6
    v_mov_b32 v6, 0x3f803f80
    v_mov_b32 v7, 0
    v_cndmask_b32 v{vOnes}, v7, v6, vcc
    v_lshrrev_b32 v5, 4, v{vLane}
    v_and_b32 v6, 1, v5
    v_lshrrev_b32 v5, 1, v5
    v_bfe_u32 v7, v{vLane}, 2, 2
    v_lshl_add_u32 v5, v5, 3, v7
    v_mul_u32_u24 v5, 192, v5
    v_lshl_add_u32 v5, v6, 5, v5
    v_and_b32 v6, 3, v{vLane}
    v_lshl_add_u32 v{vWr[0]}, v6, 3, v5
    """)
    assert XLDS%128==0
    a.e("""
    s_lshl_b32 s10, s6, 3
    s_add_u32 s10, s10, s9
    s_mul_i32 s56, s10, 28672
    s_mul_i32 s58, s9, 10752
    s_mul_i32 s59, s8, 56
    s_add_u32 s58, s58, s59
    s_mul_i32 s59, s9, 768
    s_mov_b32 s60, 0x10000000
    s_mov_b32 s61, 0x10000000
    s_waitcnt lgkmcnt(0)
    s_cmp_eq_u32 s7, 0
    s_cselect_b32 s38, s18, s24
    s_cselect_b32 s39, s19, s25
    """)
    stamp(a,2)
    srd(a,SX,"s16","s17",XB); srd(a,SW,"s38","s39",WB); srd(a,SG,"s28","s29",896)
    a.e("""
    s_mov_b32 s0, -1
    s_mov_b32 s1, 0xffff
    s_mov_b32 s66, -1
    s_mov_b32 s67, 0xffffff
    """)
    def dmaX1(kc,j):
        slot=kc%3
        a.e(f"""
        s_add_u32 m0, s57, {slot*4096+j*1024}
        s_add_u32 s65, s56, {8*j*896+kc*128}
        buffer_load_dwordx4 v{vX[j&1]}, s[{SX}:{SX+3}], s65 offen lds
        """)
    def dmaW1(kc,i):
        a.e(f"""
        s_mov_b64 exec, s[0:1]
        s_add_u32 m0, s59, {WLDS+(kc%4)*12288+i*6144}
        s_add_u32 s65, s58, {(2*kc+i)*32*2688}
        buffer_load_dwordx4 v{vW}, s[{SW}:{SW+3}], s65 offen lds
        s_mov_b64 exec, -1
        """)
    def chunk_ops(kc):
        return [lambda j=j: dmaX1(kc,j) for j in range(4)]+[lambda i=i: dmaW1(kc,i) for i in range(2)]
    DEPTH=int(os.environ.get("P1DEPTH","2"))
    a.e(f"""
    s_mov_b64 exec, s[66:67]
    s_mov_b32 m0, {GLDS}
    s_nop 0
    buffer_load_dwordx4 v{vL}, s[{SG}:{SG+3}], 0 offen lds
    s_mov_b64 exec, -1
    """)
    for kc in range(DEPTH):
        for op in chunk_ops(kc): op()
        if kc<DEPTH-1: a.e("s_barrier")
    stamp1(a,3)
    srd(a,SWS,"s34","s35",WS_END); srd(a,SDB,"s32","s33",256)
    a.e(f"""
    s_or_b32 s3, s2, s9
    s_cmp_lg_u32 s3, 0
    s_cbranch_scc1 {L}_notag
    s_memrealtime s[70:71]
    s_waitcnt lgkmcnt(0)
    s_or_b32 s70, s70, 1
    v_mov_b32 v5, s70
    v_mov_b32 v6, 0
    s_mov_b64 exec, 1
    buffer_store_dword v5, v6, s[{SDB}:{SDB+3}], 0 offen sc1
    s_mov_b64 exec, -1
    """)
    a.label(f"{L}_notag")
    a.e("""
    s_lshl_b32 s3, s5, 18
    s_add_u32 s36, s34, s3
    s_addc_u32 s37, s35, 0
    s_mov_b32 s38, 0x40000
    s_mov_b32 s39, 0x20000
    """)
    for r in range(48): a.e(f"v_mov_b32 v{acc[0]+r}, 0")
    def wreads(ks,buf):
        o=((ks//4)%4)*12288+(ks%4)*3072
        for t in range(3):
            r=wf[buf][t]
            a.e(f"ds_read_b64_tr_b16 v[{r}:{r+1}], v{vWr[0]} offset:{o+t*64}")
            a.e(f"ds_read_b64_tr_b16 v[{r+2}:{r+3}], v{vWr[0]} offset:{o+t*64+768}")
        r=wf[buf][0]
        a.e(f"s_mov_b64 exec, s[60:61]\nds_read_b128 v[{r}:{r+3}], v{vGr} offset:{ks*32}\ns_mov_b64 exec, -1")
    for kc in range(7):
        a.e(f"s_waitcnt vmcnt({6*(min(kc+DEPTH,7)-kc-1)})")
        if kc in (0,1,3,6): stamp1(a,{0:6,1:7,3:8,6:9}[kc])
        if kc==6: a.e(f"v_mov_b32 v120, 0\nbuffer_load_dword v121, v120, s[{SDB}:{SDB+3}], 0 offen sc1")
        for kk in range(4):
            a.e(f"ds_read_b128 {R4(xf+4*kk)}, v{vXr[kk]} offset:{(kc%3)*4096}")
        a.e("s_waitcnt lgkmcnt(0)\ns_barrier")
        wreads(4*kc,0)
        ops=chunk_ops(kc+DEPTH) if kc+DEPTH<7 else []
        for kk in range(4):
            ks=4*kc+kk; buf=kk&1
            if kk<3:
                wreads(ks+1,buf^1); a.e("s_waitcnt lgkmcnt(7)")
            else: a.e("s_waitcnt lgkmcnt(0)")
            x=R4(xf+4*kk)
            for t in range(3):
                w=R4(wf[buf][t]); c=R16(acc[t])
                if t<2: a.e(f"{MF} {c}, {w}, {x}, {c}")
                else:   a.e(f"{MF} {c}, {x}, {w}, {c}")
            for _ in range((2,2,1,1)[kk]):
                if ops: ops.pop(0)()
    stamp(a,4)
    a.e(f"""
    s_lshl_b32 s11, s10, 12
    s_mov_b32 s67, {hex(f2u(QSCALE))}
    s_mov_b32 s68, 0
    s_mov_b32 s69, -1
    s_mov_b32 s70, 0xf0000000
    s_mov_b32 s71, 0xf0000000
    s_nop 7
    """)
    for t in (1,2):
        for i in range(8): a.e(f"v_cvt_pk_bf16_f32 v{acc[t]+i}, v{acc[t]+2*i}, v{acc[t]+2*i+1}")
    a.e(f"""
    s_mov_b64 exec, s[68:69]
    v_mov_b32 v{acc[1]+6}, 0x3f80
    v_mov_b32 v{acc[1]+7}, 0
    s_mov_b64 exec, s[70:71]
    """)
    for i in range(8): a.e(f"v_mov_b32 v{acc[2]+i}, v{vOnes}")
    a.e("s_mov_b64 exec, -1")
    a.e(f"s_lshl_b32 s3, s9, 12\nv_add_u32 v5, s3, v{vL}")
    for t in (1,2):
        for c in range(2):
            r=acc[t]+4*c
            a.e(f"buffer_store_dwordx4 {R4(r)}, v{vL}, s[{SKV}:{SKV+3}], s11 offen offset:{(t-1)*2048+c*1024} sc1")
    a.e("s_barrier")
    for t in (1,2):
        for c in range(2):
            r=acc[t]+4*c
            a.e(f"ds_write_b128 v5, {R4(r)} offset:{(t-1)*2048+c*1024}")
    a.e(f"""
    v_mul_f32 v6, {hex(f2u(-math.log2(math.e)))}, v{acc[0]+12}
    v_exp_f32 v6, v6
    s_nop 0
    v_add_f32 v6, 1.0, v6
    v_rcp_f32 v6, v6
    s_nop 0
    v_sub_f32 v7, 1.0, v6
    s_cmp_eq_u32 s7, 0
    s_cselect_b64 vcc, -1, 0
    v_cndmask_b32 v6, v7, v6, vcc
    v_mov_b32 v{vGate}, v6
    s_nop 1
    v_permlane32_swap_b32 v6, v{vGate}
    """)
    for r in range(16): a.e(f"v_mul_f32 v{acc[0]+r}, s67, v{acc[0]+r}")
    for i in range(8): a.e(f"v_cvt_pk_bf16_f32 v{acc[0]+i}, v{acc[0]+2*i}, v{acc[0]+2*i+1}")
    a.e(f"""
    s_mov_b64 exec, s[68:69]
    v_mov_b32 v{acc[0]+6}, 0
    v_mov_b32 v{acc[0]+7}, 0
    s_mov_b64 exec, -1
    """)
    q0=64; q1=68; S=[16,32]; P=48; O=104; kA=56; kB=60; vA=72; vB=76; vM=8; vR=9
    pos=lambda i: (i%16)*4096
    Ko=lambda tt,c: pos(tt)+c*1024
    Vo=lambda tt,c: pos(tt)+2048+c*1024
    rd=lambda r,off: a.e(f"ds_read_b128 {R4(r)}, v{vR} offset:{off}")
    a.e(f"""
    v_add_u32 v{vR}, {RB}, v{vL}
    s_lshl_b32 s57, s9, 10
    s_lshl_b32 s56, s6, 1
    s_mov_b32 s58, 2
    s_mov_b32 s66, 0x40000000
    """)
    def dma(slot):
        m1=slot*16384
        a.e(f"""
        s_add_u32 s59, s58, s56
        s_and_b32 s59, s59, 15
        s_lshl_b32 s59, s59, 14
        s_cmp_lt_u32 s58, 16
        s_cselect_b32 s59, s59, s66
        s_add_u32 m0, s57, {m1}
        s_add_u32 s58, s58, 1
        buffer_load_dwordx4 v{vD}, s[{SKV}:{SKV+3}], s59 offen {DMASC} lds
        s_add_u32 m0, s57, {m1+8192}
        s_add_u32 s59, s59, 8192
        buffer_load_dwordx4 v{vD}, s[{SKV}:{SKV+3}], s59 offen {DMASC} lds
        """)
    for r in range(16): a.e(f"v_mov_b32 v{O+r}, 0")
    for r in range(4): a.e(f"v_mov_b32 v{P+4+r}, 0\nv_mov_b32 v{vB+r}, 0")
    a.e(f"""
    v_mov_b32 v5, {FLAG}
    v_mov_b32 v6, 0
    ds_write_b32 v5, v6
    s_waitcnt lgkmcnt(0)
    s_barrier
    """)
    stamp(a,5)
    rd(kA,Ko(0,0)); rd(kB,Ko(0,1))
    a.e("s_waitcnt lgkmcnt(0)")
    a.e(f"{MF} {R16(S[0])}, {R4(kA)}, {R4(q0)}, 0")
    a.e(f"{MF} {R16(S[0])}, {R4(kB)}, {R4(q1)}, {R16(S[0])}")
    rd(kA,Ko(1,0)); rd(kB,Ko(1,1)); rd(vA,Vo(0,0))
    a.e("s_nop 7\ns_nop 3")
    s0=S[0]
    a.e(f"v_max3_f32 v{vM}, v{s0}, v{s0+1}, v{s0+2}")
    for i in range(3,15,2): a.e(f"v_max3_f32 v{vM}, v{vM}, v{s0+i}, v{s0+i+1}")
    a.e(f"""
    v_max_f32 v{vM}, v{vM}, v{s0+15}
    v_mov_b32 v5, v{vM}
    s_nop 0
    v_mov_b32 v6, v{vM}
    s_nop 1
    v_permlane32_swap_b32 v5, v6
    s_nop 1
    v_max_f32 v{vM}, v5, v6
    v_and_b32 v{vM}, 0xffff0000, v{vM}
    v_lshrrev_b32 v5, 16, v{vM}
    v_xor_b32 v5, 0x8000, v5
    s_mov_b64 exec, s[68:69]
    v_mov_b32 v{q1+2}, v5
    s_mov_b64 exec, -1
    """)
    for r in range(16): a.e(f"v_sub_f32 v{s0+r}, v{s0+r}, v{vM}")
    a.e("s_waitcnt lgkmcnt(0)")
    a.e("s_mov_b32 s60, 4")
    a.e(f"""
    v_lshlrev_b32 v10, 7, v{vLane}
    s_lshl_b32 s61, s5, 10
    s_add_u32 s61, s61, {WS_FKV}
    """)
    def gettag():
        a.label(f"{L}_tag")
        a.e(f"""
        v_readfirstlane_b32 s71, v121
        s_nop 3
        s_cmp_lg_u32 s71, 0
        s_cbranch_scc1 {L}_tagok
        s_sleep 2
        buffer_load_dword v121, v120, s[{SDB}:{SDB+3}], 0 offen sc1
        s_waitcnt vmcnt(0)
        s_branch {L}_tag
        """)
        a.label(f"{L}_tagok")
    def poll(soff,mask_lo,tag):
        a.e(f"s_mov_b32 exec_lo, {mask_lo}\ns_mov_b32 exec_hi, 0")
        a.label(f"{L}_poll{tag}")
        a.e(f"""
        buffer_load_dword v12, v10, s[{SWS}:{SWS+3}], {soff} offen sc1
        s_waitcnt vmcnt(0)
        v_cmp_ne_u32 vcc, s71, v12
        s_nop 1
        s_cmp_eq_u64 vcc, 0
        s_cbranch_scc1 {L}_pdone{tag}
        s_sleep 2
        s_branch {L}_poll{tag}
        """)
        a.label(f"{L}_pdone{tag}")
        a.e("s_mov_b64 exec, -1")
    def signal(soff,tag):
        a.e(f"""
        s_cmp_lg_u32 s9, 0
        s_cbranch_scc1 {L}_nosig{tag}
        v_mov_b32 v12, s71
        s_mov_b64 exec, 1
        buffer_store_dword v12, v120, s[{SWS}:{SWS+3}], {soff} offen sc1
        s_mov_b64 exec, -1
        """)
        a.label(f"{L}_nosig{tag}")
    a.raw(".p2align 6")
    a.label(f"{L}_loop")
    body_start=len(a.lines)
    for tt in range(16):
        sc=S[tt%2]; sn=S[(tt+1)%2]
        if tt==2:
            a.e(f"s_cmp_eq_u32 s60, 4\ns_cbranch_scc0 {L}_b1")
            a.e("s_waitcnt vmcnt(0)\ns_barrier")
            gettag()
            a.e("s_lshl_b32 s3, s6, 7\ns_add_u32 s3, s3, s61")
            signal("s3","kv")
            a.e(f"s_branch {L}_b1x")
            a.label(f"{L}_b1")
            a.e("s_waitcnt vmcnt(2)\ns_barrier")
            dma(3)
            a.label(f"{L}_b1x")
        elif tt%4==2:
            a.e("s_waitcnt vmcnt(2)\ns_barrier")
            dma((tt//4+3)%4)
        if tt==4:
            a.e(f"s_cmp_eq_u32 s60, 4\ns_cbranch_scc0 {L}_np")
            poll("s61","0xff","kv")
            stamp(a,3)
            dma(2); dma(3)
            a.label(f"{L}_np")
        a.e(f"s_setprio {(3,2,1,0)[(tt-2)%4]}")
        def grp(g,regp):
            for j in range(4): a.e(f"v_exp_f32 v{sc+4*g+j}, v{sc+4*g+j}")
            a.e(f"v_cvt_pk_bf16_f32 v{regp}, v{sc+4*g}, v{sc+4*g+1}")
            a.e(f"v_cvt_pk_bf16_f32 v{regp+1}, v{sc+4*g+2}, v{sc+4*g+3}")
        a.e("s_waitcnt lgkmcnt(3)")
        a.e(f"{MF} {R16(sn)}, {R4(kA)}, {R4(q0)}, 0")
        rd(kA,Ko(tt+2,0))
        grp(0,P)
        a.e("s_waitcnt lgkmcnt(3)")
        a.e(f"{MF} {R16(sn)}, {R4(kB)}, {R4(q1)}, {R16(sn)}")
        rd(kB,Ko(tt+2,1))
        grp(1,P+2)
        a.e("s_waitcnt lgkmcnt(3)")
        a.e(f"{MF} {R16(O)}, {R4(vB)}, {R4(P+4)}, {R16(O)}")
        rd(vB,Vo(tt,1))
        grp(2,P+4)
        a.e("s_waitcnt lgkmcnt(3)")
        a.e(f"{MF} {R16(O)}, {R4(vA)}, {R4(P)}, {R16(O)}")
        rd(vA,Vo(tt+1,0))
        grp(3,P+6)
    a.e(f"s_sub_u32 s60, s60, 1\ns_cmp_lg_u32 s60, 0\ns_cbranch_scc1 {L}_loop")
    body_end=len(a.lines)
    a.e("s_setprio 0\ns_waitcnt lgkmcnt(0)")
    stamp(a,6)
    a.e(f"{MF} {R16(O)}, {R4(vB)}, {R4(P+4)}, {R16(O)}")
    a.e("s_nop 15")
    def lsum():
        a.e(f"v_mov_b32 v5, v{O+12}\nv_mov_b32 v6, v{O+12}\ns_nop 1\nv_permlane32_swap_b32 v5, v6")
    lsum()
    a.e(f"v_mul_f32 v7, 0, v{O}")
    for r in range(1,16): a.e(f"v_fmac_f32 v7, 0, v{O+r}")
    a.e(f"""
    v_cmp_u_f32 vcc, v7, v7
    s_nop 0
    s_mov_b64 s[62:63], vcc
    v_cmp_nle_f32 vcc, 0x35800000, v6
    s_nop 0
    s_or_b64 s[62:63], s[62:63], vcc
    v_cmp_nge_f32 vcc, 0x4e800000, v6
    s_nop 0
    s_or_b64 s[62:63], s[62:63], vcc
    v_mov_b32 v5, {FLAG}
    v_mov_b32 v7, 1
    s_cmp_eq_u64 s[62:63], 0
    s_cbranch_scc1 {L}_ok
    ds_write_b32 v5, v7
    """)
    a.label(f"{L}_ok")
    a.e(f"""
    s_waitcnt vmcnt(0) lgkmcnt(0)
    s_barrier
    ds_read_b32 v7, v5
    s_waitcnt lgkmcnt(0)
    v_readfirstlane_b32 s61, v7
    s_nop 3
    s_cmp_lg_u32 s61, 0
    s_cbranch_scc1 {L}_slow
    """)
    a.label(f"{L}_final")
    lsum()
    a.e(f"""
    v_rcp_f32 v6, v6
    s_nop 0
    v_mul_f32 v6, v6, v{vGate}
    """)
    for r in range(16): a.e(f"v_mul_f32 v{O+r}, v{O+r}, v6")
    for i in range(8): a.e(f"v_cvt_pk_bf16_f32 v{O+i}, v{O+2*i}, v{O+2*i+1}")
    a.e(f"""
    s_lshl_b32 s11, s5, 17
    s_lshl_b32 s3, s10, 11
    s_add_u32 s11, s11, s3
    s_add_u32 s11, s11, {WS_O}
    s_mov_b64 exec, s[68:69]
    v_mov_b32 v{O+6}, 0
    v_mov_b32 v{O+7}, 0
    s_mov_b64 exec, -1
    s_lshl_b32 s61, s6, 12
    s_add_u32 s61, s61, {WS_FO}
    s_lshl_b32 s3, s5, 7
    s_add_u32 s3, s3, s61
    buffer_store_dwordx4 {R4(O)}, v{vL}, s[{SWS}:{SWS+3}], s11 offen sc1
    buffer_store_dwordx4 {R4(O+4)}, v{vL}, s[{SWS}:{SWS+3}], s11 offen offset:1024 sc1
    s_waitcnt vmcnt(0)
    s_barrier
    """)
    signal("s3","o")
    a.e("s_mov_b32 s59, s61")
    stamp(a,7)
    a.e(f"s_cmp_ge_u32 s5, 28\ns_cbranch_scc1 {L}_end")
    of=16; wfo=[[80,84],[88,92]]; acc3=[96,112]; vA3=[14,15]; vD3=13
    SWA=40; SWB=44; SO=48
    a.e(f"""
    s_mul_i32 s3, s5, 37
    s_lshr_b32 s4, s3, 8
    s_mul_i32 s3, s4, 7
    s_sub_u32 s3, s5, s3
    s_lshl_b32 s11, s6, 2
    s_add_u32 s4, s4, s11
    v_lshrrev_b32 v6, 3, v{vLane}
    v_mul_u32_u24 v6, 896, v6
    v_and_b32 v7, 7, v{vLane}
    v_bfe_u32 v5, v{vLane}, 4, 1
    v_lshlrev_b32 v5, 2, v5
    v_xor_b32 v7, v7, v5
    v_lshl_add_u32 v{vD3}, v7, 4, v6
    s_and_b32 s60, s9, 1
    s_lshr_b32 s61, s9, 1
    """)
    srd(a,SWA,"s20","s21",WOB); srd(a,SWB,"s26","s27",WOB); srd(a,SO,"s30","s31",XB)
    a.e(f"""
    s_mul_i32 s62, s9, {8*896}
    s_lshl_b32 s63, s3, 7
    s_add_u32 s62, s62, s63
    s_lshl_b32 s57, s9, 10
    """)
    for b,sw in ((0,SWA),(1,SWB)):
        for i in range(8):
            a.e(f"""
            s_add_u32 m0, s57, {b*65536+i*8192}
            s_add_u32 s63, s62, {i*64*896}
            buffer_load_dwordx4 v{vD3}, s[{sw}:{sw+3}], s63 offen lds
            """)
    a.e(f"""
    v_lshrrev_b32 v6, 4, v{vLane}
    v_and_b32 v7, 1, v6
    v_lshrrev_b32 v6, 1, v6
    v_bfe_u32 v5, v{vLane}, 2, 2
    v_lshl_add_u32 v6, v6, 2, v5
    v_lshlrev_b32 v6, 7, v6
    v_lshrrev_b32 v5, 1, v5
    v_lshl_add_u32 v6, v5, 6, v6
    v_lshl_add_u32 v6, v7, 5, v6
    v_and_b32 v7, 3, v{vLane}
    v_lshl_add_u32 v6, v7, 3, v6
    s_lshr_b32 s62, s61, 1
    s_lshl_b32 s62, s62, 16
    s_and_b32 s63, s61, 1
    s_mul_i32 s63, s63, {8*28*128}
    s_add_u32 s62, s62, s63
    v_add_u32 v{vA3[0]}, s62, v6
    v_xor_b32 v{vA3[1]}, 64, v{vA3[0]}
    s_lshl_b32 s62, s4, 1
    s_add_u32 s62, s62, s60
    s_lshl_b32 s62, s62, 11
    s_lshl_b32 s63, s61, 20
    s_add_u32 s62, s62, s63
    s_add_u32 s62, s62, {WS_O}
    """)
    for r in range(32): a.e(f"v_mov_b32 v{acc3[0]+r}, 0")
    a.e(f"s_waitcnt vmcnt(0)\ns_cmp_lg_u32 s9, 0\ns_cbranch_scc1 {L}_nopoll")
    poll("s59","-1","o")
    a.label(f"{L}_nopoll")
    a.e("s_barrier")
    stamp(a,8)
    for i in range(8):
        a.e(f"s_add_u32 s63, s62, {i*131072}")
        for c in range(2):
            a.e(f"buffer_load_dwordx4 {R4(of+8*i+4*c)}, v{vL}, s[{SWS}:{SWS+3}], s63 offen offset:{c*1024} sc1")
    def wr(step,buf):
        i,c=step//2,step%2
        o=(i*28+16*c)*128
        for nt in range(2):
            r=wfo[buf][nt]
            a.e(f"ds_read_b64_tr_b16 v[{r}:{r+1}], v{vA3[nt]} offset:{o}")
            a.e(f"ds_read_b64_tr_b16 v[{r+2}:{r+3}], v{vA3[nt]} offset:{o+1024}")
    wr(0,0)
    for step in range(16):
        buf=step&1
        if step<15:
            wr(step+1,buf^1); a.e(f"s_waitcnt vmcnt({15-step}) lgkmcnt(4)")
        else: a.e("s_waitcnt vmcnt(0) lgkmcnt(0)")
        i,c=step//2,step%2
        for nt in range(2):
            cc=R16(acc3[nt])
            a.e(f"{MF} {cc}, {R4(wfo[buf][nt])}, {R4(of+8*i+4*c)}, {cc}")
    a.e("s_nop 15\ns_barrier")
    stamp(a,9)
    a.e(f"s_lshl_b32 s62, s9, 13\nv_add_u32 v6, s62, v{vL}")
    for nt in range(2):
        for g in range(4):
            a.e(f"ds_write_b128 v6, {R4(acc3[nt]+4*g)} offset:{nt*4096+g*1024}")
    a.e(f"""
    s_waitcnt lgkmcnt(0)
    s_barrier
    s_lshr_b32 s61, s9, 1
    s_and_b32 s61, s61, 1
    s_lshr_b32 s56, s9, 2
    s_lshl_b32 s62, s60, 13
    s_lshl_b32 s63, s61, 12
    s_add_u32 s62, s62, s63
    s_lshl_b32 s63, s56, 11
    s_add_u32 s62, s62, s63
    v_add_u32 v6, s62, v{vL}
    """)
    for kq in range(4):
        if kq==2: a.e(f"v_add_u32 v6, {4*8192}, v6")
        for g in range(2):
            a.e(f"ds_read_b128 {R4(16+kq*8+g*4)}, v6 offset:{(kq&1)*16384+g*1024}")
    a.e("s_waitcnt lgkmcnt(0)")
    for k in range(8):
        a.e(f"v_add_f32 v{16+k}, v{16+k}, v{24+k}")
        a.e(f"v_add_f32 v{32+k}, v{32+k}, v{40+k}")
    for k in range(8): a.e(f"v_add_f32 v{16+k}, v{16+k}, v{32+k}")
    a.e(f"""
    v_cvt_pk_bf16_f32 v48, v16, v17
    v_cvt_pk_bf16_f32 v49, v18, v19
    v_cvt_pk_bf16_f32 v50, v20, v21
    v_cvt_pk_bf16_f32 v51, v22, v23
    v_and_b32 v6, 31, v{vLane}
    v_lshrrev_b32 v7, 5, v{vLane}
    v_permlane32_swap_b32 v48, v50
    v_permlane32_swap_b32 v49, v51
    v_mul_u32_u24 v6, 896, v6
    v_lshl_add_u32 v6, v7, 4, v6
    s_lshl_b32 s62, s4, 1
    s_add_u32 s62, s62, s60
    s_mul_i32 s62, s62, {32*896}
    s_lshl_b32 s63, s3, 7
    s_add_u32 s62, s62, s63
    s_lshl_b32 s63, s61, 6
    s_add_u32 s62, s62, s63
    s_lshl_b32 s63, s56, 5
    s_add_u32 s62, s62, s63
    buffer_store_dwordx4 v[48:51], v6, s[{SO}:{SO+3}], s62 offen
    """)
    a.label(f"{L}_end")
    if DBG:
        a.e("s_waitcnt vmcnt(0)"); stamp(a,10); stamp_rt(a,11); stamp_out(a,12,SWS,60,"f"); stamp_dbg(a,12,SDB,60)
    a.label(f"{L}_done")
    a.e("s_endpgm")
    a.label(f"{L}_slow")
    a.e(f"""
    s_mov_b64 exec, s[68:69]
    v_mov_b32 v{q1+2}, 0
    s_mov_b64 exec, -1
    v_mov_b32 v{vM}, 0xff800000
    s_mov_b32 s58, 0
    s_mov_b32 s60, 16
    """)
    for r in range(16): a.e(f"v_mov_b32 v{O+r}, 0")
    a.label(f"{L}_sloop")
    sl0=len(a.lines)
    dma(0)
    a.e("s_waitcnt vmcnt(0)\ns_barrier")
    sc=S[0]
    for i in range(4):
        rd(kA,Ko(i,0)); rd(kB,Ko(i,1)); rd(vA,Vo(i,0)); rd(vB,Vo(i,1))
        a.e("s_waitcnt lgkmcnt(0)")
        a.e(f"{MF} {R16(sc)}, {R4(kA)}, {R4(q0)}, 0")
        a.e(f"{MF} {R16(sc)}, {R4(kB)}, {R4(q1)}, {R16(sc)}")
        a.e("s_nop 15")
        a.e(f"v_max3_f32 v5, v{sc}, v{sc+1}, v{sc+2}")
        for k in range(3,15,2): a.e(f"v_max3_f32 v5, v5, v{sc+k}, v{sc+k+1}")
        a.e(f"""
        v_max_f32 v5, v5, v{sc+15}
        s_nop 0
        v_mov_b32 v6, v5
        s_nop 1
        v_permlane32_swap_b32 v5, v6
        s_nop 1
        v_max3_f32 v5, v5, v6, v{vM}
        v_sub_f32 v6, v{vM}, v5
        v_exp_f32 v6, v6
        v_mov_b32 v{vM}, v5
        """)
        for r in range(16): a.e(f"v_sub_f32 v{sc+r}, v{sc+r}, v5")
        for r in range(16): a.e(f"v_exp_f32 v{sc+r}, v{sc+r}")
        for r in range(16): a.e(f"v_mul_f32 v{O+r}, v{O+r}, v6")
        for k in range(8): a.e(f"v_cvt_pk_bf16_f32 v{P+k}, v{sc+2*k}, v{sc+2*k+1}")
        a.e("s_nop 1")
        a.e(f"{MF} {R16(O)}, {R4(vA)}, {R4(P)}, {R16(O)}")
        a.e(f"{MF} {R16(O)}, {R4(vB)}, {R4(P+4)}, {R16(O)}")
        a.e("s_nop 15")
    a.e(f"""
    s_barrier
    s_sub_u32 s60, s60, 1
    s_cmp_lg_u32 s60, 0
    s_cbranch_scc1 {L}_sloop
    s_branch {L}_final
    """)
    a.loops=[(body_start,body_end),(sl0,len(a.lines))]
    return dict(vgpr=128,sgpr=(100 if DBG else 72),lds=LDS_TOTAL,grid=256,block=512)

HDR=open("cdna_kernels/"+NAME+".s.ref").read().split("; Override")[0]
def build(path):
    name=NAME+"_kernel"
    a=Asm(); info=fused(a)
    errs=check(a.lines,name)
    for (s,e) in a.loops: errs+=check(a.lines[s:e]+a.lines[s:e],name+"-loop")
    t=HDR+f"; @launch grid=({info['grid']},1,1) block=({info['block']},1,1) lds={info['lds']}\n"
    t+='.amdgcn_target "amdgcn-amd-amdhsa--gfx950"\n.text\n'
    t+=f".globl {name}\n.p2align 8\n.type {name},@function\n{name}:\n"+a.text()
    t+=f""".section .rodata,"a"
.p2align 6
.amdhsa_kernel {name}
  .amdhsa_next_free_vgpr {info['vgpr']}
  .amdhsa_next_free_sgpr {info['sgpr']}
  .amdhsa_accum_offset {info['vgpr']}
  .amdhsa_group_segment_fixed_size 0
  .amdhsa_kernarg_size 80
  .amdhsa_user_sgpr_count 2
  .amdhsa_user_sgpr_kernarg_segment_ptr 1
  .amdhsa_system_sgpr_workgroup_id_x 1
.end_amdhsa_kernel
"""
    open(path,"w").write(t)
    open("launch.txt","w").write(f"{name} {info['grid']} {info['block']} {info['lds']}\n")
    for e in errs: print("HAZARD",e)
    print("hazard errors:",len(errs))
if __name__=="__main__":
    if len(sys.argv)>2 and sys.argv[2]=="dbg": DBG=True
    build(sys.argv[1] if len(sys.argv)>1 else "cdna_kernels/"+NAME+".s")
```

```python
import sys, math, struct
from asm import Asm, check
NAME="gated_mix__mha_block__softmax_full_mha__prompt"
WS_KV=0; WS_O=8<<20; WS_FKV=16<<20; WS_FO=(16<<20)+65536; WS_DBG=17<<20; WS_END=(18<<20)
XB=2048*448*2; WB=448*1344*2; WOB=448*448*2
QSCALE=math.log2(math.e)/math.sqrt(28.0)
def f2u(f): return struct.unpack("<I",struct.pack("<f",f))[0]
import os
DBG=False
DMASC=os.environ.get('DMASC','sc1')
STSC=os.environ.get('STSC','sc1')
NST=12
P1DBG=os.environ.get('P1DBG','')
def stamp1(a,i):
    if DBG and P1DBG: a.e(f"s_memtime s[{72+2*i}:{73+2*i}]\ns_waitcnt lgkmcnt(0)")
RTM=os.environ.get('RTM','')
STG=os.environ.get('STG','')
def stampS(a,i):
    if DBG and STG: a.e(f"s_memtime s[{72+2*i}:{73+2*i}]\ns_waitcnt lgkmcnt(0)")
def stamp(a,i):
    if STG and i in (2,3,4,5,6,7,8,9):
        if i==5: stampS(a,2)
        if i==6: stampS(a,12)
        return
    if RTM and i in (3,9): return
    if RTM and i==5 and DBG: a.e("s_memrealtime s[78:79]\ns_waitcnt lgkmcnt(0)")
    if RTM and i==6 and DBG: a.e("s_memrealtime s[90:91]\ns_waitcnt lgkmcnt(0)")
    if P1DBG and i in (3,6,7,8,9): return
    if DBG: a.e(f"s_memtime s[{72+2*i}:{73+2*i}]\ns_waitcnt lgkmcnt(0)")
def stamp_rt(a,i):
    if DBG: a.e(f"s_memrealtime s[{72+2*i}:{73+2*i}]\ns_waitcnt lgkmcnt(0)")
def stamp_out(a,n,srdws,t0,tag):
    if not DBG: return
    a.e("s_cmp_lg_u32 s9, 0")
    a.e(f"s_cbranch_scc1 STMP{tag}_skip")
    a.e(f"s_lshl_b32 s70, s2, 6\ns_add_u32 s70, s70, {WS_DBG}")
    a.e(f"s_mov_b64 exec, 1\nv_mov_b32 v{t0+1}, 0")
    for i in range(n):
        a.e(f"v_mov_b32 v{t0}, s{72+2*i}")
        a.e(f"buffer_store_dword v{t0}, v{t0+1}, s[{srdws}:{srdws+3}], s70 offen offset:{4*i}")
        a.e("s_nop 1")
    a.e("s_mov_b64 exec, -1")
    a.label(f"STMP{tag}_skip")
def stamp_dbg(a,n,sdb,t0):
    if not (DBG and os.environ.get('TODBG')): return
    wg=int(os.environ['TODBG'])
    a.e(f"s_cmp_lg_u32 s9, 0\ns_cbranch_scc1 SDBG_skip\ns_cmp_lg_u32 s2, {wg}\ns_cbranch_scc1 SDBG_skip")
    a.e(f"s_mov_b64 exec, 1\nv_mov_b32 v{t0+1}, 0")
    for i in range(2,n):
        if i==11: a.e(f"s_sub_u32 s70, s{72+2*i}, s74")
        else: a.e(f"s_sub_u32 s70, s{72+2*i}, s72")
        a.e(f"v_mov_b32 v{t0}, s70")
        a.e(f"buffer_store_dword v{t0}, v{t0+1}, s[{sdb}:{sdb+3}], 0 offen offset:{4*(i-1)}")
        a.e("s_nop 1")
    a.e("s_mov_b64 exec, -1")
    a.label("SDBG_skip")
def srd(a, d, lo, hi, size):
    a.e(f"s_mov_b32 s{d}, {lo}\ns_mov_b32 s{d+1}, {hi}\ns_mov_b32 s{d+2}, {size}\ns_mov_b32 s{d+3}, 0x20000")
R4=lambda r: f"v[{r}:{r+3}]"
R16=lambda r: f"v[{r}:{r+15}]"
MF="v_mfma_f32_32x32x16_bf16"

def fused(a):
    L="F"
    WLDS=0; XLDS=49152; GLDS=XLDS+8*12288; LDS_TOTAL=163840
    QX=65536; WOA=98304; GX=157696; FLAG=158720
    SX=40; SW=44; SG=48; SWS=52; SKV=36; SDB=12
    vLane=1; vL=2; vD=3; vGate=4
    vX=[10,11]; vXw=[22,23]; xs=128; vW=12; vG=13; vXr=[14,15,16,17]; vWr=[18,19]; vGr=20; vOnes=21
    xf=24; wf=[[40,44,48],[52,56,60]]; acc=[64,80,96]
    a.e(f"s_cmp_ge_u32 s2, 256\ns_cbranch_scc1 {L}_done")
    stamp(a,0); stamp_rt(a,1)
    a.e("""
    s_load_dwordx16 s[16:31], s[0:1], 0
    s_load_dwordx4 s[32:35], s[0:1], 64
    s_lshr_b32 s4, s2, 3
    s_bfe_u32 s7, s2, 0x10002
    s_bfe_u32 s3, s2, 0x10001
    s_lshl_b32 s3, s3, 3
    s_and_b32 s8, s4, 7
    s_add_u32 s8, s8, s3
    s_and_b32 s3, s2, 1
    s_lshl_b32 s3, s3, 2
    s_lshr_b32 s6, s4, 3
    s_add_u32 s6, s6, s3
    s_lshl_b32 s5, s7, 4
    s_add_u32 s5, s5, s8
    """)
    a.e(f"""
    v_and_b32 v{vLane}, 63, v0
    v_lshrrev_b32 v5, 6, v0
    v_lshrrev_b32 v6, 3, v{vLane}
    v_readfirstlane_b32 s9, v5
    v_and_b32 v7, 7, v{vLane}
    v_lshrrev_b32 v5, 4, v{vLane}
    v_xor_b32 v7, v7, v5
    v_mul_u32_u24 v6, 896, v6
    v_lshl_add_u32 v{vX[0]}, v7, 4, v6
    v_xor_b32 v{vX[1]}, 64, v{vX[0]}
    v_mul_u32_u24 v6, 43, v{vLane}
    v_lshrrev_b32 v6, 9, v6
    v_mul_u32_u24 v7, 12, v6
    v_sub_u32 v7, v{vLane}, v7
    v_lshrrev_b32 v5, 2, v7
    v_and_b32 v7, 3, v7
    v_mul_u32_u24 v6, 2688, v6
    v_mul_u32_u24 v5, 896, v5
    v_lshlrev_b32 v7, 4, v7
    v_add3_u32 v{vW}, v6, v7, v5
    v_lshlrev_b32 v{vL}, 4, v{vLane}
    v_lshlrev_b32 v{vD}, 4, v0
    v_and_b32 v6, 31, v{vLane}
    v_lshrrev_b32 v7, 5, v{vLane}
    v_bfe_u32 v5, v{vLane}, 1, 3
    v_xor_b32 v5, v5, v7
    v_lshlrev_b32 v5, 4, v5
    v_lshl_add_u32 v5, v6, 7, v5
    s_mul_i32 s57, s9, 12288
    s_add_u32 s57, s57, {XLDS}
    v_add_u32 v{vXr[0]}, s57, v5
    v_xor_b32 v{vXr[1]}, 32, v{vXr[0]}
    v_xor_b32 v{vXr[2]}, 64, v{vXr[0]}
    v_xor_b32 v{vXr[3]}, 96, v{vXr[0]}
    v_lshlrev_b32 v7, 4, v7
    v_add_u32 v{vGr}, {GLDS}, v7
    v_cmp_eq_u32 vcc, 28, v6
    v_mov_b32 v6, 0x3f803f80
    v_mov_b32 v7, 0
    v_cndmask_b32 v{vOnes}, v7, v6, vcc
    v_lshrrev_b32 v5, 4, v{vLane}
    v_and_b32 v6, 1, v5
    v_lshrrev_b32 v5, 1, v5
    v_bfe_u32 v7, v{vLane}, 2, 2
    v_lshl_add_u32 v5, v5, 3, v7
    v_mul_u32_u24 v5, 192, v5
    v_lshl_add_u32 v5, v6, 5, v5
    v_and_b32 v6, 3, v{vLane}
    v_lshl_add_u32 v{vWr[0]}, v6, 3, v5
    """)
    assert XLDS%128==0
    a.e("""
    s_lshl_b32 s10, s6, 3
    s_add_u32 s10, s10, s9
    s_mul_i32 s56, s10, 28672
    s_mul_i32 s58, s9, 10752
    s_mul_i32 s59, s8, 56
    s_add_u32 s58, s58, s59
    s_mul_i32 s59, s9, 768
    s_mov_b32 s60, 0x10000000
    s_mov_b32 s61, 0x10000000
    s_waitcnt lgkmcnt(0)
    s_cmp_eq_u32 s7, 0
    s_cselect_b32 s38, s18, s24
    s_cselect_b32 s39, s19, s25
    """)
    stamp(a,2)
    srd(a,SX,"s16","s17",XB); srd(a,SW,"s38","s39",WB); srd(a,SG,"s28","s29",896)
    a.e("""
    s_mov_b32 s0, -1
    s_mov_b32 s1, 0xffff
    s_mov_b32 s66, -1
    s_mov_b32 s67, 0xffffff
    """)
    def dmaX1(kc,j):
        slot=kc%3
        a.e(f"""
        s_add_u32 m0, s57, {slot*4096+j*1024}
        s_add_u32 s65, s56, {8*j*896+kc*128}
        buffer_load_dwordx4 v{vX[j&1]}, s[{SX}:{SX+3}], s65 offen lds
        """)
    def dmaW1(kc,i):
        a.e(f"""
        s_mov_b64 exec, s[0:1]
        s_add_u32 m0, s59, {WLDS+(kc%4)*12288+i*6144}
        s_add_u32 s65, s58, {(2*kc+i)*32*2688}
        buffer_load_dwordx4 v{vW}, s[{SW}:{SW+3}], s65 offen lds
        s_mov_b64 exec, -1
        """)
    def chunk_ops(kc):
        return [lambda j=j: dmaX1(kc,j) for j in range(4)]+[lambda i=i: dmaW1(kc,i) for i in range(2)]
    DEPTH=int(os.environ.get("P1DEPTH","2"))
    TOUCH=os.environ.get("TOUCH","")
    def touch():
        fl=TOUCH if TOUCH!='1' else ''
        a.e(f"""
        s_mul_i32 s62, s4, 160
        s_mul_i32 s63, s9, 20
        s_add_u32 s62, s62, s63
        v_add_u32 v124, s62, v{vLane}
        v_mul_u32_u24 v125, 52429, v124
        v_lshrrev_b32 v125, 18, v125
        v_mul_u32_u24 v122, 5, v125
        v_sub_u32 v124, v124, v122
        v_mul_u32_u24 v125, 896, v125
        v_lshl_add_u32 v122, v124, 7, v125
        s_and_b32 s63, s2, 1
        s_mul_i32 s63, s63, {1024*896}
        s_add_u32 s63, s63, 256
        s_mov_b32 exec_lo, 0xfffff
        s_mov_b32 exec_hi, 0
        buffer_load_dword v123, v122, s[{SX}:{SX+3}], s63 offen {fl}
        s_mov_b64 exec, -1
        s_mul_i32 s62, s4, 120
        s_mul_i32 s63, s9, 15
        s_add_u32 s62, s62, s63
        v_add_u32 v124, s62, v{vLane}
        v_lshrrev_b32 v125, 2, v124
        v_and_b32 v124, 3, v124
        v_mul_u32_u24 v125, 896, v125
        v_lshl_add_u32 v124, v124, 7, v125
        s_bfe_u32 s63, s2, 0x10001
        s_mul_i32 s63, s63, 384
        s_add_u32 s63, s63, {384*896}
        s_mov_b32 exec_lo, 0x7fff
        s_mov_b32 exec_hi, 0
        buffer_load_dword v126, v124, s[{SW}:{SW+3}], s63 offen {fl}
        s_mov_b64 exec, -1
        """)
    a.e(f"""
    s_mov_b64 exec, s[66:67]
    s_mov_b32 m0, {GLDS}
    s_nop 0
    buffer_load_dwordx4 v{vL}, s[{SG}:{SG+3}], 0 offen lds
    s_mov_b64 exec, -1
    """)
    for kc in range(DEPTH):
        for op in chunk_ops(kc): op()
        if kc<DEPTH-1: a.e("s_barrier")
    if TOUCH: touch()
    stamp1(a,3)
    srd(a,SWS,"s34","s35",WS_END); srd(a,SDB,"s32","s33",256)
    a.e(f"""
    s_or_b32 s3, s2, s9
    s_cmp_lg_u32 s3, 0
    s_cbranch_scc1 {L}_notag
    s_memrealtime s[70:71]
    s_waitcnt lgkmcnt(0)
    s_or_b32 s70, s70, 1
    v_mov_b32 v5, s70
    v_mov_b32 v6, 0
    s_mov_b64 exec, 1
    buffer_store_dword v5, v6, s[{SDB}:{SDB+3}], 0 offen sc1
    s_mov_b64 exec, -1
    """)
    a.label(f"{L}_notag")
    a.e("""
    s_lshl_b32 s3, s5, 18
    s_add_u32 s36, s34, s3
    s_addc_u32 s37, s35, 0
    s_mov_b32 s38, 0x40000
    s_mov_b32 s39, 0x20000
    """)
    for r in range(48): a.e(f"v_mov_b32 v{acc[0]+r}, 0")
    def wreads(ks,buf):
        o=((ks//4)%4)*12288+(ks%4)*3072
        for t in range(3):
            r=wf[buf][t]
            a.e(f"ds_read_b64_tr_b16 v[{r}:{r+1}], v{vWr[0]} offset:{o+t*64}")
            a.e(f"ds_read_b64_tr_b16 v[{r+2}:{r+3}], v{vWr[0]} offset:{o+t*64+768}")
        r=wf[buf][0]
        a.e(f"s_mov_b64 exec, s[60:61]\nds_read_b128 v[{r}:{r+3}], v{vGr} offset:{ks*32}\ns_mov_b64 exec, -1")
    for kc in range(7):
        a.e(f"s_waitcnt vmcnt({6*(min(kc+DEPTH,7)-kc-1)+(2 if (TOUCH and kc<DEPTH) else 0)})")
        if kc in (0,1,3,6): stamp1(a,{0:6,1:7,3:8,6:9}[kc])
        if kc==6: a.e(f"v_mov_b32 v120, 0\nbuffer_load_dword v121, v120, s[{SDB}:{SDB+3}], 0 offen sc1")
        for kk in range(4):
            a.e(f"ds_read_b128 {R4(xf+4*kk)}, v{vXr[kk]} offset:{(kc%3)*4096}")
        a.e("s_waitcnt lgkmcnt(0)\ns_barrier")
        wreads(4*kc,0)
        ops=chunk_ops(kc+DEPTH) if kc+DEPTH<7 else []
        for kk in range(4):
            ks=4*kc+kk; buf=kk&1
            if kk<3:
                wreads(ks+1,buf^1); a.e("s_waitcnt lgkmcnt(7)")
            else: a.e("s_waitcnt lgkmcnt(0)")
            x=R4(xf+4*kk)
            for t in range(3):
                w=R4(wf[buf][t]); c=R16(acc[t])
                if t<2: a.e(f"{MF} {c}, {w}, {x}, {c}")
                else:   a.e(f"{MF} {c}, {x}, {w}, {c}")
            for _ in range((2,2,1,1)[kk]):
                if ops: ops.pop(0)()
    stamp(a,4)
    a.e(f"""
    s_lshl_b32 s11, s10, 12
    s_mov_b32 s67, {hex(f2u(QSCALE))}
    s_mov_b32 s68, 0
    s_mov_b32 s69, -1
    s_mov_b32 s70, 0xf0000000
    s_mov_b32 s71, 0xf0000000
    s_nop 7
    """)
    for t in (1,2):
        for i in range(8): a.e(f"v_cvt_pk_bf16_f32 v{acc[t]+i}, v{acc[t]+2*i}, v{acc[t]+2*i+1}")
    a.e(f"""
    s_mov_b64 exec, s[68:69]
    v_mov_b32 v{acc[1]+6}, 0x3f80
    v_mov_b32 v{acc[1]+7}, 0
    s_mov_b64 exec, s[70:71]
    """)
    for i in range(8): a.e(f"v_mov_b32 v{acc[2]+i}, v{vOnes}")
    a.e("s_mov_b64 exec, -1")
    a.e(f"s_lshl_b32 s3, s9, 12\nv_add_u32 v5, s3, v{vL}")
    for t in (1,2):
        for c in range(2):
            r=acc[t]+4*c
            a.e(f"buffer_store_dwordx4 {R4(r)}, v{vL}, s[{SKV}:{SKV+3}], s11 offen offset:{(t-1)*2048+c*1024} sc1")
    a.e(f"""
    v_mul_f32 v6, {hex(f2u(-math.log2(math.e)))}, v{acc[0]+12}
    v_exp_f32 v6, v6
    s_nop 0
    v_add_f32 v6, 1.0, v6
    v_rcp_f32 v6, v6
    s_nop 0
    v_sub_f32 v7, 1.0, v6
    s_cmp_eq_u32 s7, 0
    s_cselect_b64 vcc, -1, 0
    v_cndmask_b32 v6, v7, v6, vcc
    """)
    for r in range(16): a.e(f"v_mul_f32 v{acc[0]+r}, s67, v{acc[0]+r}")
    for i in range(8): a.e(f"v_cvt_pk_bf16_f32 v{acc[0]+i}, v{acc[0]+2*i}, v{acc[0]+2*i+1}")
    a.e(f"""
    s_lshl_b32 s3, s9, 11
    s_add_u32 s3, s3, {QX}
    v_add_u32 v7, s3, v{vL}
    s_lshl_b32 s3, s9, 7
    s_add_u32 s3, s3, {GX-128}
    v_lshl_add_u32 v8, v{vLane}, 2, s3
    s_mov_b64 exec, s[68:69]
    v_mov_b32 v{acc[0]+6}, 0
    v_mov_b32 v{acc[0]+7}, 0
    s_mov_b64 exec, -1
    s_barrier
    """)
    for t in (1,2):
        for c in range(2):
            a.e(f"ds_write_b128 v5, {R4(acc[t]+4*c)} offset:{(t-1)*2048+c*1024}")
    for c in range(2): a.e(f"ds_write_b128 v7, {R4(acc[0]+4*c)} offset:{c*1024}")
    a.e(f"""
    s_mov_b64 exec, s[68:69]
    ds_write_b32 v8, v6
    s_mov_b64 exec, -1
    v_mov_b32 v5, {FLAG}
    v_mov_b32 v6, 0
    ds_write_b32 v5, v6
    """)
    Q=[[16,20],[24,28]]; S=[32,48]; P=64; kA=72; kB=76; vA=80; vB=84; O=[88,104]; vM=[8,14]; vR0=9; vR2=13
    a.e(f"""
    s_and_b32 s62, s9, 3
    s_lshr_b32 s63, s9, 2
    s_lshl_b32 s64, s62, 1
    s_add_u32 s64, s64, s63
    s_lshl_b32 s3, s63, 14
    v_add_u32 v{vR0}, s3, v{vL}
    v_add_u32 v{vR2}, 65536, v{vR0}
    s_lshl_b32 s57, s9, 10
    v_lshlrev_b32 v10, 7, v{vLane}
    s_lshl_b32 s61, s5, 10
    s_add_u32 s61, s61, {WS_FKV}
    s_waitcnt vmcnt(0) lgkmcnt(0)
    s_barrier
    """)
    stamp(a,5)
    def gettag():
        a.label(f"{L}_tag")
        a.e(f"""
        v_readfirstlane_b32 s71, v121
        s_nop 3
        s_cmp_lg_u32 s71, 0
        s_cbranch_scc1 {L}_tagok
        s_sleep 2
        buffer_load_dword v121, v120, s[{SDB}:{SDB+3}], 0 offen sc1
        s_waitcnt vmcnt(0)
        s_branch {L}_tag
        """)
        a.label(f"{L}_tagok")
    def poll_check(soff,mask_lo,tag,first_issued):
        a.e(f"s_mov_b32 exec_lo, {mask_lo}\ns_mov_b32 exec_hi, 0")
        if first_issued: a.e(f"s_branch {L}_pchk{tag}")
        a.label(f"{L}_poll{tag}")
        a.e(f"buffer_load_dword v12, v10, s[{SWS}:{SWS+3}], {soff} offen sc1")
        a.label(f"{L}_pchk{tag}")
        a.e(f"""
        s_waitcnt vmcnt(0)
        v_cmp_ne_u32 vcc, s71, v12
        s_nop 1
        s_cmp_eq_u64 vcc, 0
        s_cbranch_scc1 {L}_pdone{tag}
        s_sleep 2
        s_branch {L}_poll{tag}
        """)
        a.label(f"{L}_pdone{tag}")
        a.e("s_mov_b64 exec, -1")
    def signal(soff,tag):
        a.e(f"""
        s_cmp_lg_u32 s9, 0
        s_cbranch_scc1 {L}_nosig{tag}
        v_mov_b32 v12, s71
        s_mov_b64 exec, 1
        buffer_store_dword v12, v120, s[{SWS}:{SWS+3}], {soff} offen sc1
        s_mov_b64 exec, -1
        """)
        a.label(f"{L}_nosig{tag}")
    gettag()
    a.e("s_lshl_b32 s3, s6, 7\ns_add_u32 s3, s3, s61")
    signal("s3","kv")
    a.e(f"""
    s_lshl_b32 s3, s64, 11
    s_add_u32 s3, s3, {QX}
    v_add_u32 v5, s3, v{vL}
    v_xor_b32 v6, 2048, v5
    ds_read_b128 {R4(Q[0][0])}, v5
    ds_read_b128 {R4(Q[0][1])}, v5 offset:1024
    ds_read_b128 {R4(Q[1][0])}, v6
    ds_read_b128 {R4(Q[1][1])}, v6 offset:1024
    ds_read_b128 {R4(kA)}, v{vL}
    ds_read_b128 {R4(kB)}, v{vL} offset:1024
    s_lshl_b32 s3, s64, 7
    s_add_u32 s3, s3, {GX}
    v_and_b32 v7, 31, v{vLane}
    v_lshl_add_u32 v7, v7, 2, s3
    ds_read_b32 v{vGate}, v7
    s_waitcnt lgkmcnt(0)
    """)
    assert QX%4096==0
    for X in range(2):
        a.e(f"{MF} {R16(S[X])}, {R4(kA)}, {R4(Q[X][0])}, 0")
        a.e(f"{MF} {R16(S[X])}, {R4(kB)}, {R4(Q[X][1])}, {R16(S[X])}")
    def toff(s,j):
        slot=s%3
        return (vR0,slot*32768+j*4096) if slot<2 else (vR2,j*4096)
    def rdk(r,s,j,o):
        b,off=toff(s,j)
        a.e(f"ds_read_b128 {R4(r)}, v{b} offset:{off+o}")
    rdk(kA,0,0,0); rdk(kB,0,0,1024); rdk(vA,0,0,2048)
    for r in range(32): a.e(f"v_mov_b32 v{O[0]+r}, 0")
    a.e("s_mov_b64 s[58:59], 0\ns_mov_b32 s60, 0x45000000")
    for X in range(2):
        s0=S[X]; m=vM[X]
        a.e(f"v_max3_f32 v{m}, v{s0}, v{s0+1}, v{s0+2}")
        for i in range(3,15,2): a.e(f"v_max3_f32 v{m}, v{m}, v{s0+i}, v{s0+i+1}")
        a.e(f"""
        v_max_f32 v{m}, v{m}, v{s0+15}
        v_mov_b32 v5, v{m}
        s_nop 0
        v_mov_b32 v6, v{m}
        s_nop 1
        v_permlane32_swap_b32 v5, v6
        s_nop 1
        v_max_f32 v{m}, v5, v6
        v_cmp_nge_f32 vcc, s60, abs(v{m})
        v_lshrrev_b32 v5, 16, v{m}
        v_xor_b32 v5, 0x8000, v5
        s_or_b64 s[58:59], s[58:59], vcc
        s_mov_b64 exec, s[68:69]
        v_mov_b32 v{Q[X][1]+2}, v5
        s_mov_b64 exec, -1
        """)
    a.e("s_waitcnt lgkmcnt(0)")
    a.e(f"{MF} {R16(S[0])}, {R4(kA)}, {R4(Q[0][0])}, 0")
    a.e(f"{MF} {R16(S[0])}, {R4(kB)}, {R4(Q[0][1])}, {R16(S[0])}")
    a.e("s_nop 7\ns_nop 3")
    def dma_stage_ops(s):
        slot=s%3
        def first():
            a.e(f"s_add_u32 s55x, s6, {s}")
        ops=[]
        for i in range(4):
            def op(i=i):
                if i==0: a.e(f"s_add_u32 s58x, s6, {s}\ns_and_b32 s58x, s58x, 7\ns_lshl_b32 s58x, s58x, 15".replace("s58x","s70"))
                a.e(f"""
                s_add_u32 m0, s57, {slot*32768+i*8192}
                s_add_u32 s65, s70, {i*8192}
                buffer_load_dwordx4 v{vD}, s[{SKV}:{SKV+3}], s65 offen {DMASC} lds
                """)
            ops.append(op)
        return ops
    def dma_stage(s):
        for op in dma_stage_ops(s): op()
    SWA=40; SWB=44; SO=48; vD3=15
    a.e(f"""
    s_mul_i32 s3, s5, 37
    s_lshr_b32 s4, s3, 8
    s_mul_i32 s3, s4, 7
    s_sub_u32 s3, s5, s3
    s_lshl_b32 s11, s6, 2
    s_add_u32 s4, s4, s11
    s_lshl_b32 s56, s3, 7
    v_lshrrev_b32 v6, 3, v{vLane}
    v_mul_u32_u24 v6, 896, v6
    v_and_b32 v7, 7, v{vLane}
    v_bfe_u32 v5, v{vLane}, 4, 1
    v_lshlrev_b32 v5, 2, v5
    v_xor_b32 v7, v7, v5
    v_lshl_add_u32 v{vD3}, v7, 4, v6
    """)
    srd(a,SWA,"s20","s21",WOB); srd(a,SWB,"s26","s27",WOB); srd(a,SO,"s30","s31",XB)
    wo_ctr=[0]
    def dma_wo(sw,ldsbase,m,tag):
        a.e(f"""
        s_add_u32 s65, s9, {8*m}
        s_cmp_ge_u32 s65, 58
        s_cbranch_scc1 {L}_wo{tag}
        s_cmp_ge_u32 s65, 29
        s_cselect_b32 s66, 29, 0
        s_cselect_b32 s67, {224*896}, 0
        s_cselect_b32 s60, 29696, 0
        s_sub_u32 s65, s65, s66
        s_lshl_b32 s66, s65, 10
        s_add_u32 s66, s66, s60
        s_add_u32 m0, s66, {ldsbase}
        s_mul_i32 s65, s65, {8*896}
        s_add_u32 s65, s65, s67
        s_add_u32 s65, s65, s56
        buffer_load_dwordx4 v{vD3}, s[{sw}:{sw+3}], s65 offen lds
        """)
        a.label(f"{L}_wo{tag}")
    units=[(s,j,X) for s in range(8) for j in range(4) for X in (0,1)]
    outst=[]; deferred=[]
    def rd(name,r,s,j,o):
        rdk(r,s,j,o); outst.append(name)
    def need(name):
        if name in outst:
            idx=outst.index(name); a.e(f"s_waitcnt lgkmcnt({len(outst)-idx-1})"); del outst[:idx+1]
    a.loopstart=len(a.lines)
    for n,(s,j,X) in enumerate(units):
        sc=S[n%2]; sn=S[(n+1)%2]
        nxt=units[n+1] if n+1<64 else None
        prv=units[n-1] if n>0 else None
        nt=(s,j+1) if j<3 else ((s+1,0) if s<7 else None)
        if n==2:
            a.e(f"s_mov_b32 exec_lo, 0xff\ns_mov_b32 exec_hi, 0\nbuffer_load_dword v12, v10, s[{SWS}:{SWS+3}], s61 offen sc1\ns_mov_b64 exec, -1")
        if n==4:
            poll_check("s61","0xff","kv",True)
            stamp(a,3)
            dma_stage(1)
        if j==3 and X==0 and s<7:
            a.e("s_waitcnt vmcnt(0)\ns_barrier")
            if STG and DBG:
                stampS(a,3+s); outst.clear()
            if s+2<8: deferred+=dma_stage_ops(s+2)
            if 1<=s<=4:
                deferred+=[lambda s=s: dma_wo(SWA,WOA,2*(s-1),f"a{s}0"), lambda s=s: dma_wo(SWA,WOA,2*(s-1)+1,f"a{s}1")]
        a.e(f"s_setprio {3-((n-6)%8)//2}")
        def grp(g):
            for k in range(4): a.e(f"v_exp_f32 v{sc+4*g+k}, v{sc+4*g+k}")
            a.e(f"v_cvt_pk_bf16_f32 v{P+2*g}, v{sc+4*g}, v{sc+4*g+1}")
            a.e(f"v_cvt_pk_bf16_f32 v{P+2*g+1}, v{sc+4*g+2}, v{sc+4*g+3}")
        ORD=os.environ.get("ORD","0")
        def E(g,ks=range(4)):
            for k in ks: a.e(f"v_exp_f32 v{sc+4*g+k}, v{sc+4*g+k}")
        def C(g,base=None):
            b=sc if base is None else base
            a.e(f"v_cvt_pk_bf16_f32 v{P+2*g}, v{b+4*g}, v{b+4*g+1}")
            a.e(f"v_cvt_pk_bf16_f32 v{P+2*g+1}, v{b+4*g+2}, v{b+4*g+3}")
        def M1():
            if nxt:
                need("kA"); a.e(f"{MF} {R16(sn)}, {R4(kA)}, {R4(Q[nxt[2]][0])}, 0")
            if X==0 and nt: rd("kA",kA,nt[0],nt[1],0)
        def M2():
            if nxt:
                need("kB"); a.e(f"{MF} {R16(sn)}, {R4(kB)}, {R4(Q[nxt[2]][1])}, {R16(sn)}")
            if X==0 and nt: rd("kB",kB,nt[0],nt[1],1024)
        def M3():
            if prv:
                need("vB"); a.e(f"{MF} {R16(O[prv[2]])}, {R4(vB)}, {R4(P+4)}, {R16(O[prv[2]])}")
            if X==0: rd("vB",vB,s,j,3072)
        def M4():
            need("vA"); a.e(f"{MF} {R16(O[X])}, {R4(vA)}, {R4(P)}, {R16(O[X])}")
            if X==1 and nt: rd("vA",vA,nt[0],nt[1],2048)
        if ORD=="0":
            M1(); E(0); C(0); M2(); E(1,(0,1))
            if deferred: deferred.pop(0)()
            E(1,(2,3)); C(1); M3(); E(2); C(2); M4(); E(3); C(3)
        elif ORD=="1":
            if prv: C(3,sn)
            M1(); E(0)
            M2(); E(1); C(0)
            if prv: a.e("s_nop 0") if False else None
            M3(); E(2); C(1)
            E(3,(0,1)); M4(); E(3,(2,3)); C(2)
            if n==63: C(3)
    a.loopend=len(a.lines)
    a.e("s_setprio 0")
    stamp(a,6)
    a.e("s_nop 1")
    a.e(f"{MF} {R16(O[1])}, {R4(vB)}, {R4(P+4)}, {R16(O[1])}")
    a.e("s_nop 15")
    a.e(f"v_mul_f32 v7, 0, v{O[0]}")
    for r in range(1,32): a.e(f"v_fmac_f32 v7, 0, v{O[0]+r}")
    a.e(f"""
    v_cmp_u_f32 vcc, v7, v7
    s_nop 0
    s_or_b64 s[58:59], s[58:59], vcc
    v_max_f32 v7, v{O[0]+12}, v{O[1]+12}
    v_cmp_nge_f32 vcc, 0x4e000000, v7
    s_nop 0
    s_and_b64 vcc, vcc, s[68:69]
    s_or_b64 s[58:59], s[58:59], vcc
    v_mov_b32 v5, {FLAG}
    v_mov_b32 v7, 1
    s_cmp_eq_u64 s[58:59], 0
    s_cbranch_scc1 {L}_ok
    ds_write_b32 v5, v7
    """)
    a.label(f"{L}_ok")
    a.e(f"""
    s_waitcnt lgkmcnt(0)
    s_barrier
    s_lshl_b32 s3, s9, 12
    v_add_u32 v6, s3, v{vL}
    """)
    for g in range(4): a.e(f"ds_write_b128 v6, {R4(O[1]+4*g)} offset:{g*1024}")
    a.e(f"""
    v_xor_b32 v6, 16384, v6
    ds_read_b32 v7, v5
    s_waitcnt lgkmcnt(0)
    v_readfirstlane_b32 s60, v7
    s_barrier
    s_cmp_lg_u32 s60, 0
    s_cbranch_scc1 {L}_slow
    """)
    for g in range(4): a.e(f"ds_read_b128 {R4(O[1]+4*g)}, v6 offset:{g*1024}")
    a.e("s_waitcnt lgkmcnt(0)")
    for r in range(16): a.e(f"v_add_f32 v{O[0]+r}, v{O[0]+r}, v{O[1]+r}")
    a.label(f"{L}_final")
    Of=O[0]
    a.e(f"v_mov_b32 v5, v{Of+12}\nv_mov_b32 v6, v{Of+12}\ns_nop 1\nv_permlane32_swap_b32 v5, v6")
    a.e(f"""
    v_rcp_f32 v6, v6
    s_nop 0
    v_mul_f32 v6, v6, v{vGate}
    """)
    for r in range(16): a.e(f"v_mul_f32 v{Of+r}, v{Of+r}, v6")
    for i in range(8): a.e(f"v_cvt_pk_bf16_f32 v{Of+i}, v{Of+2*i}, v{Of+2*i+1}")
    a.e(f"""
    s_lshl_b32 s11, s5, 17
    s_lshl_b32 s3, s6, 3
    s_add_u32 s3, s3, s64
    s_lshl_b32 s3, s3, 11
    s_add_u32 s11, s11, s3
    s_add_u32 s11, s11, {WS_O}
    s_mov_b64 exec, s[68:69]
    v_mov_b32 v{Of+6}, 0
    v_mov_b32 v{Of+7}, 0
    s_mov_b64 exec, -1
    s_lshl_b32 s59, s6, 12
    s_add_u32 s59, s59, {WS_FO}
    s_lshl_b32 s3, s5, 7
    s_add_u32 s3, s3, s59
    buffer_store_dwordx4 {R4(Of)}, v{vL}, s[{SWS}:{SWS+3}], s11 offen sc1
    buffer_store_dwordx4 {R4(Of+4)}, v{vL}, s[{SWS}:{SWS+3}], s11 offen offset:1024 sc1
    s_waitcnt vmcnt(0) lgkmcnt(0)
    s_barrier
    """)
    signal("s3","o")
    stamp(a,7)
    a.e(f"s_cmp_ge_u32 s5, 28\ns_cbranch_scc1 {L}_end")
    of=16; wfo=[[80,84],[88,92]]; acc3=[96,112]; vA3=[14,15]
    for m in range(8): dma_wo(SWB,0,m,f"b{m}")
    a.e(f"""
    s_and_b32 s60, s9, 1
    s_lshr_b32 s61, s9, 1
    v_lshrrev_b32 v6, 4, v{vLane}
    v_and_b32 v7, 1, v6
    v_lshrrev_b32 v6, 1, v6
    v_bfe_u32 v5, v{vLane}, 2, 2
    v_lshl_add_u32 v6, v6, 2, v5
    v_lshlrev_b32 v6, 7, v6
    v_lshrrev_b32 v5, 1, v5
    v_lshl_add_u32 v6, v5, 6, v6
    v_lshl_add_u32 v6, v7, 5, v6
    v_and_b32 v7, 3, v{vLane}
    v_lshl_add_u32 v6, v7, 3, v6
    s_and_b32 s63, s61, 1
    s_mul_i32 s63, s63, 29696
    s_cmp_lt_u32 s61, 2
    s_cselect_b32 s62, {WOA}, 0
    s_add_u32 s62, s62, s63
    v_add_u32 v{vA3[0]}, s62, v6
    v_xor_b32 v{vA3[1]}, 64, v{vA3[0]}
    s_lshl_b32 s62, s4, 1
    s_add_u32 s62, s62, s60
    s_lshl_b32 s62, s62, 11
    s_lshl_b32 s63, s61, 20
    s_add_u32 s62, s62, s63
    s_add_u32 s62, s62, {WS_O}
    """)
    for r in range(32): a.e(f"v_mov_b32 v{acc3[0]+r}, 0")
    a.e(f"s_cmp_lg_u32 s9, 0\ns_cbranch_scc1 {L}_nopoll")
    poll_check("s59","-1","o",False)
    a.label(f"{L}_nopoll")
    a.e("s_waitcnt vmcnt(0)\ns_barrier")
    stamp(a,8)
    for i in range(8):
        a.e(f"s_add_u32 s63, s62, {i*131072}")
        for c in range(2):
            a.e(f"buffer_load_dwordx4 {R4(of+8*i+4*c)}, v{vL}, s[{SWS}:{SWS+3}], s63 offen offset:{c*1024} sc1")
    def wr(step,buf):
        i,c=step//2,step%2
        o=(i*28+16*c)*128
        for nt in range(2):
            r=wfo[buf][nt]
            a.e(f"ds_read_b64_tr_b16 v[{r}:{r+1}], v{vA3[nt]} offset:{o}")
            a.e(f"ds_read_b64_tr_b16 v[{r+2}:{r+3}], v{vA3[nt]} offset:{o+1024}")
    wr(0,0)
    for step in range(16):
        buf=step&1
        if step<15:
            wr(step+1,buf^1); a.e(f"s_waitcnt vmcnt({15-step}) lgkmcnt(4)")
        else: a.e("s_waitcnt vmcnt(0) lgkmcnt(0)")
        i,c=step//2,step%2
        for nt in range(2):
            cc=R16(acc3[nt])
            a.e(f"{MF} {cc}, {R4(wfo[buf][nt])}, {R4(of+8*i+4*c)}, {cc}")
    a.e("s_nop 15\ns_barrier")
    stamp(a,9)
    a.e(f"s_lshl_b32 s62, s9, 13\nv_add_u32 v6, s62, v{vL}")
    for nt in range(2):
        for g in range(4):
            a.e(f"ds_write_b128 v6, {R4(acc3[nt]+4*g)} offset:{nt*4096+g*1024}")
    a.e(f"""
    s_waitcnt lgkmcnt(0)
    s_barrier
    s_lshr_b32 s61, s9, 1
    s_and_b32 s61, s61, 1
    s_lshr_b32 s57, s9, 2
    s_lshl_b32 s62, s60, 13
    s_lshl_b32 s63, s61, 12
    s_add_u32 s62, s62, s63
    s_lshl_b32 s63, s57, 11
    s_add_u32 s62, s62, s63
    v_add_u32 v6, s62, v{vL}
    """)
    for kq in range(4):
        if kq==2: a.e(f"v_add_u32 v6, {4*8192}, v6")
        for g in range(2):
            a.e(f"ds_read_b128 {R4(16+kq*8+g*4)}, v6 offset:{(kq&1)*16384+g*1024}")
    a.e("s_waitcnt lgkmcnt(0)")
    for k in range(8):
        a.e(f"v_add_f32 v{16+k}, v{16+k}, v{24+k}")
        a.e(f"v_add_f32 v{32+k}, v{32+k}, v{40+k}")
    for k in range(8): a.e(f"v_add_f32 v{16+k}, v{16+k}, v{32+k}")
    a.e(f"""
    v_cvt_pk_bf16_f32 v48, v16, v17
    v_cvt_pk_bf16_f32 v49, v18, v19
    v_cvt_pk_bf16_f32 v50, v20, v21
    v_cvt_pk_bf16_f32 v51, v22, v23
    v_and_b32 v6, 31, v{vLane}
    v_lshrrev_b32 v7, 5, v{vLane}
    v_permlane32_swap_b32 v48, v50
    v_permlane32_swap_b32 v49, v51
    v_mul_u32_u24 v6, 896, v6
    v_lshl_add_u32 v6, v7, 4, v6
    s_lshl_b32 s62, s4, 1
    s_add_u32 s62, s62, s60
    s_mul_i32 s62, s62, {32*896}
    s_add_u32 s62, s62, s56
    s_lshl_b32 s63, s61, 6
    s_add_u32 s62, s62, s63
    s_lshl_b32 s63, s57, 5
    s_add_u32 s62, s62, s63
    buffer_store_dwordx4 v[48:51], v6, s[{SO}:{SO+3}], s62 offen
    """)
    a.label(f"{L}_end")
    if DBG:
        a.e("s_waitcnt vmcnt(0)"); stamp(a,10); stamp_rt(a,11); stamp_out(a,13,SWS,60,"f"); stamp_dbg(a,12,SDB,60)
    a.label(f"{L}_done")
    a.e("s_endpgm")
    a.label(f"{L}_slow")
    m=vM[0]; Os=O[0]; sc=S[0]; q0=Q[0][0]; q1=Q[0][1]
    a.e(f"""
    s_mov_b64 exec, s[68:69]
    v_mov_b32 v{q1+2}, 0
    s_mov_b64 exec, -1
    v_mov_b32 v{m}, 0xff800000
    s_mov_b32 s60, 0
    """)
    for r in range(16): a.e(f"v_mov_b32 v{Os+r}, 0")
    a.label(f"{L}_sloop")
    sl0=len(a.lines)
    a.e("s_lshl_b32 s66, s60, 15")
    for i in range(4):
        a.e(f"""
        s_add_u32 m0, s57, {i*8192}
        s_add_u32 s65, s66, {i*8192}
        buffer_load_dwordx4 v{vD}, s[{SKV}:{SKV+3}], s65 offen {DMASC} lds
        """)
    a.e("s_waitcnt vmcnt(0)\ns_barrier")
    a.e(f"v_mov_b32 v14, v{vL}\ns_mov_b32 s62, 8")
    a.label(f"{L}_sin")
    sl1=len(a.lines)
    a.e(f"""
    ds_read_b128 {R4(kA)}, v14
    ds_read_b128 {R4(kB)}, v14 offset:1024
    ds_read_b128 {R4(vA)}, v14 offset:2048
    ds_read_b128 {R4(vB)}, v14 offset:3072
    s_waitcnt lgkmcnt(0)
    v_add_u32 v14, 4096, v14
    {MF} {R16(sc)}, {R4(kA)}, {R4(q0)}, 0
    {MF} {R16(sc)}, {R4(kB)}, {R4(q1)}, {R16(sc)}
    s_nop 15
    v_max3_f32 v5, v{sc}, v{sc+1}, v{sc+2}
    """)
    for k in range(3,15,2): a.e(f"v_max3_f32 v5, v5, v{sc+k}, v{sc+k+1}")
    a.e(f"""
    v_max_f32 v5, v5, v{sc+15}
    s_nop 0
    v_mov_b32 v6, v5
    s_nop 1
    v_permlane32_swap_b32 v5, v6
    s_nop 1
    v_max3_f32 v5, v5, v6, v{m}
    v_sub_f32 v6, v{m}, v5
    v_exp_f32 v6, v6
    v_mov_b32 v{m}, v5
    """)
    for r in range(16): a.e(f"v_sub_f32 v{sc+r}, v{sc+r}, v5")
    for r in range(16): a.e(f"v_exp_f32 v{sc+r}, v{sc+r}")
    for r in range(16): a.e(f"v_mul_f32 v{Os+r}, v{Os+r}, v6")
    for k in range(8): a.e(f"v_cvt_pk_bf16_f32 v{P+k}, v{sc+2*k}, v{sc+2*k+1}")
    a.e(f"""
    s_nop 1
    {MF} {R16(Os)}, {R4(vA)}, {R4(P)}, {R16(Os)}
    {MF} {R16(Os)}, {R4(vB)}, {R4(P+4)}, {R16(Os)}
    s_nop 15
    s_sub_u32 s62, s62, 1
    s_cmp_lg_u32 s62, 0
    s_cbranch_scc1 {L}_sin
    """)
    sl2=len(a.lines)
    a.e(f"""
    s_barrier
    s_add_u32 s60, s60, 1
    s_cmp_lt_u32 s60, 8
    s_cbranch_scc1 {L}_sloop
    s_branch {L}_final
    """)
    a.loops=[(sl1,sl2)]
    return dict(vgpr=128,sgpr=(100 if DBG else 72),lds=LDS_TOTAL,grid=256,block=512)

HDR=open("cdna_kernels/"+NAME+".s.ref").read().split("; Override")[0]
def build(path):
    name=NAME+"_kernel"
    a=Asm(); info=fused(a)
    errs=check(a.lines,name)
    for (s,e) in a.loops: errs+=check(a.lines[s:e]+a.lines[s:e],name+"-loop")
    t=HDR+f"; @launch grid=({info['grid']},1,1) block=({info['block']},1,1) lds={info['lds']}\n"
    t+='.amdgcn_target "amdgcn-amd-amdhsa--gfx950"\n.text\n'
    t+=f".globl {name}\n.p2align 8\n.type {name},@function\n{name}:\n"+a.text()
    t+=f""".section .rodata,"a"
.p2align 6
.amdhsa_kernel {name}
  .amdhsa_next_free_vgpr {info['vgpr']}
  .amdhsa_next_free_sgpr {info['sgpr']}
  .amdhsa_accum_offset {info['vgpr']}
  .amdhsa_group_segment_fixed_size 0
  .amdhsa_kernarg_size 80
  .amdhsa_user_sgpr_count 2
  .amdhsa_user_sgpr_kernarg_segment_ptr 1
  .amdhsa_system_sgpr_workgroup_id_x 1
.end_amdhsa_kernel
"""
    open(path,"w").write(t)
    open("launch.txt","w").write(f"{name} {info['grid']} {info['block']} {info['lds']}\n")
    for e in errs: print("HAZARD",e)
    print("hazard errors:",len(errs))
if __name__=="__main__":
    if len(sys.argv)>2 and sys.argv[2]=="dbg": DBG=True
    build(sys.argv[1] if len(sys.argv)>1 else "cdna_kernels/"+NAME+".s")
```

```python
import sys, math, struct
from asm import Asm, check
NAME="gated_mix__mha_block__softmax_full_mha__prompt"
WS_KV=0; WS_O=8<<20; WS_FKV=16<<20; WS_FO=(16<<20)+65536; WS_DBG=17<<20; WS_END=(18<<20)
XB=2048*448*2; WB=448*1344*2; WOB=448*448*2
QSCALE=math.log2(math.e)/math.sqrt(28.0)
def f2u(f): return struct.unpack("<I",struct.pack("<f",f))[0]
import os
DBG=False
DMASC=os.environ.get('DMASC','sc1')
STSC=os.environ.get('STSC','sc1')
NST=12
P1DBG=os.environ.get('P1DBG','')
def stamp1(a,i):
    if DBG and P1DBG: a.e(f"s_memtime s[{72+2*i}:{73+2*i}]\ns_waitcnt lgkmcnt(0)")
RTM=os.environ.get('RTM','')
STG=os.environ.get('STG','')
def stampS(a,i):
    if DBG and STG: a.e(f"s_memtime s[{72+2*i}:{73+2*i}]\ns_waitcnt lgkmcnt(0)")
TDBG=os.environ.get('TDBG','')
def stampT(a,i):
    if DBG and TDBG: a.e(f"s_memtime s[{72+2*i}:{73+2*i}]\ns_waitcnt lgkmcnt(0)")
def stamp(a,i):
    if TDBG and i in (2,3,4,5): return
    if STG and i in (2,3,4,5,6,7,8,9):
        if i==5: stampS(a,2)
        if i==6: stampS(a,12)
        return
    if RTM and i in (3,9): return
    if RTM and i==5 and DBG: a.e("s_memrealtime s[78:79]\ns_waitcnt lgkmcnt(0)")
    if RTM and i==6 and DBG: a.e("s_memrealtime s[90:91]\ns_waitcnt lgkmcnt(0)")
    if P1DBG and i in (3,6,7,8,9): return
    if DBG: a.e(f"s_memtime s[{72+2*i}:{73+2*i}]\ns_waitcnt lgkmcnt(0)")
def stamp_rt(a,i):
    if DBG: a.e(f"s_memrealtime s[{72+2*i}:{73+2*i}]\ns_waitcnt lgkmcnt(0)")
def stamp_out(a,n,srdws,t0,tag):
    if not DBG: return
    a.e("s_cmp_lg_u32 s9, 0")
    a.e(f"s_cbranch_scc1 STMP{tag}_skip")
    a.e(f"s_lshl_b32 s70, s2, 6\ns_add_u32 s70, s70, {WS_DBG}")
    a.e(f"s_mov_b64 exec, 1\nv_mov_b32 v{t0+1}, 0")
    for i in range(n):
        a.e(f"v_mov_b32 v{t0}, s{72+2*i}")
        a.e(f"buffer_store_dword v{t0}, v{t0+1}, s[{srdws}:{srdws+3}], s70 offen offset:{4*i}")
        a.e("s_nop 1")
    a.e("s_mov_b64 exec, -1")
    a.label(f"STMP{tag}_skip")
def stamp_dbg(a,n,sdb,t0):
    if not (DBG and os.environ.get('TODBG')): return
    wg=int(os.environ['TODBG'])
    a.e(f"s_cmp_lg_u32 s9, 0\ns_cbranch_scc1 SDBG_skip\ns_cmp_lg_u32 s2, {wg}\ns_cbranch_scc1 SDBG_skip")
    a.e(f"s_mov_b64 exec, 1\nv_mov_b32 v{t0+1}, 0")
    for i in range(2,n):
        if i==11: a.e(f"s_sub_u32 s70, s{72+2*i}, s74")
        else: a.e(f"s_sub_u32 s70, s{72+2*i}, s72")
        a.e(f"v_mov_b32 v{t0}, s70")
        a.e(f"buffer_store_dword v{t0}, v{t0+1}, s[{sdb}:{sdb+3}], 0 offen offset:{4*(i-1)}")
        a.e("s_nop 1")
    a.e("s_mov_b64 exec, -1")
    a.label("SDBG_skip")
def srd(a, d, lo, hi, size):
    a.e(f"s_mov_b32 s{d}, {lo}\ns_mov_b32 s{d+1}, {hi}\ns_mov_b32 s{d+2}, {size}\ns_mov_b32 s{d+3}, 0x20000")
R4=lambda r: f"v[{r}:{r+3}]"
R16=lambda r: f"v[{r}:{r+15}]"
MF="v_mfma_f32_32x32x16_bf16"

def fused(a):
    L="F"
    WLDS=0; XLDS=49152; GLDS=XLDS+8*12288; LDS_TOTAL=163840
    QX=65536; WOA=98304; GX=157696; FLAG=158720
    SX=40; SW=44; SG=48; SWS=52; SKV=36; SDB=12
    vLane=1; vL=2; vD=3; vGate=4
    vX=[10,11]; vXw=[22,23]; xs=128; vW=12; vG=13; vXr=[14,15,16,17]; vWr=[18,19]; vGr=20; vOnes=21
    xf=24; wf=[[40,44,48],[52,56,60]]; acc=[64,80,96]
    a.e(f"s_cmp_ge_u32 s2, 256\ns_cbranch_scc1 {L}_done")
    stamp(a,0); stamp_rt(a,1)
    a.e("""
    s_load_dwordx16 s[16:31], s[0:1], 0
    s_load_dwordx4 s[32:35], s[0:1], 64
    s_lshr_b32 s4, s2, 3
    s_bfe_u32 s7, s2, 0x10002
    s_bfe_u32 s3, s2, 0x10001
    s_lshl_b32 s3, s3, 3
    s_and_b32 s8, s4, 7
    s_add_u32 s8, s8, s3
    s_and_b32 s3, s2, 1
    s_lshl_b32 s3, s3, 2
    s_lshr_b32 s6, s4, 3
    s_add_u32 s6, s6, s3
    s_lshl_b32 s5, s7, 4
    s_add_u32 s5, s5, s8
    """)
    a.e(f"""
    v_and_b32 v{vLane}, 63, v0
    v_lshrrev_b32 v5, 6, v0
    v_lshrrev_b32 v6, 3, v{vLane}
    v_readfirstlane_b32 s9, v5
    v_and_b32 v7, 7, v{vLane}
    v_lshrrev_b32 v5, 4, v{vLane}
    v_xor_b32 v7, v7, v5
    v_mul_u32_u24 v6, 896, v6
    v_lshl_add_u32 v{vX[0]}, v7, 4, v6
    v_xor_b32 v{vX[1]}, 64, v{vX[0]}
    v_mul_u32_u24 v6, 43, v{vLane}
    v_lshrrev_b32 v6, 9, v6
    v_mul_u32_u24 v7, 12, v6
    v_sub_u32 v7, v{vLane}, v7
    v_lshrrev_b32 v5, 2, v7
    v_and_b32 v7, 3, v7
    v_mul_u32_u24 v6, 2688, v6
    v_mul_u32_u24 v5, 896, v5
    v_lshlrev_b32 v7, 4, v7
    v_add3_u32 v{vW}, v6, v7, v5
    v_lshlrev_b32 v{vL}, 4, v{vLane}
    v_lshlrev_b32 v{vD}, 4, v0
    v_and_b32 v6, 31, v{vLane}
    v_lshrrev_b32 v7, 5, v{vLane}
    v_bfe_u32 v5, v{vLane}, 1, 3
    v_xor_b32 v5, v5, v7
    v_lshlrev_b32 v5, 4, v5
    v_lshl_add_u32 v5, v6, 7, v5
    s_mul_i32 s57, s9, 12288
    s_add_u32 s57, s57, {XLDS}
    v_add_u32 v{vXr[0]}, s57, v5
    v_xor_b32 v{vXr[1]}, 32, v{vXr[0]}
    v_xor_b32 v{vXr[2]}, 64, v{vXr[0]}
    v_xor_b32 v{vXr[3]}, 96, v{vXr[0]}
    v_lshlrev_b32 v7, 4, v7
    v_add_u32 v{vGr}, {GLDS}, v7
    v_cmp_eq_u32 vcc, 28, v6
    v_mov_b32 v6, 0x3f803f80
    v_mov_b32 v7, 0
    v_cndmask_b32 v{vOnes}, v7, v6, vcc
    v_lshrrev_b32 v5, 4, v{vLane}
    v_and_b32 v6, 1, v5
    v_lshrrev_b32 v5, 1, v5
    v_bfe_u32 v7, v{vLane}, 2, 2
    v_lshl_add_u32 v5, v5, 3, v7
    v_mul_u32_u24 v5, 192, v5
    v_lshl_add_u32 v5, v6, 5, v5
    v_and_b32 v6, 3, v{vLane}
    v_lshl_add_u32 v{vWr[0]}, v6, 3, v5
    """)
    assert XLDS%128==0
    a.e("""
    s_lshl_b32 s10, s6, 3
    s_add_u32 s10, s10, s9
    s_mul_i32 s56, s10, 28672
    s_mul_i32 s58, s9, 10752
    s_mul_i32 s59, s8, 56
    s_add_u32 s58, s58, s59
    s_mul_i32 s59, s9, 768
    s_mov_b32 s60, 0x10000000
    s_mov_b32 s61, 0x10000000
    s_waitcnt lgkmcnt(0)
    s_cmp_eq_u32 s7, 0
    s_cselect_b32 s38, s18, s24
    s_cselect_b32 s39, s19, s25
    """)
    stamp(a,2)
    srd(a,SX,"s16","s17",XB); srd(a,SW,"s38","s39",WB); srd(a,SG,"s28","s29",896)
    a.e("""
    s_mov_b32 s0, -1
    s_mov_b32 s1, 0xffff
    s_mov_b32 s66, -1
    s_mov_b32 s67, 0xffffff
    """)
    def dmaX1(kc,j):
        slot=kc%3
        a.e(f"""
        s_add_u32 m0, s57, {slot*4096+j*1024}
        s_add_u32 s65, s56, {8*j*896+kc*128}
        buffer_load_dwordx4 v{vX[j&1]}, s[{SX}:{SX+3}], s65 offen lds
        """)
    def dmaW1(kc,i):
        a.e(f"""
        s_mov_b64 exec, s[0:1]
        s_add_u32 m0, s59, {WLDS+(kc%4)*12288+i*6144}
        s_add_u32 s65, s58, {(2*kc+i)*32*2688}
        buffer_load_dwordx4 v{vW}, s[{SW}:{SW+3}], s65 offen lds
        s_mov_b64 exec, -1
        """)
    vmq=[]
    def chunk_ops(kc):
        ops=[]
        for j in range(4): ops.append(lambda j=j: (dmaX1(kc,j), vmq.append(("c",kc))))
        for i in range(2): ops.append(lambda i=i: (dmaW1(kc,i), vmq.append(("c",kc))))
        return ops
    DEPTH=int(os.environ.get("P1DEPTH","2"))
    TD=int(os.environ.get("TOUCHD","0"))
    ST=52
    if TD:
        a.e(f"""
        s_lshr_b32 s3, s2, 3
        s_and_b32 s62, s2, 1
        s_lshl_b32 s62, s62, 10
        s_lshl_b32 s63, s3, 5
        s_add_u32 s62, s62, s63
        s_lshl_b32 s63, s9, 3
        s_add_u32 s62, s62, s63
        v_add_u32 v122, s62, v{vLane}
        v_mul_u32_u24 v122, 896, v122
        s_mul_i32 s62, s3, 24
        s_sub_u32 s63, s9, 4
        s_mul_i32 s63, s63, 6
        s_add_u32 s62, s62, s63
        v_add_u32 v123, s62, v{vLane}
        v_lshrrev_b32 v124, 2, v123
        v_and_b32 v123, 3, v123
        v_mul_u32_u24 v124, 896, v124
        v_lshl_add_u32 v123, v123, 7, v124
        s_bfe_u32 s63, s2, 0x10001
        s_mul_i32 s63, s63, 384
        v_add_u32 v123, s63, v123
        s_cmp_lt_u32 s9, 4
        s_cselect_b64 vcc, -1, 0
        v_cndmask_b32 v122, v123, v122, vcc
        s_cselect_b32 s{ST}, s{SX}, s{SW}
        s_cselect_b32 s{ST+1}, s{SX+1}, s{SW+1}
        s_cselect_b32 s{ST+2}, s{SX+2}, s{SW+2}
        s_mov_b32 s{ST+3}, 0x20000
        s_mov_b32 s64, 172032
        s_cselect_b32 s62, 128, s64
        s_mov_b32 s64, 0xff
        s_cselect_b32 s63, s64, 63
        """)
    def touch(c):
        a.e(f"""
        s_mul_i32 s64, s62, {c}
        s_mov_b32 exec_lo, s63
        s_mov_b32 exec_hi, 0
        buffer_load_dword v123, v122, s[{ST}:{ST+3}], s64 offen
        s_mov_b64 exec, -1
        """)
        vmq.append(("t",c))
    def vmwait(tag):
        idx=max(i for i,t in enumerate(vmq) if t==tag)
        a.e(f"s_waitcnt vmcnt({len(vmq)-idx-1})")
    a.e(f"""
    s_mov_b64 exec, s[66:67]
    s_mov_b32 m0, {GLDS}
    s_nop 0
    buffer_load_dwordx4 v{vL}, s[{SG}:{SG+3}], 0 offen lds
    s_mov_b64 exec, -1
    """)
    PRO=int(os.environ.get("P1PRO",str(DEPTH)))
    for kc in range(PRO):
        for op in chunk_ops(kc): op()
        if kc<PRO-1: a.e("s_barrier")
    if TD:
        for c in range(DEPTH,min(TD,7)): touch(c)
    stamp1(a,3)
    srd(a,SDB,"s32","s33",256)
    a.e(f"""
    s_or_b32 s3, s2, s9
    s_cmp_lg_u32 s3, 0
    s_cbranch_scc1 {L}_notag
    s_memrealtime s[70:71]
    s_waitcnt lgkmcnt(0)
    s_or_b32 s70, s70, 1
    v_mov_b32 v5, s70
    v_mov_b32 v6, 0
    s_mov_b64 exec, 1
    buffer_store_dword v5, v6, s[{SDB}:{SDB+3}], 0 offen sc1
    s_mov_b64 exec, -1
    """)
    a.label(f"{L}_notag")
    a.e("""
    s_lshl_b32 s3, s5, 18
    s_add_u32 s36, s34, s3
    s_addc_u32 s37, s35, 0
    s_mov_b32 s38, 0x40000
    s_mov_b32 s39, 0x20000
    """)
    for r in range(48): a.e(f"v_mov_b32 v{acc[0]+r}, 0")
    def wreads(ks,buf):
        o=((ks//4)%4)*12288+(ks%4)*3072
        for t in range(3):
            r=wf[buf][t]
            a.e(f"ds_read_b64_tr_b16 v[{r}:{r+1}], v{vWr[0]} offset:{o+t*64}")
            a.e(f"ds_read_b64_tr_b16 v[{r+2}:{r+3}], v{vWr[0]} offset:{o+t*64+768}")
        r=wf[buf][0]
        a.e(f"s_mov_b64 exec, s[60:61]\nds_read_b128 v[{r}:{r+3}], v{vGr} offset:{ks*32}\ns_mov_b64 exec, -1")
    for kc in range(7):
        vmwait(("c",kc))
        if kc in (0,1,3,6): stamp1(a,{0:6,1:7,3:8,6:9}[kc])
        if kc==6: a.e(f"v_mov_b32 v120, 0\nbuffer_load_dword v121, v120, s[{SDB}:{SDB+3}], 0 offen sc1")
        for kk in range(4):
            a.e(f"ds_read_b128 {R4(xf+4*kk)}, v{vXr[kk]} offset:{(kc%3)*4096}")
        a.e("s_waitcnt lgkmcnt(0)\ns_barrier")
        wreads(4*kc,0)
        ops=chunk_ops(kc+DEPTH) if kc+DEPTH<7 else []
        if kc==0 and PRO<DEPTH:
            pre=[]
            for c in range(PRO,DEPTH): pre+=chunk_ops(c)
            ops=pre+ops
        nper=max(1,-(-len(ops)//4))
        if TD and kc+TD<7: touch(kc+TD)
        for kk in range(4):
            ks=4*kc+kk; buf=kk&1
            if kk<3:
                wreads(ks+1,buf^1); a.e("s_waitcnt lgkmcnt(7)")
            else: a.e("s_waitcnt lgkmcnt(0)")
            x=R4(xf+4*kk)
            for t in range(3):
                w=R4(wf[buf][t]); c=R16(acc[t])
                if t<2: a.e(f"{MF} {c}, {w}, {x}, {c}")
                else:   a.e(f"{MF} {c}, {x}, {w}, {c}")
            for _ in range(nper):
                if ops: ops.pop(0)()
    srd(a,SWS,"s34","s35",WS_END)
    stamp(a,4)
    a.e(f"""
    s_lshl_b32 s11, s10, 12
    s_mov_b32 s67, {hex(f2u(QSCALE))}
    s_mov_b32 s68, 0
    s_mov_b32 s69, -1
    s_mov_b32 s70, 0xf0000000
    s_mov_b32 s71, 0xf0000000
    s_nop 7
    """)
    for t in (1,2):
        for i in range(8): a.e(f"v_cvt_pk_bf16_f32 v{acc[t]+i}, v{acc[t]+2*i}, v{acc[t]+2*i+1}")
    a.e(f"""
    s_mov_b64 exec, s[68:69]
    v_mov_b32 v{acc[1]+6}, 0x3f80
    v_mov_b32 v{acc[1]+7}, 0
    s_mov_b64 exec, s[70:71]
    """)
    for i in range(8): a.e(f"v_mov_b32 v{acc[2]+i}, v{vOnes}")
    a.e("s_mov_b64 exec, -1")
    a.e(f"s_lshl_b32 s3, s9, 12\nv_add_u32 v5, s3, v{vL}")
    for t in (1,2):
        for c in range(2):
            r=acc[t]+4*c
            a.e(f"buffer_store_dwordx4 {R4(r)}, v{vL}, s[{SKV}:{SKV+3}], s11 offen offset:{(t-1)*2048+c*1024} sc1")
    a.e(f"""
    v_mul_f32 v6, {hex(f2u(-math.log2(math.e)))}, v{acc[0]+12}
    v_exp_f32 v6, v6
    s_nop 0
    v_add_f32 v6, 1.0, v6
    v_rcp_f32 v6, v6
    s_nop 0
    v_sub_f32 v7, 1.0, v6
    s_cmp_eq_u32 s7, 0
    s_cselect_b64 vcc, -1, 0
    v_cndmask_b32 v6, v7, v6, vcc
    """)
    for r in range(16): a.e(f"v_mul_f32 v{acc[0]+r}, s67, v{acc[0]+r}")
    for i in range(8): a.e(f"v_cvt_pk_bf16_f32 v{acc[0]+i}, v{acc[0]+2*i}, v{acc[0]+2*i+1}")
    a.e(f"""
    s_lshl_b32 s3, s9, 11
    s_add_u32 s3, s3, {QX}
    v_add_u32 v7, s3, v{vL}
    s_lshl_b32 s3, s9, 7
    s_add_u32 s3, s3, {GX-128}
    v_lshl_add_u32 v8, v{vLane}, 2, s3
    s_mov_b64 exec, s[68:69]
    v_mov_b32 v{acc[0]+6}, 0
    v_mov_b32 v{acc[0]+7}, 0
    s_mov_b64 exec, -1
    s_barrier
    """)
    for t in (1,2):
        for c in range(2):
            a.e(f"ds_write_b128 v5, {R4(acc[t]+4*c)} offset:{(t-1)*2048+c*1024}")
    for c in range(2): a.e(f"ds_write_b128 v7, {R4(acc[0]+4*c)} offset:{c*1024}")
    a.e(f"""
    s_mov_b64 exec, s[68:69]
    ds_write_b32 v8, v6
    s_mov_b64 exec, -1
    """)
    Q=[[16,20],[24,28]]; S=[32,48]; P=64; kA=72; kB=76; vA=80; vB=84; O=[88,104]; vM=[8,14]; vR0=9; vR2=13
    a.e(f"""
    s_and_b32 s62, s9, 3
    s_lshr_b32 s63, s9, 2
    s_lshl_b32 s64, s62, 1
    s_add_u32 s64, s64, s63
    s_lshl_b32 s3, s63, 14
    v_add_u32 v{vR0}, s3, v{vL}
    v_add_u32 v{vR2}, 65536, v{vR0}
    s_lshl_b32 s57, s9, 10
    v_lshlrev_b32 v10, 7, v{vLane}
    s_lshl_b32 s61, s5, 10
    s_add_u32 s61, s61, {WS_FKV}
    s_waitcnt lgkmcnt(0)
    s_barrier
    """)
    stamp(a,5)
    def gettag():
        a.label(f"{L}_tag")
        a.e(f"""
        v_readfirstlane_b32 s71, v121
        s_nop 3
        s_cmp_lg_u32 s71, 0
        s_cbranch_scc1 {L}_tagok
        s_sleep 2
        buffer_load_dword v121, v120, s[{SDB}:{SDB+3}], 0 offen sc1
        s_waitcnt vmcnt(0)
        s_branch {L}_tag
        """)
        a.label(f"{L}_tagok")
    def poll_check(soff,mask_lo,tag,first_issued):
        a.e(f"s_mov_b32 exec_lo, {mask_lo}\ns_mov_b32 exec_hi, 0")
        if first_issued: a.e(f"s_branch {L}_pchk{tag}")
        a.label(f"{L}_poll{tag}")
        a.e(f"buffer_load_dword v12, v10, s[{SWS}:{SWS+3}], {soff} offen sc1")
        a.label(f"{L}_pchk{tag}")
        a.e(f"""
        s_waitcnt vmcnt(0)
        v_cmp_ne_u32 vcc, s71, v12
        s_nop 1
        s_cmp_eq_u64 vcc, 0
        s_cbranch_scc1 {L}_pdone{tag}
        s_sleep 2
        s_branch {L}_poll{tag}
        """)
        a.label(f"{L}_pdone{tag}")
        a.e("s_mov_b64 exec, -1")
    def signal(soff,tag):
        a.e(f"""
        s_cmp_lg_u32 s9, 0
        s_cbranch_scc1 {L}_nosig{tag}
        v_mov_b32 v12, s71
        s_mov_b64 exec, 1
        buffer_store_dword v12, v120, s[{SWS}:{SWS+3}], {soff} offen sc1
        s_mov_b64 exec, -1
        """)
        a.label(f"{L}_nosig{tag}")
    a.e(f"""
    s_lshl_b32 s3, s64, 11
    s_add_u32 s3, s3, {QX}
    v_add_u32 v5, s3, v{vL}
    v_xor_b32 v6, 2048, v5
    ds_read_b128 {R4(Q[0][0])}, v5
    ds_read_b128 {R4(Q[0][1])}, v5 offset:1024
    ds_read_b128 {R4(Q[1][0])}, v6
    ds_read_b128 {R4(Q[1][1])}, v6 offset:1024
    ds_read_b128 {R4(kA)}, v{vL}
    ds_read_b128 {R4(kB)}, v{vL} offset:1024
    s_lshl_b32 s3, s64, 7
    s_add_u32 s3, s3, {GX}
    v_and_b32 v7, 31, v{vLane}
    v_lshl_add_u32 v7, v7, 2, s3
    ds_read_b32 v{vGate}, v7
    s_waitcnt lgkmcnt(0)
    """)
    assert QX%4096==0
    for X in range(2):
        a.e(f"{MF} {R16(S[X])}, {R4(kA)}, {R4(Q[X][0])}, 0")
        a.e(f"{MF} {R16(S[X])}, {R4(kB)}, {R4(Q[X][1])}, {R16(S[X])}")
    def toff(s,j):
        slot=s%3
        return (vR0,slot*32768+j*4096) if slot<2 else (vR2,j*4096)
    def rdk(r,s,j,o):
        b,off=toff(s,j)
        a.e(f"ds_read_b128 {R4(r)}, v{b} offset:{off+o}")
    rdk(kA,0,0,0); rdk(kB,0,0,1024); rdk(vA,0,0,2048)
    for r in range(32): a.e(f"v_mov_b32 v{O[0]+r}, 0")
    a.e("s_mov_b64 s[58:59], 0\ns_mov_b32 s60, 0x45000000")
    for X in range(2):
        s0=S[X]; m=vM[X]
        a.e(f"v_max3_f32 v{m}, v{s0}, v{s0+1}, v{s0+2}")
        for i in range(3,15,2): a.e(f"v_max3_f32 v{m}, v{m}, v{s0+i}, v{s0+i+1}")
        a.e(f"""
        v_max_f32 v{m}, v{m}, v{s0+15}
        v_mov_b32 v5, v{m}
        s_nop 0
        v_mov_b32 v6, v{m}
        s_nop 1
        v_permlane32_swap_b32 v5, v6
        s_nop 1
        v_max_f32 v{m}, v5, v6
        v_cmp_nge_f32 vcc, s60, abs(v{m})
        v_lshrrev_b32 v5, 16, v{m}
        v_xor_b32 v5, 0x8000, v5
        s_or_b64 s[58:59], s[58:59], vcc
        s_mov_b64 exec, s[68:69]
        v_mov_b32 v{Q[X][1]+2}, v5
        s_mov_b64 exec, -1
        """)
    a.e("s_waitcnt lgkmcnt(0)")
    a.e(f"{MF} {R16(S[0])}, {R4(kA)}, {R4(Q[0][0])}, 0")
    a.e(f"{MF} {R16(S[0])}, {R4(kB)}, {R4(Q[0][1])}, {R16(S[0])}")
    a.e("s_nop 7\ns_nop 3")
    def dma_stage_ops(s):
        slot=s%3
        def first():
            a.e(f"s_add_u32 s55x, s6, {s}")
        ops=[]
        for i in range(4):
            def op(i=i):
                if i==0: a.e(f"s_add_u32 s58x, s6, {s}\ns_and_b32 s58x, s58x, 7\ns_lshl_b32 s58x, s58x, 15".replace("s58x","s70"))
                a.e(f"""
                s_add_u32 m0, s57, {slot*32768+i*8192}
                s_add_u32 s65, s70, {i*8192}
                buffer_load_dwordx4 v{vD}, s[{SKV}:{SKV+3}], s65 offen {DMASC} lds
                """)
            ops.append(op)
        return ops
    def dma_stage(s):
        for op in dma_stage_ops(s): op()
    SWA=40; SWB=44; SO=48; vD3=15
    a.e(f"""
    s_mul_i32 s3, s5, 37
    s_lshr_b32 s4, s3, 8
    s_mul_i32 s3, s4, 7
    s_sub_u32 s3, s5, s3
    s_lshl_b32 s11, s6, 2
    s_add_u32 s4, s4, s11
    s_lshl_b32 s56, s3, 7
    v_lshrrev_b32 v6, 3, v{vLane}
    v_mul_u32_u24 v6, 896, v6
    v_and_b32 v7, 7, v{vLane}
    v_bfe_u32 v5, v{vLane}, 4, 1
    v_lshlrev_b32 v5, 2, v5
    v_xor_b32 v7, v7, v5
    v_lshl_add_u32 v{vD3}, v7, 4, v6
    """)
    srd(a,SWA,"s20","s21",WOB); srd(a,SWB,"s26","s27",WOB); srd(a,SO,"s30","s31",XB)
    wo_ctr=[0]
    def dma_wo(sw,ldsbase,m,tag):
        a.e(f"s_add_u32 s65, s9, {8*m}")
        if m==7: a.e("s_cmp_ge_u32 s65, 58\ns_cselect_b32 s66, 58, 0\ns_sub_u32 s65, s65, s66")
        a.e(f"""
        s_cmp_ge_u32 s65, 29
        s_cselect_b32 s66, 29, 0
        s_cselect_b32 s67, {224*896}, 0
        s_cselect_b32 s60, 29696, 0
        s_sub_u32 s65, s65, s66
        s_lshl_b32 s66, s65, 10
        s_add_u32 s66, s66, s60
        s_add_u32 m0, s66, {ldsbase}
        s_mul_i32 s65, s65, {8*896}
        s_add_u32 s65, s65, s67
        s_add_u32 s65, s65, s56
        buffer_load_dwordx4 v{vD3}, s[{sw}:{sw+3}], s65 offen lds
        """)
    def touch_wob():
        a.e(f"""
        s_mul_i32 s65, s9, {56*896}
        s_add_u32 s65, s65, s56
        v_mul_u32_u24 v5, 896, v{vLane}
        s_mov_b32 exec_lo, -1
        s_mov_b32 exec_hi, 0xffffff
        buffer_load_dword v11, v5, s[{SWB}:{SWB+3}], s65 offen
        s_mov_b64 exec, -1
        """)
    units=[(s,j,X) for s in range(8) for j in range(4) for X in (0,1)]
    outst=[]; deferred=[]
    def rd(name,r,s,j,o):
        rdk(r,s,j,o); outst.append(name)
    def need(name):
        if name in outst:
            idx=outst.index(name); a.e(f"s_waitcnt lgkmcnt({len(outst)-idx-1})"); del outst[:idx+1]
    a.loopstart=len(a.lines)
    for n,(s,j,X) in enumerate(units):
        sc=S[n%2]; sn=S[(n+1)%2]
        nxt=units[n+1] if n+1<64 else None
        prv=units[n-1] if n>0 else None
        nt=(s,j+1) if j<3 else ((s+1,0) if s<7 else None)
        if n==1:
            a.e("s_waitcnt vmcnt(0)\ns_barrier")
            gettag()
            a.e("s_lshl_b32 s3, s6, 7\ns_add_u32 s3, s3, s61")
            signal("s3","kv")
        if n==2:
            a.e(f"s_mov_b32 exec_lo, 0xff\ns_mov_b32 exec_hi, 0\nbuffer_load_dword v12, v10, s[{SWS}:{SWS+3}], s61 offen sc1\ns_mov_b64 exec, -1")
        if n==4:
            poll_check("s61","0xff","kv",True)
            stamp(a,3)
            dma_stage(1)
        if j==3 and X==0 and s<7:
            a.e("s_waitcnt vmcnt(0)\ns_barrier")
            if STG and DBG:
                stampS(a,3+s); outst.clear()
            if s+2<8: deferred+=dma_stage_ops(s+2)
            if s==5: deferred+=[touch_wob]
            if 1<=s<=4:
                deferred+=[lambda s=s: dma_wo(SWA,WOA,2*(s-1),f"a{s}0"), lambda s=s: dma_wo(SWA,WOA,2*(s-1)+1,f"a{s}1")]
        if n<6: pr=3-(n*4)//6
        elif n>=54: pr=3-((n-54)*4)//10
        else: pr=3-((n-6)%8)//2
        a.e(f"s_setprio {pr}")
        def grp(g):
            for k in range(4): a.e(f"v_exp_f32 v{sc+4*g+k}, v{sc+4*g+k}")
            a.e(f"v_cvt_pk_bf16_f32 v{P+2*g}, v{sc+4*g}, v{sc+4*g+1}")
            a.e(f"v_cvt_pk_bf16_f32 v{P+2*g+1}, v{sc+4*g+2}, v{sc+4*g+3}")
        ORD=os.environ.get("ORD","0")
        def E(g,ks=range(4)):
            for k in ks: a.e(f"v_exp_f32 v{sc+4*g+k}, v{sc+4*g+k}")
        def C(g,base=None):
            b=sc if base is None else base
            a.e(f"v_cvt_pk_bf16_f32 v{P+2*g}, v{b+4*g}, v{b+4*g+1}")
            a.e(f"v_cvt_pk_bf16_f32 v{P+2*g+1}, v{b+4*g+2}, v{b+4*g+3}")
        def M1():
            if nxt:
                need("kA"); a.e(f"{MF} {R16(sn)}, {R4(kA)}, {R4(Q[nxt[2]][0])}, 0")
            if X==0 and nt: rd("kA",kA,nt[0],nt[1],0)
        def M2():
            if nxt:
                need("kB"); a.e(f"{MF} {R16(sn)}, {R4(kB)}, {R4(Q[nxt[2]][1])}, {R16(sn)}")
            if X==0 and nt: rd("kB",kB,nt[0],nt[1],1024)
        def M3():
            if prv:
                need("vB"); a.e(f"{MF} {R16(O[prv[2]])}, {R4(vB)}, {R4(P+4)}, {R16(O[prv[2]])}")
            if X==0: rd("vB",vB,s,j,3072)
        def M4():
            need("vA"); a.e(f"{MF} {R16(O[X])}, {R4(vA)}, {R4(P)}, {R16(O[X])}")
            if X==1 and nt: rd("vA",vA,nt[0],nt[1],2048)
        if ORD=="0":
            M1(); E(0); C(0); M2(); E(1,(0,1))
            if deferred: deferred.pop(0)()
            E(1,(2,3)); C(1); M3(); E(2); C(2); M4(); E(3); C(3)
        elif ORD=="1":
            if prv: C(3,sn)
            M1(); E(0)
            M2(); E(1); C(0)
            if prv: a.e("s_nop 0") if False else None
            M3(); E(2); C(1)
            E(3,(0,1)); M4(); E(3,(2,3)); C(2)
            if n==63: C(3)
    a.loopend=len(a.lines)
    a.e("s_setprio 0")
    stamp(a,6)
    a.e("s_nop 1")
    a.e(f"{MF} {R16(O[1])}, {R4(vB)}, {R4(P+4)}, {R16(O[1])}")
    a.e("s_nop 15")
    a.e(f"""
    s_lshl_b32 s3, s9, 12
    s_add_u32 s3, s3, 65536
    v_add_u32 v6, s3, v{vL}
    """)
    for g in range(4): a.e(f"ds_write_b128 v6, {R4(O[1]+4*g)} offset:{g*1024}")
    a.e(f"""
    v_xor_b32 v6, 16384, v6
    s_waitcnt lgkmcnt(0)
    s_barrier
    """)
    stampT(a,2)
    for g in range(4): a.e(f"ds_read_b128 {R4(O[1]+4*g)}, v6 offset:{g*1024}")
    a.e("s_waitcnt lgkmcnt(0)")
    for r in range(16): a.e(f"v_add_f32 v{O[0]+r}, v{O[0]+r}, v{O[1]+r}")
    a.e(f"v_mul_f32 v7, 0, v{O[0]}")
    for r in range(1,16): a.e(f"v_fmac_f32 v7, 0, v{O[0]+r}")
    a.e(f"""
    v_cmp_u_f32 vcc, v7, v7
    s_nop 0
    s_or_b64 s[58:59], s[58:59], vcc
    v_cmp_nge_f32 vcc, 0x4e800000, v{O[0]+12}
    s_nop 0
    s_and_b64 vcc, vcc, s[68:69]
    s_or_b64 s[58:59], s[58:59], vcc
    v_cmp_nle_f32 vcc, 0x35800000, v{O[0]+12}
    s_nop 0
    s_and_b64 vcc, vcc, s[68:69]
    s_or_b64 s[58:59], s[58:59], vcc
    s_cmp_lg_u64 s[58:59], 0
    s_cbranch_scc1 {L}_slow
    """)
    a.label(f"{L}_final")
    Of=O[0]
    a.e(f"v_mov_b32 v5, v{Of+12}\nv_mov_b32 v6, v{Of+12}\ns_nop 1\nv_permlane32_swap_b32 v5, v6")
    a.e(f"""
    v_rcp_f32 v6, v6
    s_nop 0
    v_mul_f32 v6, v6, v{vGate}
    """)
    for r in range(16): a.e(f"v_mul_f32 v{Of+r}, v{Of+r}, v6")
    for i in range(8): a.e(f"v_cvt_pk_bf16_f32 v{Of+i}, v{Of+2*i}, v{Of+2*i+1}")
    a.e(f"""
    s_lshl_b32 s11, s5, 17
    s_lshl_b32 s3, s6, 3
    s_add_u32 s3, s3, s64
    s_lshl_b32 s3, s3, 11
    s_add_u32 s11, s11, s3
    s_add_u32 s11, s11, {WS_O}
    s_mov_b64 exec, s[68:69]
    v_mov_b32 v{Of+6}, 0
    v_mov_b32 v{Of+7}, 0
    s_mov_b64 exec, -1
    s_lshl_b32 s59, s6, 12
    s_add_u32 s59, s59, {WS_FO}
    s_lshl_b32 s3, s5, 7
    s_add_u32 s3, s3, s59
    buffer_store_dwordx4 {R4(Of)}, v{vL}, s[{SWS}:{SWS+3}], s11 offen sc1
    buffer_store_dwordx4 {R4(Of+4)}, v{vL}, s[{SWS}:{SWS+3}], s11 offen offset:1024 sc1
    """)
    stampT(a,3)
    for m in range(8): dma_wo(SWB,0,m,f"b{m}")
    a.e("s_waitcnt vmcnt(8)")
    stampT(a,4)
    a.e("s_barrier")
    signal("s3","o")
    stamp(a,7)
    a.e(f"s_cmp_ge_u32 s5, 28\ns_cbranch_scc1 {L}_end")
    of=16; wfo=[[80,84],[88,92]]; acc3=[96,112]; vA3=[14,15]
    a.e(f"""
    s_and_b32 s60, s9, 1
    s_lshr_b32 s61, s9, 1
    v_lshrrev_b32 v6, 4, v{vLane}
    v_and_b32 v7, 1, v6
    v_lshrrev_b32 v6, 1, v6
    v_bfe_u32 v5, v{vLane}, 2, 2
    v_lshl_add_u32 v6, v6, 2, v5
    v_lshlrev_b32 v6, 7, v6
    v_lshrrev_b32 v5, 1, v5
    v_lshl_add_u32 v6, v5, 6, v6
    v_lshl_add_u32 v6, v7, 5, v6
    v_and_b32 v7, 3, v{vLane}
    v_lshl_add_u32 v6, v7, 3, v6
    s_and_b32 s63, s61, 1
    s_mul_i32 s63, s63, 29696
    s_cmp_lt_u32 s61, 2
    s_cselect_b32 s62, {WOA}, 0
    s_add_u32 s62, s62, s63
    v_add_u32 v{vA3[0]}, s62, v6
    v_xor_b32 v{vA3[1]}, 64, v{vA3[0]}
    s_lshl_b32 s62, s4, 1
    s_add_u32 s62, s62, s60
    s_lshl_b32 s62, s62, 11
    s_lshl_b32 s63, s61, 20
    s_add_u32 s62, s62, s63
    s_add_u32 s62, s62, {WS_O}
    """)
    for r in range(32): a.e(f"v_mov_b32 v{acc3[0]+r}, 0")
    a.e("s_lshl_b32 s3, s61, 10\ns_add_u32 s59, s59, s3")
    a.e("s_waitcnt vmcnt(0)\ns_barrier")
    poll_check("s59","0xff","o",False)
    stamp(a,8)
    for i in range(8):
        a.e(f"s_add_u32 s63, s62, {i*131072}")
        for c in range(2):
            a.e(f"buffer_load_dwordx4 {R4(of+8*i+4*c)}, v{vL}, s[{SWS}:{SWS+3}], s63 offen offset:{c*1024} sc1")
    stampT(a,5)
    def wr(step,buf):
        i,c=step//2,step%2
        o=(i*28+16*c)*128
        for nt in range(2):
            r=wfo[buf][nt]
            a.e(f"ds_read_b64_tr_b16 v[{r}:{r+1}], v{vA3[nt]} offset:{o}")
            a.e(f"ds_read_b64_tr_b16 v[{r+2}:{r+3}], v{vA3[nt]} offset:{o+1024}")
    wr(0,0)
    for step in range(16):
        buf=step&1
        if step<15:
            wr(step+1,buf^1); a.e(f"s_waitcnt vmcnt({15-step}) lgkmcnt(4)")
        else: a.e("s_waitcnt vmcnt(0) lgkmcnt(0)")
        i,c=step//2,step%2
        for nt in range(2):
            cc=R16(acc3[nt])
            a.e(f"{MF} {cc}, {R4(wfo[buf][nt])}, {R4(of+8*i+4*c)}, {cc}")
    a.e("s_nop 15\ns_barrier")
    stamp(a,9)
    a.e(f"s_lshl_b32 s62, s9, 13\nv_add_u32 v6, s62, v{vL}")
    for nt in range(2):
        for g in range(4):
            a.e(f"ds_write_b128 v6, {R4(acc3[nt]+4*g)} offset:{nt*4096+g*1024}")
    a.e(f"""
    s_waitcnt lgkmcnt(0)
    s_barrier
    s_lshr_b32 s61, s9, 1
    s_and_b32 s61, s61, 1
    s_lshr_b32 s57, s9, 2
    s_lshl_b32 s62, s60, 13
    s_lshl_b32 s63, s61, 12
    s_add_u32 s62, s62, s63
    s_lshl_b32 s63, s57, 11
    s_add_u32 s62, s62, s63
    v_add_u32 v6, s62, v{vL}
    """)
    for kq in range(4):
        if kq==2: a.e(f"v_add_u32 v6, {4*8192}, v6")
        for g in range(2):
            a.e(f"ds_read_b128 {R4(16+kq*8+g*4)}, v6 offset:{(kq&1)*16384+g*1024}")
    a.e("s_waitcnt lgkmcnt(0)")
    for k in range(8):
        a.e(f"v_add_f32 v{16+k}, v{16+k}, v{24+k}")
        a.e(f"v_add_f32 v{32+k}, v{32+k}, v{40+k}")
    for k in range(8): a.e(f"v_add_f32 v{16+k}, v{16+k}, v{32+k}")
    a.e(f"""
    v_cvt_pk_bf16_f32 v48, v16, v17
    v_cvt_pk_bf16_f32 v49, v18, v19
    v_cvt_pk_bf16_f32 v50, v20, v21
    v_cvt_pk_bf16_f32 v51, v22, v23
    v_and_b32 v6, 31, v{vLane}
    v_lshrrev_b32 v7, 5, v{vLane}
    v_permlane32_swap_b32 v48, v50
    v_permlane32_swap_b32 v49, v51
    v_mul_u32_u24 v6, 896, v6
    v_lshl_add_u32 v6, v7, 4, v6
    s_lshl_b32 s62, s4, 1
    s_add_u32 s62, s62, s60
    s_mul_i32 s62, s62, {32*896}
    s_add_u32 s62, s62, s56
    s_lshl_b32 s63, s61, 6
    s_add_u32 s62, s62, s63
    s_lshl_b32 s63, s57, 5
    s_add_u32 s62, s62, s63
    buffer_store_dwordx4 v[48:51], v6, s[{SO}:{SO+3}], s62 offen
    """)
    a.label(f"{L}_end")
    if DBG:
        a.e("s_waitcnt vmcnt(0)"); stamp(a,10); stamp_rt(a,11); stamp_out(a,13,SWS,60,"f"); stamp_dbg(a,12,SDB,60)
    a.label(f"{L}_done")
    a.e("s_endpgm")
    a.label(f"{L}_slow")
    m=vM[0]; Os=O[0]; sc=S[0]; q0=Q[0][0]; q1=Q[0][1]
    a.e(f"""
    s_mov_b64 exec, s[68:69]
    v_mov_b32 v{q1+2}, 0
    s_mov_b64 exec, -1
    v_mov_b32 v{m}, 0xff800000
    s_mov_b32 s60, 0
    """)
    for r in range(16): a.e(f"v_mov_b32 v{Os+r}, 0")
    a.label(f"{L}_sin")
    sl1=len(a.lines)
    a.e(f"""
    buffer_load_dwordx4 {R4(kA)}, v{vL}, s[{SKV}:{SKV+3}], s60 offen sc1
    buffer_load_dwordx4 {R4(kB)}, v{vL}, s[{SKV}:{SKV+3}], s60 offen offset:1024 sc1
    buffer_load_dwordx4 {R4(vA)}, v{vL}, s[{SKV}:{SKV+3}], s60 offen offset:2048 sc1
    buffer_load_dwordx4 {R4(vB)}, v{vL}, s[{SKV}:{SKV+3}], s60 offen offset:3072 sc1
    s_waitcnt vmcnt(0)
    {MF} {R16(sc)}, {R4(kA)}, {R4(q0)}, 0
    {MF} {R16(sc)}, {R4(kB)}, {R4(q1)}, {R16(sc)}
    s_nop 15
    v_max3_f32 v5, v{sc}, v{sc+1}, v{sc+2}
    """)
    for k in range(3,15,2): a.e(f"v_max3_f32 v5, v5, v{sc+k}, v{sc+k+1}")
    a.e(f"""
    v_max_f32 v5, v5, v{sc+15}
    s_nop 0
    v_mov_b32 v6, v5
    s_nop 1
    v_permlane32_swap_b32 v5, v6
    s_nop 1
    v_max3_f32 v5, v5, v6, v{m}
    v_sub_f32 v6, v{m}, v5
    v_exp_f32 v6, v6
    v_mov_b32 v{m}, v5
    """)
    for r in range(16): a.e(f"v_sub_f32 v{sc+r}, v{sc+r}, v5")
    for r in range(16): a.e(f"v_exp_f32 v{sc+r}, v{sc+r}")
    for r in range(16): a.e(f"v_mul_f32 v{Os+r}, v{Os+r}, v6")
    for k in range(8): a.e(f"v_cvt_pk_bf16_f32 v{P+k}, v{sc+2*k}, v{sc+2*k+1}")
    a.e(f"""
    s_nop 1
    {MF} {R16(Os)}, {R4(vA)}, {R4(P)}, {R16(Os)}
    {MF} {R16(Os)}, {R4(vB)}, {R4(P+4)}, {R16(Os)}
    s_nop 15
    s_add_u32 s60, s60, 4096
    s_cmp_lt_u32 s60, 0x40000
    s_cbranch_scc1 {L}_sin
    """)
    sl2=len(a.lines)
    a.e(f"s_branch {L}_final")
    a.loops=[(sl1,sl2)]
    return dict(vgpr=128,sgpr=(100 if DBG else 72),lds=LDS_TOTAL,grid=256,block=512)

HDR=open("cdna_kernels/"+NAME+".s.ref").read().split("; Override")[0]
def build(path):
    name=NAME+"_kernel"
    a=Asm(); info=fused(a)
    errs=check(a.lines,name)
    for (s,e) in a.loops: errs+=check(a.lines[s:e]+a.lines[s:e],name+"-loop")
    t=HDR+f"; @launch grid=({info['grid']},1,1) block=({info['block']},1,1) lds={info['lds']}\n"
    t+='.amdgcn_target "amdgcn-amd-amdhsa--gfx950"\n.text\n'
    t+=f".globl {name}\n.p2align 8\n.type {name},@function\n{name}:\n"+a.text()
    t+=f""".section .rodata,"a"
.p2align 6
.amdhsa_kernel {name}
  .amdhsa_next_free_vgpr {info['vgpr']}
  .amdhsa_next_free_sgpr {info['sgpr']}
  .amdhsa_accum_offset {info['vgpr']}
  .amdhsa_group_segment_fixed_size 0
  .amdhsa_kernarg_size 80
  .amdhsa_user_sgpr_count 2
  .amdhsa_user_sgpr_kernarg_segment_ptr 1
  .amdhsa_system_sgpr_workgroup_id_x 1
.end_amdhsa_kernel
"""
    open(path,"w").write(t)
    open("launch.txt","w").write(f"{name} {info['grid']} {info['block']} {info['lds']}\n")
    for e in errs: print("HAZARD",e)
    print("hazard errors:",len(errs))
if __name__=="__main__":
    if len(sys.argv)>2 and sys.argv[2]=="dbg": DBG=True
    build(sys.argv[1] if len(sys.argv)>1 else "cdna_kernels/"+NAME+".s")
```

```python
import sys, math, struct
from asm import Asm, check
NAME="gated_mix__mha_block__softmax_full_mha__prompt"
WS_KV=0; WS_O=8<<20; WS_FKV=16<<20; WS_FO=(16<<20)+65536; WS_DBG=17<<20; WS_END=(18<<20)
XB=2048*448*2; WB=448*1344*2; WOB=448*448*2
QSCALE=math.log2(math.e)/math.sqrt(28.0)
def f2u(f): return struct.unpack("<I",struct.pack("<f",f))[0]
import os
DBG=False
DMASC=os.environ.get('DMASC','sc1')
STSC=os.environ.get('STSC','sc1')
NST=12
P1DBG=os.environ.get('P1DBG','')
def stamp1(a,i):
    if DBG and P1DBG: a.e(f"s_memtime s[{72+2*i}:{73+2*i}]\ns_waitcnt lgkmcnt(0)")
RTM=os.environ.get('RTM','')
STG=os.environ.get('STG','')
FST=os.environ.get('FST','')
def stampF(a,i):
    if DBG and FST: a.e(f"s_memtime s[{72+2*i}:{73+2*i}]\ns_waitcnt lgkmcnt(0)")
def stampS(a,i):
    if DBG and STG: a.e(f"s_memtime s[{72+2*i}:{73+2*i}]\ns_waitcnt lgkmcnt(0)")
TDBG=os.environ.get('TDBG','')
def stampT(a,i):
    if DBG and TDBG: a.e(f"s_memtime s[{72+2*i}:{73+2*i}]\ns_waitcnt lgkmcnt(0)")
def stamp(a,i):
    if FST and i in (2,3,4,5,6,7,8,9):
        if i==5: stampF(a,2)
        return
    if TDBG and i in (2,3,4,5): return
    if STG and i in (2,3,4,5,6,7,8,9):
        if i==5: stampS(a,2)
        if i==6: stampS(a,12)
        return
    if RTM and i in (3,9): return
    if RTM and i==5 and DBG: a.e("s_memrealtime s[78:79]\ns_waitcnt lgkmcnt(0)")
    if RTM and i==6 and DBG: a.e("s_memrealtime s[90:91]\ns_waitcnt lgkmcnt(0)")
    if P1DBG and i in (3,6,7,8,9): return
    if DBG: a.e(f"s_memtime s[{72+2*i}:{73+2*i}]\ns_waitcnt lgkmcnt(0)")
def stamp_rt(a,i):
    if DBG: a.e(f"s_memrealtime s[{72+2*i}:{73+2*i}]\ns_waitcnt lgkmcnt(0)")
def stamp_out(a,n,srdws,t0,tag):
    if not DBG: return
    a.e("s_cmp_lg_u32 s9, 0")
    a.e(f"s_cbranch_scc1 STMP{tag}_skip")
    a.e(f"s_lshl_b32 s70, s2, 6\ns_add_u32 s70, s70, {WS_DBG}")
    a.e(f"s_mov_b64 exec, 1\nv_mov_b32 v{t0+1}, 0")
    for i in range(n):
        a.e(f"v_mov_b32 v{t0}, s{72+2*i}")
        a.e(f"buffer_store_dword v{t0}, v{t0+1}, s[{srdws}:{srdws+3}], s70 offen offset:{4*i}")
        a.e("s_nop 1")
    a.e("s_mov_b64 exec, -1")
    a.label(f"STMP{tag}_skip")
def stamp_dbg(a,n,sdb,t0):
    if not (DBG and os.environ.get('TODBG')): return
    wg=int(os.environ['TODBG'])
    a.e(f"s_cmp_lg_u32 s9, 0\ns_cbranch_scc1 SDBG_skip\ns_cmp_lg_u32 s2, {wg}\ns_cbranch_scc1 SDBG_skip")
    a.e(f"s_mov_b64 exec, 1\nv_mov_b32 v{t0+1}, 0")
    for i in range(2,n):
        if i==11: a.e(f"s_sub_u32 s70, s{72+2*i}, s74")
        else: a.e(f"s_sub_u32 s70, s{72+2*i}, s72")
        a.e(f"v_mov_b32 v{t0}, s70")
        a.e(f"buffer_store_dword v{t0}, v{t0+1}, s[{sdb}:{sdb+3}], 0 offen offset:{4*(i-1)}")
        a.e("s_nop 1")
    a.e("s_mov_b64 exec, -1")
    a.label("SDBG_skip")
def srd(a, d, lo, hi, size):
    a.e(f"s_mov_b32 s{d}, {lo}\ns_mov_b32 s{d+1}, {hi}\ns_mov_b32 s{d+2}, {size}\ns_mov_b32 s{d+3}, 0x20000")
R4=lambda r: f"v[{r}:{r+3}]"
R16=lambda r: f"v[{r}:{r+15}]"
MF="v_mfma_f32_32x32x16_bf16"

def fused(a):
    L="F"
    WLDS=0; XLDS=49152; GLDS=XLDS+8*12288; LDS_TOTAL=163840
    QX=65536; WOA=98304; GX=157696; FLAG=158720
    SX=40; SW=44; SG=48; SWS=52; SKV=36; SDB=12
    vLane=1; vL=2; vD=3; vGate=4
    vX=[10,11]; vXw=[22,23]; xs=128; vW=12; vG=13; vXr=[14,15,16,17]; vWr=[18,19]; vGr=20; vOnes=21
    xf=24; wf=[[40,44,48],[52,56,60]]; acc=[64,80,96]
    a.e(f"s_cmp_ge_u32 s2, 256\ns_cbranch_scc1 {L}_done")
    stamp(a,0); stamp_rt(a,1)
    a.e("""
    s_load_dwordx16 s[16:31], s[0:1], 0
    s_load_dwordx4 s[32:35], s[0:1], 64
    s_lshr_b32 s4, s2, 3
    s_bfe_u32 s7, s2, 0x10002
    s_bfe_u32 s3, s2, 0x10001
    s_lshl_b32 s3, s3, 3
    s_and_b32 s8, s4, 7
    s_add_u32 s8, s8, s3
    s_and_b32 s3, s2, 1
    s_lshl_b32 s3, s3, 2
    s_lshr_b32 s6, s4, 3
    s_add_u32 s6, s6, s3
    s_lshl_b32 s5, s7, 4
    s_add_u32 s5, s5, s8
    """)
    if os.environ.get("MAP")=="old":
        a.e("""
        s_and_b32 s3, s2, 7
        s_lshr_b32 s4, s2, 3
        s_and_b32 s5, s4, 3
        s_lshl_b32 s3, s3, 2
        s_add_u32 s5, s5, s3
        s_lshr_b32 s6, s4, 2
        s_lshr_b32 s7, s5, 4
        s_and_b32 s8, s5, 15
        """)
    a.e(f"""
    v_and_b32 v{vLane}, 63, v0
    v_lshrrev_b32 v5, 6, v0
    v_lshrrev_b32 v6, 3, v{vLane}
    v_readfirstlane_b32 s9, v5
    v_and_b32 v7, 7, v{vLane}
    v_lshrrev_b32 v5, 4, v{vLane}
    v_xor_b32 v7, v7, v5
    v_mul_u32_u24 v6, 896, v6
    v_lshl_add_u32 v{vX[0]}, v7, 4, v6
    v_xor_b32 v{vX[1]}, 64, v{vX[0]}
    v_mul_u32_u24 v6, 43, v{vLane}
    v_lshrrev_b32 v6, 9, v6
    v_mul_u32_u24 v7, 12, v6
    v_sub_u32 v7, v{vLane}, v7
    v_lshrrev_b32 v5, 2, v7
    v_and_b32 v7, 3, v7
    v_mul_u32_u24 v6, 2688, v6
    v_mul_u32_u24 v5, 896, v5
    v_lshlrev_b32 v7, 4, v7
    v_add3_u32 v{vW}, v6, v7, v5
    v_lshlrev_b32 v{vL}, 4, v{vLane}
    v_lshlrev_b32 v{vD}, 4, v0
    v_and_b32 v6, 31, v{vLane}
    v_lshrrev_b32 v7, 5, v{vLane}
    v_bfe_u32 v5, v{vLane}, 1, 3
    v_xor_b32 v5, v5, v7
    v_lshlrev_b32 v5, 4, v5
    v_lshl_add_u32 v5, v6, 7, v5
    s_mul_i32 s57, s9, 12288
    s_add_u32 s57, s57, {XLDS}
    v_add_u32 v{vXr[0]}, s57, v5
    v_xor_b32 v{vXr[1]}, 32, v{vXr[0]}
    v_xor_b32 v{vXr[2]}, 64, v{vXr[0]}
    v_xor_b32 v{vXr[3]}, 96, v{vXr[0]}
    v_lshlrev_b32 v7, 4, v7
    v_add_u32 v{vGr}, {GLDS}, v7
    v_cmp_eq_u32 vcc, 28, v6
    v_mov_b32 v6, 0x3f803f80
    v_mov_b32 v7, 0
    v_cndmask_b32 v{vOnes}, v7, v6, vcc
    v_lshrrev_b32 v5, 4, v{vLane}
    v_and_b32 v6, 1, v5
    v_lshrrev_b32 v5, 1, v5
    v_bfe_u32 v7, v{vLane}, 2, 2
    v_lshl_add_u32 v5, v5, 3, v7
    v_mul_u32_u24 v5, 192, v5
    v_lshl_add_u32 v5, v6, 5, v5
    v_and_b32 v6, 3, v{vLane}
    v_lshl_add_u32 v{vWr[0]}, v6, 3, v5
    """)
    assert XLDS%128==0
    a.e("""
    s_lshl_b32 s10, s6, 3
    s_add_u32 s10, s10, s9
    s_mul_i32 s56, s10, 28672
    s_mul_i32 s58, s9, 10752
    s_mul_i32 s59, s8, 56
    s_add_u32 s58, s58, s59
    s_mul_i32 s59, s9, 768
    s_mov_b32 s60, 0x10000000
    s_mov_b32 s61, 0x10000000
    s_waitcnt lgkmcnt(0)
    s_cmp_eq_u32 s7, 0
    s_cselect_b32 s38, s18, s24
    s_cselect_b32 s39, s19, s25
    """)
    stamp(a,2)
    srd(a,SX,"s16","s17",XB); srd(a,SW,"s38","s39",WB); srd(a,SG,"s28","s29",896)
    a.e("""
    s_mov_b32 s0, -1
    s_mov_b32 s1, 0xffff
    s_mov_b32 s66, -1
    s_mov_b32 s67, 0xffffff
    """)
    def dmaX1(kc,j):
        slot=kc%3
        a.e(f"""
        s_add_u32 m0, s57, {slot*4096+j*1024}
        s_add_u32 s65, s56, {8*j*896+kc*128}
        buffer_load_dwordx4 v{vX[j&1]}, s[{SX}:{SX+3}], s65 offen lds
        """)
    def dmaW1(kc,i):
        a.e(f"""
        s_mov_b64 exec, s[0:1]
        s_add_u32 m0, s59, {WLDS+(kc%4)*12288+i*6144}
        s_add_u32 s65, s58, {(2*kc+i)*32*2688}
        buffer_load_dwordx4 v{vW}, s[{SW}:{SW+3}], s65 offen lds
        s_mov_b64 exec, -1
        """)
    vmq=[]
    def chunk_ops(kc):
        ops=[]
        for j in range(4): ops.append(lambda j=j: (dmaX1(kc,j), vmq.append(("c",kc))))
        for i in range(2): ops.append(lambda i=i: (dmaW1(kc,i), vmq.append(("c",kc))))
        return ops
    DEPTH=int(os.environ.get("P1DEPTH","2"))
    TD=int(os.environ.get("TOUCHD","0"))
    ST=52
    if TD:
        a.e(f"""
        s_lshr_b32 s3, s2, 3
        s_and_b32 s62, s2, 1
        s_lshl_b32 s62, s62, 10
        s_lshl_b32 s63, s3, 5
        s_add_u32 s62, s62, s63
        s_lshl_b32 s63, s9, 3
        s_add_u32 s62, s62, s63
        v_add_u32 v122, s62, v{vLane}
        v_mul_u32_u24 v122, 896, v122
        s_mul_i32 s62, s3, 24
        s_sub_u32 s63, s9, 4
        s_mul_i32 s63, s63, 6
        s_add_u32 s62, s62, s63
        v_add_u32 v123, s62, v{vLane}
        v_lshrrev_b32 v124, 2, v123
        v_and_b32 v123, 3, v123
        v_mul_u32_u24 v124, 896, v124
        v_lshl_add_u32 v123, v123, 7, v124
        s_bfe_u32 s63, s2, 0x10001
        s_mul_i32 s63, s63, 384
        v_add_u32 v123, s63, v123
        s_cmp_lt_u32 s9, 4
        s_cselect_b64 vcc, -1, 0
        v_cndmask_b32 v122, v123, v122, vcc
        s_cselect_b32 s{ST}, s{SX}, s{SW}
        s_cselect_b32 s{ST+1}, s{SX+1}, s{SW+1}
        s_cselect_b32 s{ST+2}, s{SX+2}, s{SW+2}
        s_mov_b32 s{ST+3}, 0x20000
        s_mov_b32 s64, 172032
        s_cselect_b32 s62, 128, s64
        s_mov_b32 s64, 0xff
        s_cselect_b32 s63, s64, 63
        """)
    def touch(c):
        a.e(f"""
        s_mul_i32 s64, s62, {c}
        s_mov_b32 exec_lo, s63
        s_mov_b32 exec_hi, 0
        buffer_load_dword v123, v122, s[{ST}:{ST+3}], s64 offen
        s_mov_b64 exec, -1
        """)
        vmq.append(("t",c))
    def vmwait(tag):
        idx=max(i for i,t in enumerate(vmq) if t==tag)
        a.e(f"s_waitcnt vmcnt({len(vmq)-idx-1})")
    a.e(f"""
    s_mov_b64 exec, s[66:67]
    s_mov_b32 m0, {GLDS}
    s_nop 0
    buffer_load_dwordx4 v{vL}, s[{SG}:{SG+3}], 0 offen lds
    s_mov_b64 exec, -1
    """)
    PRO=int(os.environ.get("P1PRO",str(DEPTH)))
    for kc in range(PRO):
        for op in chunk_ops(kc): op()
        if kc<PRO-1: a.e("s_barrier")
    if TD:
        for c in range(DEPTH,min(TD,7)): touch(c)
    stamp1(a,3)
    srd(a,SDB,"s32","s33",256)
    a.e(f"""
    s_or_b32 s3, s2, s9
    s_cmp_lg_u32 s3, 0
    s_cbranch_scc1 {L}_notag
    s_memrealtime s[70:71]
    s_waitcnt lgkmcnt(0)
    s_or_b32 s70, s70, 1
    v_mov_b32 v5, s70
    v_mov_b32 v6, 0
    s_mov_b64 exec, 1
    buffer_store_dword v5, v6, s[{SDB}:{SDB+3}], 0 offen sc1
    s_mov_b64 exec, -1
    """)
    a.label(f"{L}_notag")
    a.e("""
    s_lshl_b32 s3, s5, 18
    s_add_u32 s36, s34, s3
    s_addc_u32 s37, s35, 0
    s_mov_b32 s38, 0x40000
    s_mov_b32 s39, 0x20000
    """)
    for r in range(48): a.e(f"v_mov_b32 v{acc[0]+r}, 0")
    def wreads(ks,buf):
        o=((ks//4)%4)*12288+(ks%4)*3072
        for t in range(3):
            r=wf[buf][t]
            a.e(f"ds_read_b64_tr_b16 v[{r}:{r+1}], v{vWr[0]} offset:{o+t*64}")
            a.e(f"ds_read_b64_tr_b16 v[{r+2}:{r+3}], v{vWr[0]} offset:{o+t*64+768}")
        r=wf[buf][0]
        a.e(f"s_mov_b64 exec, s[60:61]\nds_read_b128 v[{r}:{r+3}], v{vGr} offset:{ks*32}\ns_mov_b64 exec, -1")
    for kc in range(7):
        vmwait(("c",kc))
        if kc in (0,1,3,6): stamp1(a,{0:6,1:7,3:8,6:9}[kc])
        if kc==6: a.e(f"v_mov_b32 v120, 0\nbuffer_load_dword v121, v120, s[{SDB}:{SDB+3}], 0 offen sc1")
        for kk in range(4):
            a.e(f"ds_read_b128 {R4(xf+4*kk)}, v{vXr[kk]} offset:{(kc%3)*4096}")
        a.e("s_waitcnt lgkmcnt(0)\ns_barrier")
        wreads(4*kc,0)
        ops=chunk_ops(kc+DEPTH) if kc+DEPTH<7 else []
        if kc==0 and PRO<DEPTH:
            pre=[]
            for c in range(PRO,DEPTH): pre+=chunk_ops(c)
            ops=pre+ops
        nper=max(1,-(-len(ops)//4))
        if TD and kc+TD<7: touch(kc+TD)
        for kk in range(4):
            ks=4*kc+kk; buf=kk&1
            if kk<3:
                wreads(ks+1,buf^1); a.e("s_waitcnt lgkmcnt(7)")
            else: a.e("s_waitcnt lgkmcnt(0)")
            x=R4(xf+4*kk)
            for t in range(3):
                w=R4(wf[buf][t]); c=R16(acc[t])
                if t<2: a.e(f"{MF} {c}, {w}, {x}, {c}")
                else:   a.e(f"{MF} {c}, {x}, {w}, {c}")
            for _ in range(nper):
                if ops: ops.pop(0)()
    srd(a,SWS,"s34","s35",WS_END)
    stamp(a,4)
    a.e(f"""
    s_lshl_b32 s11, s10, 12
    s_mov_b32 s67, {hex(f2u(QSCALE))}
    s_mov_b32 s68, 0
    s_mov_b32 s69, -1
    s_mov_b32 s70, 0xf0000000
    s_mov_b32 s71, 0xf0000000
    s_nop 7
    """)
    for t in (1,2):
        for i in range(8): a.e(f"v_cvt_pk_bf16_f32 v{acc[t]+i}, v{acc[t]+2*i}, v{acc[t]+2*i+1}")
    a.e(f"""
    s_mov_b64 exec, s[68:69]
    v_mov_b32 v{acc[1]+6}, 0x3f80
    v_mov_b32 v{acc[1]+7}, 0
    s_mov_b64 exec, s[70:71]
    """)
    for i in range(8): a.e(f"v_mov_b32 v{acc[2]+i}, v{vOnes}")
    a.e("s_mov_b64 exec, -1")
    a.e(f"s_lshl_b32 s3, s9, 12\nv_add_u32 v5, s3, v{vL}")
    for t in (1,2):
        for c in range(2):
            r=acc[t]+4*c
            a.e(f"buffer_store_dwordx4 {R4(r)}, v{vL}, s[{SKV}:{SKV+3}], s11 offen offset:{(t-1)*2048+c*1024} {os.environ.get('KVST','sc1')}")
    a.e(f"""
    v_mul_f32 v6, {hex(f2u(-math.log2(math.e)))}, v{acc[0]+12}
    v_exp_f32 v6, v6
    s_nop 0
    v_add_f32 v6, 1.0, v6
    v_rcp_f32 v6, v6
    s_nop 0
    v_sub_f32 v7, 1.0, v6
    s_cmp_eq_u32 s7, 0
    s_cselect_b64 vcc, -1, 0
    v_cndmask_b32 v6, v7, v6, vcc
    """)
    for r in range(16): a.e(f"v_mul_f32 v{acc[0]+r}, s67, v{acc[0]+r}")
    for i in range(8): a.e(f"v_cvt_pk_bf16_f32 v{acc[0]+i}, v{acc[0]+2*i}, v{acc[0]+2*i+1}")
    a.e(f"""
    s_lshl_b32 s3, s9, 11
    s_add_u32 s3, s3, {QX}
    v_add_u32 v7, s3, v{vL}
    s_lshl_b32 s3, s9, 7
    s_add_u32 s3, s3, {GX-128}
    v_lshl_add_u32 v8, v{vLane}, 2, s3
    s_mov_b64 exec, s[68:69]
    v_mov_b32 v{acc[0]+6}, 0
    v_mov_b32 v{acc[0]+7}, 0
    s_mov_b64 exec, -1
    s_barrier
    """)
    for t in (1,2):
        for c in range(2):
            a.e(f"ds_write_b128 v5, {R4(acc[t]+4*c)} offset:{(t-1)*2048+c*1024}")
    for c in range(2): a.e(f"ds_write_b128 v7, {R4(acc[0]+4*c)} offset:{c*1024}")
    a.e(f"""
    s_mov_b64 exec, s[68:69]
    ds_write_b32 v8, v6
    s_mov_b64 exec, -1
    v_mov_b32 v123, {FLAG}
    v_mov_b32 v6, 0
    ds_write_b32 v123, v6
    """)
    Q=[[16,20],[24,28]]; S=[32,48]; P=64; kA=72; kB=76; vA=80; vB=84; O=[88,104]; vM=[8,14]; vR0=9; vR2=13
    a.e(f"""
    s_and_b32 s62, s9, 3
    s_lshr_b32 s63, s9, 2
    s_lshl_b32 s64, s62, 1
    s_add_u32 s64, s64, s63
    s_lshl_b32 s3, s63, 14
    v_add_u32 v{vR0}, s3, v{vL}
    v_add_u32 v{vR2}, 65536, v{vR0}
    s_lshl_b32 s57, s9, 10
    v_lshlrev_b32 v10, 7, v{vLane}
    s_lshl_b32 s61, s5, 10
    s_add_u32 s61, s61, {WS_FKV}
    s_lshl_b32 s58, 1, s6
    s_xor_b32 s58, s58, 0xff
    s_mov_b32 s59, 0
    s_waitcnt lgkmcnt(0)
    s_barrier
    """)
    stamp(a,5)
    def gettag():
        a.label(f"{L}_tag")
        a.e(f"""
        v_readfirstlane_b32 s71, v121
        s_nop 3
        s_cmp_lg_u32 s71, 0
        s_cbranch_scc1 {L}_tagok
        s_sleep 2
        buffer_load_dword v121, v120, s[{SDB}:{SDB+3}], 0 offen sc1
        s_waitcnt vmcnt(0)
        s_branch {L}_tag
        """)
        a.label(f"{L}_tagok")
    def poll_check(soff,mask_lo,tag,first_issued,vaddr=10,sleep=2):
        if mask_lo is not None: a.e(f"s_mov_b32 exec_lo, {mask_lo}\ns_mov_b32 exec_hi, 0")
        if first_issued: a.e(f"s_branch {L}_pchk{tag}")
        a.label(f"{L}_poll{tag}")
        a.e(f"buffer_load_dword v12, v{vaddr}, s[{SWS}:{SWS+3}], {soff} offen sc1")
        a.label(f"{L}_pchk{tag}")
        a.e(f"""
        s_waitcnt vmcnt(0)
        v_cmp_ne_u32 vcc, s71, v12
        s_nop 1
        s_cmp_eq_u64 vcc, 0
        s_cbranch_scc1 {L}_pdone{tag}
        s_mov_b64 exec, vcc
        s_sleep {sleep}
        s_branch {L}_poll{tag}
        """)
        a.label(f"{L}_pdone{tag}")
        a.e("s_mov_b64 exec, -1")
    def poll_pipe(soff,mask_lo,tag,regs=(12,11,8)):
        a.e(f"s_mov_b32 exec_lo, {mask_lo}\ns_mov_b32 exec_hi, 0")
        k=len(regs)
        for r in regs[:-1]:
            a.e(f"buffer_load_dword v{r}, v10, s[{SWS}:{SWS+3}], {soff} offen sc1\ns_sleep 2")
        a.e(f"buffer_load_dword v{regs[-1]}, v10, s[{SWS}:{SWS+3}], {soff} offen sc1")
        a.label(f"{L}_pp{tag}")
        for r in regs:
            a.e(f"""
            s_waitcnt vmcnt({k-1})
            v_cmp_ne_u32 vcc, s71, v{r}
            s_nop 1
            s_cmp_eq_u64 vcc, 0
            s_cbranch_scc1 {L}_ppd{tag}
            buffer_load_dword v{r}, v10, s[{SWS}:{SWS+3}], {soff} offen sc1
            """)
        a.e(f"s_branch {L}_pp{tag}")
        a.label(f"{L}_ppd{tag}")
        a.e("s_mov_b64 exec, -1")
    def signal(soff,tag):
        a.e(f"""
        v_mov_b32 v12, s71
        s_mov_b64 exec, 1
        buffer_store_dword v12, v120, s[{SWS}:{SWS+3}], {soff} offen sc1
        s_mov_b64 exec, -1
        """)
    a.e(f"""
    s_lshl_b32 s3, s64, 11
    s_add_u32 s3, s3, {QX}
    v_add_u32 v5, s3, v{vL}
    v_xor_b32 v6, 2048, v5
    ds_read_b128 {R4(Q[0][0])}, v5
    ds_read_b128 {R4(Q[0][1])}, v5 offset:1024
    ds_read_b128 {R4(Q[1][0])}, v6
    ds_read_b128 {R4(Q[1][1])}, v6 offset:1024
    ds_read_b128 {R4(kA)}, v{vL}
    ds_read_b128 {R4(kB)}, v{vL} offset:1024
    s_lshl_b32 s3, s64, 7
    s_add_u32 s3, s3, {GX}
    v_and_b32 v7, 31, v{vLane}
    v_lshl_add_u32 v7, v7, 2, s3
    ds_read_b32 v{vGate}, v7
    s_waitcnt lgkmcnt(0)
    """)
    assert QX%4096==0
    for X in range(2):
        a.e(f"{MF} {R16(S[X])}, {R4(kA)}, {R4(Q[X][0])}, 0")
        a.e(f"{MF} {R16(S[X])}, {R4(kB)}, {R4(Q[X][1])}, {R16(S[X])}")
    def toff(s,j):
        slot=s%3
        return (vR0,slot*32768+j*4096) if slot<2 else (vR2,j*4096)
    def rdk(r,s,j,o):
        b,off=toff(s,j)
        a.e(f"ds_read_b128 {R4(r)}, v{b} offset:{off+o}")
    rdk(kA,0,0,0); rdk(kB,0,0,1024); rdk(vA,0,0,2048)
    for r in range(32): a.e(f"v_mov_b32 v{O[0]+r}, 0")
    a.e("s_mov_b64 s[62:63], 0\ns_mov_b32 s60, 0x45000000")
    for X in range(2):
        s0=S[X]; m=vM[X]
        a.e(f"v_max3_f32 v{m}, v{s0}, v{s0+1}, v{s0+2}")
        for i in range(3,15,2): a.e(f"v_max3_f32 v{m}, v{m}, v{s0+i}, v{s0+i+1}")
        a.e(f"""
        v_max_f32 v{m}, v{m}, v{s0+15}
        v_mov_b32 v5, v{m}
        s_nop 0
        v_mov_b32 v6, v{m}
        s_nop 1
        v_permlane32_swap_b32 v5, v6
        s_nop 1
        v_max_f32 v{m}, v5, v6
        v_cmp_nge_f32 vcc, s60, abs(v{m})
        v_lshrrev_b32 v5, 16, v{m}
        v_xor_b32 v5, 0x8000, v5
        s_or_b64 s[62:63], s[62:63], vcc
        s_mov_b64 exec, s[68:69]
        v_mov_b32 v{Q[X][1]+2}, v5
        s_mov_b64 exec, -1
        """)
    a.e("s_waitcnt lgkmcnt(0)")
    a.e(f"{MF} {R16(S[0])}, {R4(kA)}, {R4(Q[0][0])}, 0")
    a.e(f"{MF} {R16(S[0])}, {R4(kB)}, {R4(Q[0][1])}, {R16(S[0])}")
    a.e("s_nop 7\ns_nop 3")
    def dma_stage_ops(s):
        slot=s%3
        def first():
            a.e(f"s_add_u32 s55x, s6, {s}")
        ops=[]
        for i in range(4):
            def op(i=i):
                if i==0: a.e(f"s_add_u32 s58x, s6, {s}\ns_and_b32 s58x, s58x, 7\ns_lshl_b32 s58x, s58x, 15".replace("s58x","s70"))
                a.e(f"""
                s_add_u32 m0, s57, {slot*32768+i*8192}
                s_add_u32 s65, s70, {i*8192}
                buffer_load_dwordx4 v{vD}, s[{SKV}:{SKV+3}], s65 offen {DMASC} lds
                """)
            ops.append(op)
        return ops
    def dma_stage(s):
        for op in dma_stage_ops(s): op()
    SWA=40; SWB=44; SO=48; vD3=15
    a.e(f"""
    s_mul_i32 s3, s5, 37
    s_lshr_b32 s4, s3, 8
    s_mul_i32 s3, s4, 7
    s_sub_u32 s3, s5, s3
    s_lshl_b32 s11, s6, 2
    s_add_u32 s4, s4, s11
    s_lshl_b32 s56, s3, 7
    v_lshrrev_b32 v6, 3, v{vLane}
    v_mul_u32_u24 v6, 896, v6
    v_and_b32 v7, 7, v{vLane}
    v_bfe_u32 v5, v{vLane}, 4, 1
    v_lshlrev_b32 v5, 2, v5
    v_xor_b32 v7, v7, v5
    v_lshl_add_u32 v{vD3}, v7, 4, v6
    """)
    srd(a,SWA,"s20","s21",WOB); srd(a,SWB,"s26","s27",WOB); srd(a,SO,"s30","s31",XB)
    wo_ctr=[0]
    def dma_wo(sw,ldsbase,m,tag):
        a.e(f"s_add_u32 s65, s9, {8*m}")
        if m==7: a.e("s_cmp_ge_u32 s65, 58\ns_cselect_b32 s66, 58, 0\ns_sub_u32 s65, s65, s66")
        a.e(f"""
        s_cmp_ge_u32 s65, 29
        s_cselect_b32 s66, 29, 0
        s_cselect_b32 s67, {224*896}, 0
        s_cselect_b32 s60, 29696, 0
        s_sub_u32 s65, s65, s66
        s_lshl_b32 s66, s65, 10
        s_add_u32 s66, s66, s60
        s_add_u32 m0, s66, {ldsbase}
        s_mul_i32 s65, s65, {8*896}
        s_add_u32 s65, s65, s67
        s_add_u32 s65, s65, s56
        buffer_load_dwordx4 v{vD3}, s[{sw}:{sw+3}], s65 offen lds
        """)
    def touch_wob():
        a.e(f"""
        s_mul_i32 s65, s9, {56*896}
        s_add_u32 s65, s65, s56
        v_mul_u32_u24 v5, 896, v{vLane}
        s_mov_b32 exec_lo, -1
        s_mov_b32 exec_hi, 0xffffff
        buffer_load_dword v11, v5, s[{SWB}:{SWB+3}], s65 offen
        s_mov_b64 exec, -1
        """)
    units=[(s,j,X) for s in range(8) for j in range(4) for X in (0,1)]
    KVP=[int(x) for x in os.environ.get('KVP','1,3').split(',')]
    SIGN=int(os.environ.get('SIGN','0'))
    outst=[]; deferred=[]
    def rd(name,r,s,j,o):
        rdk(r,s,j,o); outst.append(name)
    def need(name):
        if name in outst:
            idx=outst.index(name); a.e(f"s_waitcnt lgkmcnt({len(outst)-idx-1})"); del outst[:idx+1]
    a.loopstart=len(a.lines)
    for n,(s,j,X) in enumerate(units):
        sc=S[n%2]; sn=S[(n+1)%2]
        nxt=units[n+1] if n+1<64 else None
        prv=units[n-1] if n>0 else None
        nt=(s,j+1) if j<3 else ((s+1,0) if s<7 else None)
        if n==SIGN:
            stampF(a,3); outst.clear() if (FST and DBG) else None
            a.e("s_waitcnt vmcnt(0)\ns_barrier")
            stampF(a,4)
            gettag()
            a.e(f"s_cmp_lg_u32 s9, 0\ns_cbranch_scc1 {L}_nsig")
            a.e("s_lshl_b32 s3, s6, 7\ns_add_u32 s3, s3, s61")
            signal("s3","kv")
            a.label(f"{L}_nsig")
        if n==KVP[0]:
            a.e(f"s_cmp_lg_u32 s9, 0\ns_cbranch_scc1 {L}_npi")
            a.e(f"s_mov_b64 exec, s[58:59]\nbuffer_load_dword v12, v10, s[{SWS}:{SWS+3}], s61 offen sc1\ns_mov_b64 exec, -1")
            a.label(f"{L}_npi")
        if n==KVP[1]:
            stampF(a,5); outst.clear() if (FST and DBG) else None
            a.e(f"s_cmp_lg_u32 s9, 0\ns_cbranch_scc1 {L}_npc")
            a.e("s_mov_b64 exec, s[58:59]")
            poll_check("s61",None,"kv",True,vaddr=10,sleep=1)
            a.e(f"v_mov_b32 v12, 1\nds_write_b32 v123, v12")
            a.label(f"{L}_npc")
            a.e("s_mov_b32 s60, 0")
        if n in (KVP[1],KVP[1]+1) :
            last = (n==KVP[1]+1)
            a.e(f"s_cmp_lg_u32 s60, 0\ns_cbranch_scc1 {L}_go{n}x")
            a.label(f"{L}_go{n}")
            a.e(f"""
            ds_read_b32 v12, v123
            s_waitcnt lgkmcnt(0)
            v_readfirstlane_b32 s60, v12
            s_nop 3
            s_cmp_lg_u32 s60, 0
            """)
            if last: a.e(f"s_cbranch_scc0 {L}_go{n}")
            else: a.e(f"s_cbranch_scc0 {L}_go{n}x")
            if last: stampF(a,6)
            dma_stage(1)
            a.label(f"{L}_go{n}x")
        if j==3 and X==0 and s<7:
            if s==0 and FST and DBG:
                stampF(a,7); outst.clear(); a.e("s_waitcnt vmcnt(0)"); stampF(a,8)
            a.e("s_waitcnt vmcnt(0)\ns_barrier")
            if s==0: stampF(a,9)
            if STG and DBG:
                stampS(a,3+s); outst.clear()
            if s+2<8: deferred+=dma_stage_ops(s+2)
            if s==5: deferred+=[touch_wob]
            if 1<=s<=4:
                deferred+=[lambda s=s: dma_wo(SWA,WOA,2*(s-1),f"a{s}0"), lambda s=s: dma_wo(SWA,WOA,2*(s-1)+1,f"a{s}1")]
        if n<6: pr=3-(n*4)//6
        elif n>=54: pr=3-((n-54)*4)//10
        else: pr=3-((n-6)%8)//2
        a.e(f"s_setprio {pr}")
        def grp(g):
            for k in range(4): a.e(f"v_exp_f32 v{sc+4*g+k}, v{sc+4*g+k}")
            a.e(f"v_cvt_pk_bf16_f32 v{P+2*g}, v{sc+4*g}, v{sc+4*g+1}")
            a.e(f"v_cvt_pk_bf16_f32 v{P+2*g+1}, v{sc+4*g+2}, v{sc+4*g+3}")
        ORD=os.environ.get("ORD","0")
        def E(g,ks=range(4)):
            for k in ks: a.e(f"v_exp_f32 v{sc+4*g+k}, v{sc+4*g+k}")
        def C(g,base=None):
            b=sc if base is None else base
            a.e(f"v_cvt_pk_bf16_f32 v{P+2*g}, v{b+4*g}, v{b+4*g+1}")
            a.e(f"v_cvt_pk_bf16_f32 v{P+2*g+1}, v{b+4*g+2}, v{b+4*g+3}")
        def M1():
            if nxt:
                need("kA"); a.e(f"{MF} {R16(sn)}, {R4(kA)}, {R4(Q[nxt[2]][0])}, 0")
            if X==0 and nt: rd("kA",kA,nt[0],nt[1],0)
        def M2():
            if nxt:
                need("kB"); a.e(f"{MF} {R16(sn)}, {R4(kB)}, {R4(Q[nxt[2]][1])}, {R16(sn)}")
            if X==0 and nt: rd("kB",kB,nt[0],nt[1],1024)
        def M3():
            if prv:
                need("vB"); a.e(f"{MF} {R16(O[prv[2]])}, {R4(vB)}, {R4(P+4)}, {R16(O[prv[2]])}")
            if X==0: rd("vB",vB,s,j,3072)
        def M4():
            need("vA"); a.e(f"{MF} {R16(O[X])}, {R4(vA)}, {R4(P)}, {R16(O[X])}")
            if X==1 and nt: rd("vA",vA,nt[0],nt[1],2048)
        if ORD=="0":
            M1(); E(0); C(0); M2(); E(1,(0,1))
            if deferred: deferred.pop(0)()
            E(1,(2,3)); C(1); M3(); E(2); C(2); M4(); E(3); C(3)
        elif ORD=="1":
            if prv: C(3,sn)
            M1(); E(0)
            M2(); E(1); C(0)
            if prv: a.e("s_nop 0") if False else None
            M3(); E(2); C(1)
            E(3,(0,1)); M4(); E(3,(2,3)); C(2)
            if n==63: C(3)
    a.loopend=len(a.lines)
    a.e("s_setprio 0")
    stamp(a,6)
    a.e("s_nop 1")
    a.e(f"{MF} {R16(O[1])}, {R4(vB)}, {R4(P+4)}, {R16(O[1])}")
    a.e("s_nop 15")
    a.e(f"""
    s_lshl_b32 s3, s9, 12
    s_add_u32 s3, s3, 65536
    v_add_u32 v6, s3, v{vL}
    """)
    for g in range(4): a.e(f"ds_write_b128 v6, {R4(O[1]+4*g)} offset:{g*1024}")
    a.e(f"""
    v_xor_b32 v6, 16384, v6
    s_waitcnt lgkmcnt(0)
    s_barrier
    """)
    stampT(a,2)
    for g in range(4): a.e(f"ds_read_b128 {R4(O[1]+4*g)}, v6 offset:{g*1024}")
    a.e("s_waitcnt lgkmcnt(0)")
    for r in range(16): a.e(f"v_add_f32 v{O[0]+r}, v{O[0]+r}, v{O[1]+r}")
    a.e("s_mov_b32 s70, 0")
    a.label(f"{L}_final")
    Of=O[0]; On=O[1]; Opk=S[0]
    a.e(f"v_mov_b32 v5, v{Of+12}\nv_mov_b32 v6, v{Of+12}\ns_nop 1\nv_permlane32_swap_b32 v5, v6")
    a.e(f"""
    v_rcp_f32 v7, v6
    s_lshl_b32 s11, s5, 17
    v_mul_f32 v7, v7, v{vGate}
    s_lshl_b32 s3, s6, 3
    s_add_u32 s3, s3, s64
    """)
    for r in range(16): a.e(f"v_mul_f32 v{On+r}, v{Of+r}, v7")
    for i in range(8): a.e(f"v_cvt_pk_bf16_f32 v{Opk+i}, v{On+2*i}, v{On+2*i+1}")
    a.e(f"""
    s_lshl_b32 s59, s3, 12
    s_add_u32 s59, s59, {WS_FO}
    s_lshl_b32 s3, s3, 11
    s_add_u32 s11, s11, s3
    s_add_u32 s11, s11, {WS_O}
    s_mov_b64 exec, s[68:69]
    v_mov_b32 v{Opk+6}, 0
    v_mov_b32 v{Opk+7}, 0
    s_mov_b64 exec, -1
    s_lshl_b32 s3, s5, 7
    s_add_u32 s3, s3, s59
    buffer_store_dwordx4 {R4(Opk)}, v{vL}, s[{SWS}:{SWS+3}], s11 offen sc1
    buffer_store_dwordx4 {R4(Opk+4)}, v{vL}, s[{SWS}:{SWS+3}], s11 offen offset:1024 sc1
    """)
    stampT(a,3)
    a.e(f"s_cmp_lg_u32 s70, 0\ns_cbranch_scc1 {L}_chkd")
    a.e(f"v_mul_f32 v7, 0, v{On}")
    for r in range(1,16): a.e(f"v_fmac_f32 v7, 0, v{On+r}")
    a.e(f"""
    v_cmp_u_f32 vcc, v7, v7
    s_nop 0
    s_or_b64 s[62:63], s[62:63], vcc
    v_cmp_nge_f32 vcc, 0x4e800000, v6
    s_nop 0
    s_or_b64 s[62:63], s[62:63], vcc
    v_cmp_nle_f32 vcc, 0x35800000, v6
    s_nop 0
    s_or_b64 s[62:63], s[62:63], vcc
    s_cmp_lg_u64 s[62:63], 0
    s_cbranch_scc1 {L}_slow
    """)
    a.label(f"{L}_chkd")
    for m in range(8): dma_wo(SWB,0,m,f"b{m}")
    a.e("s_waitcnt vmcnt(8)")
    stampT(a,4)
    signal("s3","o")
    stamp(a,7)
    a.e(f"s_cmp_ge_u32 s5, 28\ns_cbranch_scc1 {L}_end")
    of=16; wfo=[[80,84],[88,92]]; acc3=[96,112]; vA3=[14,15]
    a.e(f"""
    s_and_b32 s60, s9, 1
    s_lshr_b32 s61, s9, 1
    v_lshrrev_b32 v6, 4, v{vLane}
    v_and_b32 v7, 1, v6
    v_lshrrev_b32 v6, 1, v6
    v_bfe_u32 v5, v{vLane}, 2, 2
    v_lshl_add_u32 v6, v6, 2, v5
    v_lshlrev_b32 v6, 7, v6
    v_lshrrev_b32 v5, 1, v5
    v_lshl_add_u32 v6, v5, 6, v6
    v_lshl_add_u32 v6, v7, 5, v6
    v_and_b32 v7, 3, v{vLane}
    v_lshl_add_u32 v6, v7, 3, v6
    s_and_b32 s63, s61, 1
    s_mul_i32 s63, s63, 29696
    s_cmp_lt_u32 s61, 2
    s_cselect_b32 s62, {WOA}, 0
    s_add_u32 s62, s62, s63
    v_add_u32 v{vA3[0]}, s62, v6
    v_xor_b32 v{vA3[1]}, 64, v{vA3[0]}
    s_lshl_b32 s62, s4, 1
    s_add_u32 s62, s62, s60
    s_lshl_b32 s62, s62, 11
    s_lshl_b32 s63, s61, 20
    s_add_u32 s62, s62, s63
    s_add_u32 s62, s62, {WS_O}
    """)
    for r in range(32): a.e(f"v_mov_b32 v{acc3[0]+r}, 0")
    a.e(f"""
    s_lshl_b32 s3, s4, 1
    s_add_u32 s3, s3, s60
    s_lshl_b32 s59, s3, 12
    s_lshl_b32 s3, s61, 10
    s_add_u32 s59, s59, s3
    s_add_u32 s59, s59, {WS_FO}
    s_waitcnt vmcnt(0)
    s_barrier
    """)
    if os.environ.get("PIPE","0")=="1": poll_pipe("s59","0xff","o")
    else: poll_check("s59","0xff","o",False,sleep=int(os.environ.get("SLP","2")))
    stamp(a,8)
    for i in range(8):
        a.e(f"s_add_u32 s63, s62, {i*131072}")
        for c in range(2):
            a.e(f"buffer_load_dwordx4 {R4(of+8*i+4*c)}, v{vL}, s[{SWS}:{SWS+3}], s63 offen offset:{c*1024} sc1")
    stampT(a,5)
    def wr(step,buf):
        i,c=step//2,step%2
        o=(i*28+16*c)*128
        for nt in range(2):
            r=wfo[buf][nt]
            a.e(f"ds_read_b64_tr_b16 v[{r}:{r+1}], v{vA3[nt]} offset:{o}")
            a.e(f"ds_read_b64_tr_b16 v[{r+2}:{r+3}], v{vA3[nt]} offset:{o+1024}")
    wr(0,0)
    for step in range(16):
        buf=step&1
        if step<15:
            wr(step+1,buf^1); a.e(f"s_waitcnt vmcnt({15-step}) lgkmcnt(4)")
        else: a.e("s_waitcnt vmcnt(0) lgkmcnt(0)")
        i,c=step//2,step%2
        for nt in range(2):
            cc=R16(acc3[nt])
            a.e(f"{MF} {cc}, {R4(wfo[buf][nt])}, {R4(of+8*i+4*c)}, {cc}")
    a.e("s_nop 15\ns_barrier")
    stamp(a,9)
    a.e(f"s_lshl_b32 s62, s9, 13\nv_add_u32 v6, s62, v{vL}")
    for nt in range(2):
        for g in range(4):
            a.e(f"ds_write_b128 v6, {R4(acc3[nt]+4*g)} offset:{nt*4096+g*1024}")
    a.e(f"""
    s_waitcnt lgkmcnt(0)
    s_barrier
    s_lshr_b32 s61, s9, 1
    s_and_b32 s61, s61, 1
    s_lshr_b32 s57, s9, 2
    s_lshl_b32 s62, s60, 13
    s_lshl_b32 s63, s61, 12
    s_add_u32 s62, s62, s63
    s_lshl_b32 s63, s57, 11
    s_add_u32 s62, s62, s63
    v_add_u32 v6, s62, v{vL}
    """)
    for kq in range(4):
        if kq==2: a.e(f"v_add_u32 v6, {4*8192}, v6")
        for g in range(2):
            a.e(f"ds_read_b128 {R4(16+kq*8+g*4)}, v6 offset:{(kq&1)*16384+g*1024}")
    a.e("s_waitcnt lgkmcnt(0)")
    for k in range(8):
        a.e(f"v_add_f32 v{16+k}, v{16+k}, v{24+k}")
        a.e(f"v_add_f32 v{32+k}, v{32+k}, v{40+k}")
    for k in range(8): a.e(f"v_add_f32 v{16+k}, v{16+k}, v{32+k}")
    a.e(f"""
    v_cvt_pk_bf16_f32 v48, v16, v17
    v_cvt_pk_bf16_f32 v49, v18, v19
    v_cvt_pk_bf16_f32 v50, v20, v21
    v_cvt_pk_bf16_f32 v51, v22, v23
    v_and_b32 v6, 31, v{vLane}
    v_lshrrev_b32 v7, 5, v{vLane}
    v_permlane32_swap_b32 v48, v50
    v_permlane32_swap_b32 v49, v51
    v_mul_u32_u24 v6, 896, v6
    v_lshl_add_u32 v6, v7, 4, v6
    s_lshl_b32 s62, s4, 1
    s_add_u32 s62, s62, s60
    s_mul_i32 s62, s62, {32*896}
    s_add_u32 s62, s62, s56
    s_lshl_b32 s63, s61, 6
    s_add_u32 s62, s62, s63
    s_lshl_b32 s63, s57, 5
    s_add_u32 s62, s62, s63
    buffer_store_dwordx4 v[48:51], v6, s[{SO}:{SO+3}], s62 offen
    """)
    a.label(f"{L}_end")
    if DBG:
        a.e("s_waitcnt vmcnt(0)"); stamp(a,10); stamp_rt(a,11); stamp_out(a,13,SWS,60,"f"); stamp_dbg(a,12,SDB,60)
    a.label(f"{L}_done")
    a.e("s_endpgm")
    a.label(f"{L}_slow")
    m=vM[0]; Os=O[0]; sc=S[0]; q0=Q[0][0]; q1=Q[0][1]
    a.e(f"""
    s_mov_b64 exec, s[68:69]
    v_mov_b32 v{q1+2}, 0
    s_mov_b64 exec, -1
    v_mov_b32 v{m}, 0xff800000
    s_mov_b32 s60, 0
    """)
    for r in range(16): a.e(f"v_mov_b32 v{Os+r}, 0")
    a.label(f"{L}_sin")
    sl1=len(a.lines)
    a.e(f"""
    buffer_load_dwordx4 {R4(kA)}, v{vL}, s[{SKV}:{SKV+3}], s60 offen sc1
    buffer_load_dwordx4 {R4(kB)}, v{vL}, s[{SKV}:{SKV+3}], s60 offen offset:1024 sc1
    buffer_load_dwordx4 {R4(vA)}, v{vL}, s[{SKV}:{SKV+3}], s60 offen offset:2048 sc1
    buffer_load_dwordx4 {R4(vB)}, v{vL}, s[{SKV}:{SKV+3}], s60 offen offset:3072 sc1
    s_waitcnt vmcnt(0)
    {MF} {R16(sc)}, {R4(kA)}, {R4(q0)}, 0
    {MF} {R16(sc)}, {R4(kB)}, {R4(q1)}, {R16(sc)}
    s_nop 15
    v_max3_f32 v5, v{sc}, v{sc+1}, v{sc+2}
    """)
    for k in range(3,15,2): a.e(f"v_max3_f32 v5, v5, v{sc+k}, v{sc+k+1}")
    a.e(f"""
    v_max_f32 v5, v5, v{sc+15}
    s_nop 0
    v_mov_b32 v6, v5
    s_nop 1
    v_permlane32_swap_b32 v5, v6
    s_nop 1
    v_max3_f32 v5, v5, v6, v{m}
    v_sub_f32 v6, v{m}, v5
    v_exp_f32 v6, v6
    v_mov_b32 v{m}, v5
    """)
    for r in range(16): a.e(f"v_sub_f32 v{sc+r}, v{sc+r}, v5")
    for r in range(16): a.e(f"v_exp_f32 v{sc+r}, v{sc+r}")
    for r in range(16): a.e(f"v_mul_f32 v{Os+r}, v{Os+r}, v6")
    for k in range(8): a.e(f"v_cvt_pk_bf16_f32 v{P+k}, v{sc+2*k}, v{sc+2*k+1}")
    a.e(f"""
    s_nop 1
    {MF} {R16(Os)}, {R4(vA)}, {R4(P)}, {R16(Os)}
    {MF} {R16(Os)}, {R4(vB)}, {R4(P+4)}, {R16(Os)}
    s_nop 15
    s_add_u32 s60, s60, 4096
    s_cmp_lt_u32 s60, 0x40000
    s_cbranch_scc1 {L}_sin
    """)
    sl2=len(a.lines)
    a.e(f"s_mov_b32 s70, 1\ns_branch {L}_final")
    a.loops=[(sl1,sl2)]
    return dict(vgpr=128,sgpr=(100 if DBG else 72),lds=LDS_TOTAL,grid=256,block=512)

HDR=open("cdna_kernels/"+NAME+".s.ref").read().split("; Override")[0]
def build(path):
    name=NAME+"_kernel"
    a=Asm(); info=fused(a)
    errs=check(a.lines,name)
    for (s,e) in a.loops: errs+=check(a.lines[s:e]+a.lines[s:e],name+"-loop")
    t=HDR+f"; @launch grid=({info['grid']},1,1) block=({info['block']},1,1) lds={info['lds']}\n"
    t+='.amdgcn_target "amdgcn-amd-amdhsa--gfx950"\n.text\n'
    t+=f".globl {name}\n.p2align 8\n.type {name},@function\n{name}:\n"+a.text()
    t+=f""".section .rodata,"a"
.p2align 6
.amdhsa_kernel {name}
  .amdhsa_next_free_vgpr {info['vgpr']}
  .amdhsa_next_free_sgpr {info['sgpr']}
  .amdhsa_accum_offset {info['vgpr']}
  .amdhsa_group_segment_fixed_size 0
  .amdhsa_kernarg_size 80
  .amdhsa_user_sgpr_count 2
  .amdhsa_user_sgpr_kernarg_segment_ptr 1
  .amdhsa_system_sgpr_workgroup_id_x 1
.end_amdhsa_kernel
"""
    open(path,"w").write(t)
    open("launch.txt","w").write(f"{name} {info['grid']} {info['block']} {info['lds']}\n")
    for e in errs: print("HAZARD",e)
    print("hazard errors:",len(errs))
if __name__=="__main__":
    if len(sys.argv)>2 and sys.argv[2]=="dbg": DBG=True
    build(sys.argv[1] if len(sys.argv)>1 else "cdna_kernels/"+NAME+".s")
```

```python
import sys, math, struct
from asm import Asm, check
NAME="gated_mix__mha_block__softmax_full_mha__prompt"
WS_KV=0; WS_O=8<<20; WS_FKV=16<<20; WS_FO=(16<<20)+65536; WS_DBG=17<<20; WS_END=(18<<20)
XB=2048*448*2; WB=448*1344*2; WOB=448*448*2
QSCALE=math.log2(math.e)/math.sqrt(28.0)
def f2u(f): return struct.unpack("<I",struct.pack("<f",f))[0]
import os
DBG=False
DMASC=os.environ.get('DMASC','sc1')
STSC=os.environ.get('STSC','sc1')
NST=12
P1DBG=os.environ.get('P1DBG','')
def stamp1(a,i):
    if DBG and P1DBG: a.e(f"s_memtime s[{72+2*i}:{73+2*i}]\ns_waitcnt lgkmcnt(0)")
RTM=os.environ.get('RTM','')
STG=os.environ.get('STG','')
FST=os.environ.get('FST','')
def stampF(a,i):
    if DBG and FST: a.e(f"s_memtime s[{72+2*i}:{73+2*i}]\ns_waitcnt lgkmcnt(0)")
def stampS(a,i):
    if DBG and STG: a.e(f"s_memtime s[{72+2*i}:{73+2*i}]\ns_waitcnt lgkmcnt(0)")
TDBG=os.environ.get('TDBG','')
def stampT(a,i):
    if DBG and TDBG: a.e(f"s_memtime s[{72+2*i}:{73+2*i}]\ns_waitcnt lgkmcnt(0)")
def stamp(a,i):
    if FST and i in (2,3,4,5,6,7,8,9):
        if i==5: stampF(a,2)
        return
    if TDBG and i in (2,3,4,5): return
    if STG and i in (2,3,4,5,6,7,8,9):
        if i==5: stampS(a,2)
        if i==6: stampS(a,12)
        return
    if RTM and i in (3,9): return
    if RTM and i==5 and DBG: a.e("s_memrealtime s[78:79]\ns_waitcnt lgkmcnt(0)")
    if RTM and i==6 and DBG: a.e("s_memrealtime s[90:91]\ns_waitcnt lgkmcnt(0)")
    if P1DBG and i in (3,6,7,8,9): return
    if DBG: a.e(f"s_memtime s[{72+2*i}:{73+2*i}]\ns_waitcnt lgkmcnt(0)")
def stamp_rt(a,i):
    if DBG: a.e(f"s_memrealtime s[{72+2*i}:{73+2*i}]\ns_waitcnt lgkmcnt(0)")
def stamp_out(a,n,srdws,t0,tag):
    if not DBG: return
    a.e("s_cmp_lg_u32 s9, 0")
    a.e(f"s_cbranch_scc1 STMP{tag}_skip")
    a.e(f"s_lshl_b32 s70, s2, 6\ns_add_u32 s70, s70, {WS_DBG}")
    a.e(f"s_mov_b64 exec, 1\nv_mov_b32 v{t0+1}, 0")
    for i in range(n):
        a.e(f"v_mov_b32 v{t0}, s{72+2*i}")
        a.e(f"buffer_store_dword v{t0}, v{t0+1}, s[{srdws}:{srdws+3}], s70 offen offset:{4*i}")
        a.e("s_nop 1")
    a.e("s_mov_b64 exec, -1")
    a.label(f"STMP{tag}_skip")
def stamp_dbg(a,n,sdb,t0):
    if not (DBG and os.environ.get('TODBG')): return
    wg=int(os.environ['TODBG'])
    a.e(f"s_cmp_lg_u32 s9, 0\ns_cbranch_scc1 SDBG_skip\ns_cmp_lg_u32 s2, {wg}\ns_cbranch_scc1 SDBG_skip")
    a.e(f"s_mov_b64 exec, 1\nv_mov_b32 v{t0+1}, 0")
    for i in range(2,n):
        if i==11: a.e(f"s_sub_u32 s70, s{72+2*i}, s74")
        else: a.e(f"s_sub_u32 s70, s{72+2*i}, s72")
        a.e(f"v_mov_b32 v{t0}, s70")
        a.e(f"buffer_store_dword v{t0}, v{t0+1}, s[{sdb}:{sdb+3}], 0 offen offset:{4*(i-1)}")
        a.e("s_nop 1")
    a.e("s_mov_b64 exec, -1")
    a.label("SDBG_skip")
def srd(a, d, lo, hi, size):
    a.e(f"s_mov_b32 s{d}, {lo}\ns_mov_b32 s{d+1}, {hi}\ns_mov_b32 s{d+2}, {size}\ns_mov_b32 s{d+3}, 0x20000")
R4=lambda r: f"v[{r}:{r+3}]"
R16=lambda r: f"v[{r}:{r+15}]"
MF="v_mfma_f32_32x32x16_bf16"

def fused(a):
    L="F"
    WLDS=0; XLDS=49152; GLDS=XLDS+8*12288; LDS_TOTAL=163840
    QX=65536; WOA=98304; GX=157696; FLAG=158720
    SX=40; SW=44; SG=48; SWS=52; SKV=36; SDB=12
    vLane=1; vL=2; vD=3; vGate=4
    vX=[10,11]; vXw=[22,23]; xs=128; vW=12; vG=13; vXr=[14,15,16,17]; vWr=[18,19]; vGr=20; vOnes=21
    xf=24; wf=[[40,44,48],[52,56,60]]; acc=[64,80,96]
    a.e(f"s_cmp_ge_u32 s2, 256\ns_cbranch_scc1 {L}_done")
    stamp(a,0); stamp_rt(a,1)
    a.e("""
    s_load_dwordx16 s[16:31], s[0:1], 0
    s_load_dwordx4 s[32:35], s[0:1], 64
    s_lshr_b32 s4, s2, 3
    s_bfe_u32 s7, s2, 0x10002
    s_bfe_u32 s3, s2, 0x10001
    s_lshl_b32 s3, s3, 3
    s_and_b32 s8, s4, 7
    s_add_u32 s8, s8, s3
    s_and_b32 s3, s2, 1
    s_lshl_b32 s3, s3, 2
    s_lshr_b32 s6, s4, 3
    s_add_u32 s6, s6, s3
    s_lshl_b32 s5, s7, 4
    s_add_u32 s5, s5, s8
    """)
    if os.environ.get("MAP")=="old":
        a.e("""
        s_and_b32 s3, s2, 7
        s_lshr_b32 s4, s2, 3
        s_and_b32 s5, s4, 3
        s_lshl_b32 s3, s3, 2
        s_add_u32 s5, s5, s3
        s_lshr_b32 s6, s4, 2
        s_lshr_b32 s7, s5, 4
        s_and_b32 s8, s5, 15
        """)
    a.e(f"""
    v_and_b32 v{vLane}, 63, v0
    v_lshrrev_b32 v5, 6, v0
    v_lshrrev_b32 v6, 3, v{vLane}
    v_readfirstlane_b32 s9, v5
    v_and_b32 v7, 7, v{vLane}
    v_lshrrev_b32 v5, 4, v{vLane}
    v_xor_b32 v7, v7, v5
    v_mul_u32_u24 v6, 896, v6
    v_lshl_add_u32 v{vX[0]}, v7, 4, v6
    v_xor_b32 v{vX[1]}, 64, v{vX[0]}
    v_mul_u32_u24 v6, 43, v{vLane}
    v_lshrrev_b32 v6, 9, v6
    v_mul_u32_u24 v7, 12, v6
    v_sub_u32 v7, v{vLane}, v7
    v_lshrrev_b32 v5, 2, v7
    v_and_b32 v7, 3, v7
    v_mul_u32_u24 v6, 2688, v6
    v_mul_u32_u24 v5, 896, v5
    v_lshlrev_b32 v7, 4, v7
    v_add3_u32 v{vW}, v6, v7, v5
    v_lshlrev_b32 v{vL}, 4, v{vLane}
    v_lshlrev_b32 v{vD}, 4, v0
    v_and_b32 v6, 31, v{vLane}
    v_lshrrev_b32 v7, 5, v{vLane}
    v_bfe_u32 v5, v{vLane}, 1, 3
    v_xor_b32 v5, v5, v7
    v_lshlrev_b32 v5, 4, v5
    v_lshl_add_u32 v5, v6, 7, v5
    s_mul_i32 s57, s9, 12288
    s_add_u32 s57, s57, {XLDS}
    v_add_u32 v{vXr[0]}, s57, v5
    v_xor_b32 v{vXr[1]}, 32, v{vXr[0]}
    v_xor_b32 v{vXr[2]}, 64, v{vXr[0]}
    v_xor_b32 v{vXr[3]}, 96, v{vXr[0]}
    v_lshlrev_b32 v7, 4, v7
    v_add_u32 v{vGr}, {GLDS}, v7
    v_cmp_eq_u32 vcc, 28, v6
    v_mov_b32 v6, 0x3f803f80
    v_mov_b32 v7, 0
    v_cndmask_b32 v{vOnes}, v7, v6, vcc
    v_lshrrev_b32 v5, 4, v{vLane}
    v_and_b32 v6, 1, v5
    v_lshrrev_b32 v5, 1, v5
    v_bfe_u32 v7, v{vLane}, 2, 2
    v_lshl_add_u32 v5, v5, 3, v7
    v_mul_u32_u24 v5, 192, v5
    v_lshl_add_u32 v5, v6, 5, v5
    v_and_b32 v6, 3, v{vLane}
    v_lshl_add_u32 v{vWr[0]}, v6, 3, v5
    """)
    assert XLDS%128==0
    a.e("""
    s_lshl_b32 s10, s6, 3
    s_add_u32 s10, s10, s9
    s_mul_i32 s56, s10, 28672
    s_mul_i32 s58, s9, 10752
    s_mul_i32 s59, s8, 56
    s_add_u32 s58, s58, s59
    s_mul_i32 s59, s9, 768
    s_mov_b32 s60, 0x10000000
    s_mov_b32 s61, 0x10000000
    s_waitcnt lgkmcnt(0)
    s_cmp_eq_u32 s7, 0
    s_cselect_b32 s38, s18, s24
    s_cselect_b32 s39, s19, s25
    """)
    stamp(a,2)
    srd(a,SX,"s16","s17",XB); srd(a,SW,"s38","s39",WB); srd(a,SG,"s28","s29",896)
    a.e("""
    s_mov_b32 s0, -1
    s_mov_b32 s1, 0xffff
    s_mov_b32 s66, -1
    s_mov_b32 s67, 0xffffff
    """)
    ROT=os.environ.get("ROT","1")=="1"
    if ROT:
        a.e("""
        s_and_b32 s62, s8, 7
        s_and_b32 s63, s6, 3
        s_lshl_b32 s63, s63, 1
        s_add_u32 s62, s62, s63
        s_cmp_ge_u32 s62, 7
        s_cselect_b32 s63, 7, 0
        s_sub_u32 s62, s62, s63
        s_lshl_b32 s62, s62, 7
        s_mov_b32 s4, s62
        """)
    else:
        a.e("s_mov_b32 s62, 0\ns_mov_b32 s4, 0")
    def dmaX1(kc,j):
        slot=kc%3
        if j==0:
            a.e("""
            s_add_u32 s64, s56, s62
            s_mul_i32 s63, s62, 1344
            s_add_u32 s63, s63, s58
            s_add_u32 s62, s62, 128
            s_cmp_eq_u32 s62, 896
            s_cselect_b32 s62, 0, s62
            """)
        a.e(f"""
        s_add_u32 m0, s57, {slot*4096+j*1024}
        s_add_u32 s65, s64, {8*j*896}
        buffer_load_dwordx4 v{vX[j&1]}, s[{SX}:{SX+3}], s65 offen lds
        """)
    def dmaW1(kc,i):
        a.e(f"""
        s_mov_b64 exec, s[0:1]
        s_add_u32 m0, s59, {WLDS+(kc%4)*12288+i*6144}
        s_add_u32 s65, s63, {i*32*2688}
        buffer_load_dwordx4 v{vW}, s[{SW}:{SW+3}], s65 offen lds
        s_mov_b64 exec, -1
        """)
    vmq=[]
    def chunk_ops(kc):
        ops=[]
        for j in range(4): ops.append(lambda j=j: (dmaX1(kc,j), vmq.append(("c",kc))))
        for i in range(2): ops.append(lambda i=i: (dmaW1(kc,i), vmq.append(("c",kc))))
        return ops
    DEPTH=int(os.environ.get("P1DEPTH","2"))
    TD=int(os.environ.get("TOUCHD","0"))
    ST=52
    if TD:
        a.e(f"""
        s_lshr_b32 s3, s2, 3
        s_and_b32 s62, s2, 1
        s_lshl_b32 s62, s62, 10
        s_lshl_b32 s63, s3, 5
        s_add_u32 s62, s62, s63
        s_lshl_b32 s63, s9, 3
        s_add_u32 s62, s62, s63
        v_add_u32 v122, s62, v{vLane}
        v_mul_u32_u24 v122, 896, v122
        s_mul_i32 s62, s3, 24
        s_sub_u32 s63, s9, 4
        s_mul_i32 s63, s63, 6
        s_add_u32 s62, s62, s63
        v_add_u32 v123, s62, v{vLane}
        v_lshrrev_b32 v124, 2, v123
        v_and_b32 v123, 3, v123
        v_mul_u32_u24 v124, 896, v124
        v_lshl_add_u32 v123, v123, 7, v124
        s_bfe_u32 s63, s2, 0x10001
        s_mul_i32 s63, s63, 384
        v_add_u32 v123, s63, v123
        s_cmp_lt_u32 s9, 4
        s_cselect_b64 vcc, -1, 0
        v_cndmask_b32 v122, v123, v122, vcc
        s_cselect_b32 s{ST}, s{SX}, s{SW}
        s_cselect_b32 s{ST+1}, s{SX+1}, s{SW+1}
        s_cselect_b32 s{ST+2}, s{SX+2}, s{SW+2}
        s_mov_b32 s{ST+3}, 0x20000
        s_mov_b32 s64, 172032
        s_cselect_b32 s62, 128, s64
        s_mov_b32 s64, 0xff
        s_cselect_b32 s63, s64, 63
        """)
    def touch(c):
        a.e(f"""
        s_mul_i32 s64, s62, {c}
        s_mov_b32 exec_lo, s63
        s_mov_b32 exec_hi, 0
        buffer_load_dword v123, v122, s[{ST}:{ST+3}], s64 offen
        s_mov_b64 exec, -1
        """)
        vmq.append(("t",c))
    def vmwait(tag):
        idx=max(i for i,t in enumerate(vmq) if t==tag)
        a.e(f"s_waitcnt vmcnt({len(vmq)-idx-1})")
    a.e(f"""
    s_mov_b64 exec, s[66:67]
    s_mov_b32 m0, {GLDS}
    s_nop 0
    buffer_load_dwordx4 v{vL}, s[{SG}:{SG+3}], 0 offen lds
    s_mov_b64 exec, -1
    """)
    for kc in range(2):
        for op in chunk_ops(kc): op()
        if kc<1: a.e("s_barrier")
    stamp1(a,3)
    srd(a,SDB,"s32","s33",256)
    a.e(f"""
    s_or_b32 s3, s2, s9
    s_cmp_lg_u32 s3, 0
    s_cbranch_scc1 {L}_notag
    s_memrealtime s[70:71]
    s_waitcnt lgkmcnt(0)
    s_or_b32 s70, s70, 1
    v_mov_b32 v5, s70
    v_mov_b32 v6, 0
    s_mov_b64 exec, 1
    buffer_store_dword v5, v6, s[{SDB}:{SDB+3}], 0 offen sc1
    s_mov_b64 exec, -1
    """)
    a.label(f"{L}_notag")
    a.e("""
    s_lshl_b32 s3, s5, 18
    s_add_u32 s36, s34, s3
    s_addc_u32 s37, s35, 0
    s_mov_b32 s38, 0x40000
    s_mov_b32 s39, 0x20000
    """)
    for r in range(48): a.e(f"v_mov_b32 v{acc[0]+r}, 0")
    def wreads(ks,buf):
        o=((ks//4)%4)*12288+(ks%4)*3072
        for t in range(3):
            r=wf[buf][t]
            a.e(f"ds_read_b64_tr_b16 v[{r}:{r+1}], v{vWr[0]} offset:{o+t*64}")
            a.e(f"ds_read_b64_tr_b16 v[{r+2}:{r+3}], v{vWr[0]} offset:{o+t*64+768}")
        r=wf[buf][0]
        a.e(f"s_mov_b64 exec, s[60:61]\nds_read_b128 v[{r}:{r+3}], v22 offset:{(ks%4)*32}\ns_mov_b64 exec, -1")
    xfb=[xf,128]
    lq=[]
    def lwait(tag):
        if tag in lq:
            idx=max(i for i,t in enumerate(lq) if t==tag)
            a.e(f"s_waitcnt lgkmcnt({min(15,len(lq)-idx-1)})"); del lq[:idx+1]
    def wreads2(ks,buf):
        wreads(ks,buf); lq.extend([("w",ks)]*7)
    pend=[]
    def sync(k):
        vmwait(("c",k))
        if k in (0,1,3,6): stamp1(a,{0:6,1:7,3:8,6:9}[k])
        if k==6: a.e(f"v_mov_b32 v120, 0\nbuffer_load_dword v121, v120, s[{SDB}:{SDB+3}], 0 offen sc1")
        a.e("s_barrier")
        for kk in range(4):
            a.e(f"ds_read_b128 {R4(xfb[k%2]+4*kk)}, v{vXr[kk]} offset:{(k%3)*4096}"); lq.append(("x",k))
        if k+2<7: pend.extend(chunk_ops(k+2))
    def gate_base():
        a.e(f"v_add_u32 v22, s4, v{vGr}\ns_add_u32 s4, s4, 128\ns_cmp_eq_u32 s4, 896\ns_cselect_b32 s4, 0, s4")
    sync(0)
    gate_base()
    wreads2(0,0)
    for kc in range(7):
        for kk in range(4):
            ks=4*kc+kk; buf=ks&1
            lwait(("w",ks)); lwait(("x",kc))
            if kk==2 and kc<6: sync(kc+1)
            if ks+1<28:
                if kk==3: gate_base()
                wreads2(ks+1,buf^1)
            x=R4(xfb[kc%2]+4*kk)
            for t in range(3):
                w=R4(wf[buf][t]); c=R16(acc[t])
                if t<2: a.e(f"{MF} {c}, {w}, {x}, {c}")
                else:   a.e(f"{MF} {c}, {x}, {w}, {c}")
            for _ in range(2):
                if pend: pend.pop(0)()
    assert not pend
    srd(a,SWS,"s34","s35",WS_END)
    stamp(a,4)
    a.e(f"""
    s_lshl_b32 s11, s10, 12
    s_mov_b32 s67, {hex(f2u(QSCALE))}
    s_mov_b32 s68, 0
    s_mov_b32 s69, -1
    s_mov_b32 s70, 0xf0000000
    s_mov_b32 s71, 0xf0000000
    s_nop 7
    """)
    for t in (1,2):
        for i in range(8): a.e(f"v_cvt_pk_bf16_f32 v{acc[t]+i}, v{acc[t]+2*i}, v{acc[t]+2*i+1}")
    a.e(f"""
    s_mov_b64 exec, s[68:69]
    v_mov_b32 v{acc[1]+6}, 0x3f80
    v_mov_b32 v{acc[1]+7}, 0
    s_mov_b64 exec, s[70:71]
    """)
    for i in range(8): a.e(f"v_mov_b32 v{acc[2]+i}, v{vOnes}")
    a.e("s_mov_b64 exec, -1")
    a.e(f"s_lshl_b32 s3, s9, 12\nv_add_u32 v5, s3, v{vL}")
    for t in (1,2):
        for c in range(2):
            r=acc[t]+4*c
            a.e(f"buffer_store_dwordx4 {R4(r)}, v{vL}, s[{SKV}:{SKV+3}], s11 offen offset:{(t-1)*2048+c*1024} {os.environ.get('KVST','sc1')}")
    a.e(f"""
    v_mul_f32 v6, {hex(f2u(-math.log2(math.e)))}, v{acc[0]+12}
    v_exp_f32 v6, v6
    s_nop 0
    v_add_f32 v6, 1.0, v6
    v_rcp_f32 v6, v6
    s_nop 0
    v_sub_f32 v7, 1.0, v6
    s_cmp_eq_u32 s7, 0
    s_cselect_b64 vcc, -1, 0
    v_cndmask_b32 v6, v7, v6, vcc
    """)
    for r in range(16): a.e(f"v_mul_f32 v{acc[0]+r}, s67, v{acc[0]+r}")
    for i in range(8): a.e(f"v_cvt_pk_bf16_f32 v{acc[0]+i}, v{acc[0]+2*i}, v{acc[0]+2*i+1}")
    a.e(f"""
    s_lshl_b32 s3, s9, 11
    s_add_u32 s3, s3, {QX}
    v_add_u32 v7, s3, v{vL}
    s_lshl_b32 s3, s9, 7
    s_add_u32 s3, s3, {GX-128}
    v_lshl_add_u32 v8, v{vLane}, 2, s3
    s_mov_b64 exec, s[68:69]
    v_mov_b32 v{acc[0]+6}, 0
    v_mov_b32 v{acc[0]+7}, 0
    s_mov_b64 exec, -1
    s_barrier
    """)
    for t in (1,2):
        for c in range(2):
            a.e(f"ds_write_b128 v5, {R4(acc[t]+4*c)} offset:{(t-1)*2048+c*1024}")
    for c in range(2): a.e(f"ds_write_b128 v7, {R4(acc[0]+4*c)} offset:{c*1024}")
    a.e(f"""
    s_mov_b64 exec, s[68:69]
    ds_write_b32 v8, v6
    s_mov_b64 exec, -1
    v_mov_b32 v123, {FLAG}
    v_mov_b32 v6, 0
    ds_write_b32 v123, v6
    """)
    Q=[[16,20],[24,28]]; S=[32,48]; P=64; kA=72; kB=76; vA=80; vB=84; O=[88,104]; vM=[8,14]; vR0=9; vR2=13
    a.e(f"""
    s_and_b32 s62, s9, 3
    s_lshr_b32 s63, s9, 2
    s_lshl_b32 s64, s62, 1
    s_add_u32 s64, s64, s63
    s_lshl_b32 s3, s63, 14
    v_add_u32 v{vR0}, s3, v{vL}
    v_add_u32 v{vR2}, 65536, v{vR0}
    s_lshl_b32 s57, s9, 10
    v_lshlrev_b32 v10, 7, v{vLane}
    s_lshl_b32 s61, s5, 10
    s_add_u32 s61, s61, {WS_FKV}
    s_lshl_b32 s58, 1, s6
    s_xor_b32 s58, s58, 0xff
    s_mov_b32 s59, 0
    s_waitcnt lgkmcnt(0)
    s_barrier
    """)
    stamp(a,5)
    def gettag():
        a.label(f"{L}_tag")
        a.e(f"""
        v_readfirstlane_b32 s71, v121
        s_nop 3
        s_cmp_lg_u32 s71, 0
        s_cbranch_scc1 {L}_tagok
        s_sleep 2
        buffer_load_dword v121, v120, s[{SDB}:{SDB+3}], 0 offen sc1
        s_waitcnt vmcnt(0)
        s_branch {L}_tag
        """)
        a.label(f"{L}_tagok")
    def poll_check(soff,mask_lo,tag,first_issued,vaddr=10,sleep=2):
        if mask_lo is not None: a.e(f"s_mov_b32 exec_lo, {mask_lo}\ns_mov_b32 exec_hi, 0")
        if first_issued: a.e(f"s_branch {L}_pchk{tag}")
        a.label(f"{L}_poll{tag}")
        a.e(f"buffer_load_dword v12, v{vaddr}, s[{SWS}:{SWS+3}], {soff} offen sc1")
        a.label(f"{L}_pchk{tag}")
        a.e(f"""
        s_waitcnt vmcnt(0)
        v_cmp_ne_u32 vcc, s71, v12
        s_nop 1
        s_cmp_eq_u64 vcc, 0
        s_cbranch_scc1 {L}_pdone{tag}
        s_mov_b64 exec, vcc
        s_sleep {sleep}
        s_branch {L}_poll{tag}
        """)
        a.label(f"{L}_pdone{tag}")
        a.e("s_mov_b64 exec, -1")
    def poll_pipe(soff,mask_lo,tag,regs=(12,11,8)):
        a.e(f"s_mov_b32 exec_lo, {mask_lo}\ns_mov_b32 exec_hi, 0")
        k=len(regs)
        for r in regs[:-1]:
            a.e(f"buffer_load_dword v{r}, v10, s[{SWS}:{SWS+3}], {soff} offen sc1\ns_sleep 2")
        a.e(f"buffer_load_dword v{regs[-1]}, v10, s[{SWS}:{SWS+3}], {soff} offen sc1")
        a.label(f"{L}_pp{tag}")
        for r in regs:
            a.e(f"""
            s_waitcnt vmcnt({k-1})
            v_cmp_ne_u32 vcc, s71, v{r}
            s_nop 1
            s_cmp_eq_u64 vcc, 0
            s_cbranch_scc1 {L}_ppd{tag}
            buffer_load_dword v{r}, v10, s[{SWS}:{SWS+3}], {soff} offen sc1
            """)
        a.e(f"s_branch {L}_pp{tag}")
        a.label(f"{L}_ppd{tag}")
        a.e("s_mov_b64 exec, -1")
    def signal(soff,tag):
        a.e(f"""
        v_mov_b32 v12, s71
        s_mov_b64 exec, 1
        buffer_store_dword v12, v120, s[{SWS}:{SWS+3}], {soff} offen sc1
        s_mov_b64 exec, -1
        """)
    a.e(f"""
    s_lshl_b32 s3, s64, 11
    s_add_u32 s3, s3, {QX}
    v_add_u32 v5, s3, v{vL}
    v_xor_b32 v6, 2048, v5
    ds_read_b128 {R4(Q[0][0])}, v5
    ds_read_b128 {R4(Q[0][1])}, v5 offset:1024
    ds_read_b128 {R4(Q[1][0])}, v6
    ds_read_b128 {R4(Q[1][1])}, v6 offset:1024
    ds_read_b128 {R4(kA)}, v{vL}
    ds_read_b128 {R4(kB)}, v{vL} offset:1024
    s_lshl_b32 s3, s64, 7
    s_add_u32 s3, s3, {GX}
    v_and_b32 v7, 31, v{vLane}
    v_lshl_add_u32 v7, v7, 2, s3
    ds_read_b32 v{vGate}, v7
    s_waitcnt lgkmcnt(0)
    """)
    assert QX%4096==0
    for X in range(2):
        a.e(f"{MF} {R16(S[X])}, {R4(kA)}, {R4(Q[X][0])}, 0")
        a.e(f"{MF} {R16(S[X])}, {R4(kB)}, {R4(Q[X][1])}, {R16(S[X])}")
    def toff(s,j):
        slot=s%3
        return (vR0,slot*32768+j*4096) if slot<2 else (vR2,j*4096)
    def rdk(r,s,j,o):
        b,off=toff(s,j)
        a.e(f"ds_read_b128 {R4(r)}, v{b} offset:{off+o}")
    rdk(kA,0,0,0); rdk(kB,0,0,1024); rdk(vA,0,0,2048)
    for r in range(32): a.e(f"v_mov_b32 v{O[0]+r}, 0")
    a.e("s_mov_b64 s[62:63], 0\ns_mov_b32 s60, 0x45000000")
    for X in range(2):
        s0=S[X]; m=vM[X]
        a.e(f"v_max3_f32 v{m}, v{s0}, v{s0+1}, v{s0+2}")
        for i in range(3,15,2): a.e(f"v_max3_f32 v{m}, v{m}, v{s0+i}, v{s0+i+1}")
        a.e(f"""
        v_max_f32 v{m}, v{m}, v{s0+15}
        v_mov_b32 v5, v{m}
        s_nop 0
        v_mov_b32 v6, v{m}
        s_nop 1
        v_permlane32_swap_b32 v5, v6
        s_nop 1
        v_max_f32 v{m}, v5, v6
        v_cmp_nge_f32 vcc, s60, abs(v{m})
        v_lshrrev_b32 v5, 16, v{m}
        v_xor_b32 v5, 0x8000, v5
        s_or_b64 s[62:63], s[62:63], vcc
        s_mov_b64 exec, s[68:69]
        v_mov_b32 v{Q[X][1]+2}, v5
        s_mov_b64 exec, -1
        """)
    a.e("s_waitcnt lgkmcnt(0)")
    a.e(f"{MF} {R16(S[0])}, {R4(kA)}, {R4(Q[0][0])}, 0")
    a.e(f"{MF} {R16(S[0])}, {R4(kB)}, {R4(Q[0][1])}, {R16(S[0])}")
    a.e("s_nop 7\ns_nop 3")
    def dma_stage_ops(s):
        slot=s%3
        def first():
            a.e(f"s_add_u32 s55x, s6, {s}")
        ops=[]
        for i in range(4):
            def op(i=i):
                if i==0: a.e(f"s_add_u32 s58x, s6, {s}\ns_and_b32 s58x, s58x, 7\ns_lshl_b32 s58x, s58x, 15".replace("s58x","s70"))
                a.e(f"""
                s_add_u32 m0, s57, {slot*32768+i*8192}
                s_add_u32 s65, s70, {i*8192}
                buffer_load_dwordx4 v{vD}, s[{SKV}:{SKV+3}], s65 offen {DMASC} lds
                """)
            ops.append(op)
        return ops
    def dma_stage(s):
        for op in dma_stage_ops(s): op()
    SWA=40; SWB=44; SO=48; vD3=15
    a.e(f"""
    s_mul_i32 s3, s5, 37
    s_lshr_b32 s4, s3, 8
    s_mul_i32 s3, s4, 7
    s_sub_u32 s3, s5, s3
    s_lshl_b32 s11, s6, 2
    s_add_u32 s4, s4, s11
    s_lshl_b32 s56, s3, 7
    v_lshrrev_b32 v6, 3, v{vLane}
    v_mul_u32_u24 v6, 896, v6
    v_and_b32 v7, 7, v{vLane}
    v_bfe_u32 v5, v{vLane}, 4, 1
    v_lshlrev_b32 v5, 2, v5
    v_xor_b32 v7, v7, v5
    v_lshl_add_u32 v{vD3}, v7, 4, v6
    """)
    srd(a,SWA,"s20","s21",WOB); srd(a,SWB,"s26","s27",WOB); srd(a,SO,"s30","s31",XB)
    wo_ctr=[0]
    def dma_wo(sw,ldsbase,m,tag):
        a.e(f"s_add_u32 s65, s9, {8*m}")
        if m==7: a.e("s_cmp_ge_u32 s65, 58\ns_cselect_b32 s66, 58, 0\ns_sub_u32 s65, s65, s66")
        a.e(f"""
        s_cmp_ge_u32 s65, 29
        s_cselect_b32 s66, 29, 0
        s_cselect_b32 s67, {224*896}, 0
        s_cselect_b32 s60, 29696, 0
        s_sub_u32 s65, s65, s66
        s_lshl_b32 s66, s65, 10
        s_add_u32 s66, s66, s60
        s_add_u32 m0, s66, {ldsbase}
        s_mul_i32 s65, s65, {8*896}
        s_add_u32 s65, s65, s67
        s_add_u32 s65, s65, s56
        buffer_load_dwordx4 v{vD3}, s[{sw}:{sw+3}], s65 offen lds
        """)
    def touch_wob():
        a.e(f"""
        s_mul_i32 s65, s9, {56*896}
        s_add_u32 s65, s65, s56
        v_mul_u32_u24 v5, 896, v{vLane}
        s_mov_b32 exec_lo, -1
        s_mov_b32 exec_hi, 0xffffff
        buffer_load_dword v11, v5, s[{SWB}:{SWB+3}], s65 offen
        s_mov_b64 exec, -1
        """)
    units=[(s,j,X) for s in range(8) for j in range(4) for X in (0,1)]
    KVP=[int(x) for x in os.environ.get('KVP','1,3').split(',')]
    SIGN=int(os.environ.get('SIGN','0'))
    outst=[]; deferred=[]
    def rd(name,r,s,j,o):
        rdk(r,s,j,o); outst.append(name)
    def need(name):
        if name in outst:
            idx=outst.index(name); a.e(f"s_waitcnt lgkmcnt({len(outst)-idx-1})"); del outst[:idx+1]
    a.loopstart=len(a.lines)
    for n,(s,j,X) in enumerate(units):
        sc=S[n%2]; sn=S[(n+1)%2]
        nxt=units[n+1] if n+1<64 else None
        prv=units[n-1] if n>0 else None
        nt=(s,j+1) if j<3 else ((s+1,0) if s<7 else None)
        if n==SIGN:
            stampF(a,3); outst.clear() if (FST and DBG) else None
            a.e("s_waitcnt vmcnt(0)\ns_barrier")
            stampF(a,4)
            gettag()
            a.e(f"s_cmp_lg_u32 s9, 0\ns_cbranch_scc1 {L}_nsig")
            a.e("s_lshl_b32 s3, s6, 7\ns_add_u32 s3, s3, s61")
            signal("s3","kv")
            a.label(f"{L}_nsig")
        if n==KVP[0]:
            a.e(f"s_cmp_lg_u32 s9, 0\ns_cbranch_scc1 {L}_npi")
            a.e(f"s_mov_b64 exec, s[58:59]\nbuffer_load_dword v12, v10, s[{SWS}:{SWS+3}], s61 offen sc1\ns_mov_b64 exec, -1")
            a.label(f"{L}_npi")
        if n==KVP[1]:
            stampF(a,5); outst.clear() if (FST and DBG) else None
            a.e(f"s_cmp_lg_u32 s9, 0\ns_cbranch_scc1 {L}_npc")
            a.e("s_mov_b64 exec, s[58:59]")
            poll_check("s61",None,"kv",True,vaddr=10,sleep=1)
            a.e(f"v_mov_b32 v12, 1\nds_write_b32 v123, v12")
            a.label(f"{L}_npc")
            a.e("s_mov_b32 s60, 0")
        if n in (KVP[1],KVP[1]+1) :
            last = (n==KVP[1]+1)
            a.e(f"s_cmp_lg_u32 s60, 0\ns_cbranch_scc1 {L}_go{n}x")
            a.label(f"{L}_go{n}")
            a.e(f"""
            ds_read_b32 v12, v123
            s_waitcnt lgkmcnt(0)
            v_readfirstlane_b32 s60, v12
            s_nop 3
            s_cmp_lg_u32 s60, 0
            """)
            if last: a.e(f"s_cbranch_scc0 {L}_go{n}")
            else: a.e(f"s_cbranch_scc0 {L}_go{n}x")
            if last: stampF(a,6)
            dma_stage(1)
            a.label(f"{L}_go{n}x")
        if j==3 and X==0 and s<7:
            if s==0 and FST and DBG:
                stampF(a,7); outst.clear(); a.e("s_waitcnt vmcnt(0)"); stampF(a,8)
            a.e("s_waitcnt vmcnt(0)\ns_barrier")
            if s==0: stampF(a,9)
            if STG and DBG:
                stampS(a,3+s); outst.clear()
            if s+2<8: deferred+=dma_stage_ops(s+2)
            if s==5: deferred+=[touch_wob]
            if 1<=s<=4:
                deferred+=[lambda s=s: dma_wo(SWA,WOA,2*(s-1),f"a{s}0"), lambda s=s: dma_wo(SWA,WOA,2*(s-1)+1,f"a{s}1")]
        if n<6: pr=3-(n*4)//6
        elif n>=54: pr=3-((n-54)*4)//10
        else: pr=3-((n-6)%8)//2
        a.e(f"s_setprio {pr}")
        def grp(g):
            for k in range(4): a.e(f"v_exp_f32 v{sc+4*g+k}, v{sc+4*g+k}")
            a.e(f"v_cvt_pk_bf16_f32 v{P+2*g}, v{sc+4*g}, v{sc+4*g+1}")
            a.e(f"v_cvt_pk_bf16_f32 v{P+2*g+1}, v{sc+4*g+2}, v{sc+4*g+3}")
        ORD=os.environ.get("ORD","0")
        def E(g,ks=range(4)):
            for k in ks: a.e(f"v_exp_f32 v{sc+4*g+k}, v{sc+4*g+k}")
        def C(g,base=None):
            b=sc if base is None else base
            a.e(f"v_cvt_pk_bf16_f32 v{P+2*g}, v{b+4*g}, v{b+4*g+1}")
            a.e(f"v_cvt_pk_bf16_f32 v{P+2*g+1}, v{b+4*g+2}, v{b+4*g+3}")
        def M1():
            if nxt:
                need("kA"); a.e(f"{MF} {R16(sn)}, {R4(kA)}, {R4(Q[nxt[2]][0])}, 0")
            if X==0 and nt: rd("kA",kA,nt[0],nt[1],0)
        def M2():
            if nxt:
                need("kB"); a.e(f"{MF} {R16(sn)}, {R4(kB)}, {R4(Q[nxt[2]][1])}, {R16(sn)}")
            if X==0 and nt: rd("kB",kB,nt[0],nt[1],1024)
        def M3():
            if prv:
                need("vB"); a.e(f"{MF} {R16(O[prv[2]])}, {R4(vB)}, {R4(P+4)}, {R16(O[prv[2]])}")
            if X==0: rd("vB",vB,s,j,3072)
        def M4():
            need("vA"); a.e(f"{MF} {R16(O[X])}, {R4(vA)}, {R4(P)}, {R16(O[X])}")
            if X==1 and nt: rd("vA",vA,nt[0],nt[1],2048)
        if ORD=="0":
            M1(); E(0); C(0); M2(); E(1,(0,1))
            if deferred: deferred.pop(0)()
            E(1,(2,3)); C(1); M3(); E(2); C(2); M4(); E(3); C(3)
        elif ORD=="1":
            if prv: C(3,sn)
            M1(); E(0)
            M2(); E(1); C(0)
            if prv: a.e("s_nop 0") if False else None
            M3(); E(2); C(1)
            E(3,(0,1)); M4(); E(3,(2,3)); C(2)
            if n==63: C(3)
    a.loopend=len(a.lines)
    a.e("s_setprio 0")
    stamp(a,6)
    a.e("s_nop 1")
    a.e(f"{MF} {R16(O[1])}, {R4(vB)}, {R4(P+4)}, {R16(O[1])}")
    a.e("s_nop 15")
    a.e(f"""
    s_lshl_b32 s3, s9, 12
    s_add_u32 s3, s3, 65536
    v_add_u32 v6, s3, v{vL}
    """)
    for g in range(4): a.e(f"ds_write_b128 v6, {R4(O[1]+4*g)} offset:{g*1024}")
    a.e(f"""
    v_xor_b32 v6, 16384, v6
    s_waitcnt lgkmcnt(0)
    s_barrier
    """)
    stampT(a,2)
    for g in range(4): a.e(f"ds_read_b128 {R4(O[1]+4*g)}, v6 offset:{g*1024}")
    a.e("s_waitcnt lgkmcnt(0)")
    for r in range(16): a.e(f"v_add_f32 v{O[0]+r}, v{O[0]+r}, v{O[1]+r}")
    a.e("s_mov_b32 s70, 0")
    a.label(f"{L}_final")
    Of=O[0]; On=O[1]; Opk=S[0]
    a.e(f"v_mov_b32 v5, v{Of+12}\nv_mov_b32 v6, v{Of+12}\ns_nop 1\nv_permlane32_swap_b32 v5, v6")
    a.e(f"""
    v_rcp_f32 v7, v6
    s_lshl_b32 s11, s5, 17
    v_mul_f32 v7, v7, v{vGate}
    s_lshl_b32 s3, s6, 3
    s_add_u32 s3, s3, s64
    """)
    for r in range(16): a.e(f"v_mul_f32 v{On+r}, v{Of+r}, v7")
    for i in range(8): a.e(f"v_cvt_pk_bf16_f32 v{Opk+i}, v{On+2*i}, v{On+2*i+1}")
    a.e(f"""
    s_lshl_b32 s59, s3, 12
    s_add_u32 s59, s59, {WS_FO}
    s_lshl_b32 s3, s3, 11
    s_add_u32 s11, s11, s3
    s_add_u32 s11, s11, {WS_O}
    s_mov_b64 exec, s[68:69]
    v_mov_b32 v{Opk+6}, 0
    v_mov_b32 v{Opk+7}, 0
    s_mov_b64 exec, -1
    s_lshl_b32 s3, s5, 7
    s_add_u32 s3, s3, s59
    buffer_store_dwordx4 {R4(Opk)}, v{vL}, s[{SWS}:{SWS+3}], s11 offen sc1
    buffer_store_dwordx4 {R4(Opk+4)}, v{vL}, s[{SWS}:{SWS+3}], s11 offen offset:1024 sc1
    """)
    stampT(a,3)
    a.e(f"s_cmp_lg_u32 s70, 0\ns_cbranch_scc1 {L}_chkd")
    a.e(f"v_mul_f32 v7, 0, v{On}")
    for r in range(1,16): a.e(f"v_fmac_f32 v7, 0, v{On+r}")
    a.e(f"""
    v_cmp_u_f32 vcc, v7, v7
    s_nop 0
    s_or_b64 s[62:63], s[62:63], vcc
    v_cmp_nge_f32 vcc, 0x4e800000, v6
    s_nop 0
    s_or_b64 s[62:63], s[62:63], vcc
    v_cmp_nle_f32 vcc, 0x35800000, v6
    s_nop 0
    s_or_b64 s[62:63], s[62:63], vcc
    s_cmp_lg_u64 s[62:63], 0
    s_cbranch_scc1 {L}_slow
    """)
    a.label(f"{L}_chkd")
    for m in range(8): dma_wo(SWB,0,m,f"b{m}")
    a.e("s_waitcnt vmcnt(8)")
    stampT(a,4)
    signal("s3","o")
    stamp(a,7)
    a.e(f"s_cmp_ge_u32 s5, 28\ns_cbranch_scc1 {L}_end")
    of=16; wfo=[[80,84],[88,92]]; acc3=[96,112]; vA3=[14,15]
    a.e(f"""
    s_and_b32 s60, s9, 1
    s_lshr_b32 s61, s9, 1
    v_lshrrev_b32 v6, 4, v{vLane}
    v_and_b32 v7, 1, v6
    v_lshrrev_b32 v6, 1, v6
    v_bfe_u32 v5, v{vLane}, 2, 2
    v_lshl_add_u32 v6, v6, 2, v5
    v_lshlrev_b32 v6, 7, v6
    v_lshrrev_b32 v5, 1, v5
    v_lshl_add_u32 v6, v5, 6, v6
    v_lshl_add_u32 v6, v7, 5, v6
    v_and_b32 v7, 3, v{vLane}
    v_lshl_add_u32 v6, v7, 3, v6
    s_and_b32 s63, s61, 1
    s_mul_i32 s63, s63, 29696
    s_cmp_lt_u32 s61, 2
    s_cselect_b32 s62, {WOA}, 0
    s_add_u32 s62, s62, s63
    v_add_u32 v{vA3[0]}, s62, v6
    v_xor_b32 v{vA3[1]}, 64, v{vA3[0]}
    s_lshl_b32 s62, s4, 1
    s_add_u32 s62, s62, s60
    s_lshl_b32 s62, s62, 11
    s_lshl_b32 s63, s61, 20
    s_add_u32 s62, s62, s63
    s_add_u32 s62, s62, {WS_O}
    """)
    for r in range(32): a.e(f"v_mov_b32 v{acc3[0]+r}, 0")
    a.e(f"""
    s_lshl_b32 s3, s4, 1
    s_add_u32 s3, s3, s60
    s_lshl_b32 s59, s3, 12
    s_lshl_b32 s3, s61, 10
    s_add_u32 s59, s59, s3
    s_add_u32 s59, s59, {WS_FO}
    s_waitcnt vmcnt(0)
    s_barrier
    """)
    if os.environ.get("PIPE","0")=="1": poll_pipe("s59","0xff","o")
    else: poll_check("s59","0xff","o",False,sleep=int(os.environ.get("SLP","2")))
    stamp(a,8)
    for i in range(8):
        a.e(f"s_add_u32 s63, s62, {i*131072}")
        for c in range(2):
            a.e(f"buffer_load_dwordx4 {R4(of+8*i+4*c)}, v{vL}, s[{SWS}:{SWS+3}], s63 offen offset:{c*1024} sc1")
    stampT(a,5)
    def wr(step,buf):
        i,c=step//2,step%2
        o=(i*28+16*c)*128
        for nt in range(2):
            r=wfo[buf][nt]
            a.e(f"ds_read_b64_tr_b16 v[{r}:{r+1}], v{vA3[nt]} offset:{o}")
            a.e(f"ds_read_b64_tr_b16 v[{r+2}:{r+3}], v{vA3[nt]} offset:{o+1024}")
    wr(0,0)
    for step in range(16):
        buf=step&1
        if step<15:
            wr(step+1,buf^1); a.e(f"s_waitcnt vmcnt({15-step}) lgkmcnt(4)")
        else: a.e("s_waitcnt vmcnt(0) lgkmcnt(0)")
        i,c=step//2,step%2
        for nt in range(2):
            cc=R16(acc3[nt])
            a.e(f"{MF} {cc}, {R4(wfo[buf][nt])}, {R4(of+8*i+4*c)}, {cc}")
    a.e("s_nop 15\ns_barrier")
    stamp(a,9)
    a.e(f"s_lshl_b32 s62, s9, 13\nv_add_u32 v6, s62, v{vL}")
    for nt in range(2):
        for g in range(4):
            a.e(f"ds_write_b128 v6, {R4(acc3[nt]+4*g)} offset:{nt*4096+g*1024}")
    a.e(f"""
    s_waitcnt lgkmcnt(0)
    s_barrier
    s_lshr_b32 s61, s9, 1
    s_and_b32 s61, s61, 1
    s_lshr_b32 s57, s9, 2
    s_lshl_b32 s62, s60, 13
    s_lshl_b32 s63, s61, 12
    s_add_u32 s62, s62, s63
    s_lshl_b32 s63, s57, 11
    s_add_u32 s62, s62, s63
    v_add_u32 v6, s62, v{vL}
    """)
    for kq in range(4):
        if kq==2: a.e(f"v_add_u32 v6, {4*8192}, v6")
        for g in range(2):
            a.e(f"ds_read_b128 {R4(16+kq*8+g*4)}, v6 offset:{(kq&1)*16384+g*1024}")
    a.e("s_waitcnt lgkmcnt(0)")
    for k in range(8):
        a.e(f"v_add_f32 v{16+k}, v{16+k}, v{24+k}")
        a.e(f"v_add_f32 v{32+k}, v{32+k}, v{40+k}")
    for k in range(8): a.e(f"v_add_f32 v{16+k}, v{16+k}, v{32+k}")
    a.e(f"""
    v_cvt_pk_bf16_f32 v48, v16, v17
    v_cvt_pk_bf16_f32 v49, v18, v19
    v_cvt_pk_bf16_f32 v50, v20, v21
    v_cvt_pk_bf16_f32 v51, v22, v23
    v_and_b32 v6, 31, v{vLane}
    v_lshrrev_b32 v7, 5, v{vLane}
    v_permlane32_swap_b32 v48, v50
    v_permlane32_swap_b32 v49, v51
    v_mul_u32_u24 v6, 896, v6
    v_lshl_add_u32 v6, v7, 4, v6
    s_lshl_b32 s62, s4, 1
    s_add_u32 s62, s62, s60
    s_mul_i32 s62, s62, {32*896}
    s_add_u32 s62, s62, s56
    s_lshl_b32 s63, s61, 6
    s_add_u32 s62, s62, s63
    s_lshl_b32 s63, s57, 5
    s_add_u32 s62, s62, s63
    buffer_store_dwordx4 v[48:51], v6, s[{SO}:{SO+3}], s62 offen
    """)
    a.label(f"{L}_end")
    if DBG:
        a.e("s_waitcnt vmcnt(0)"); stamp(a,10); stamp_rt(a,11); stamp_out(a,13,SWS,60,"f"); stamp_dbg(a,12,SDB,60)
    a.label(f"{L}_done")
    a.e("s_endpgm")
    a.label(f"{L}_slow")
    m=vM[0]; Os=O[0]; sc=S[0]; q0=Q[0][0]; q1=Q[0][1]
    a.e(f"""
    s_mov_b64 exec, s[68:69]
    v_mov_b32 v{q1+2}, 0
    s_mov_b64 exec, -1
    v_mov_b32 v{m}, 0xff800000
    s_mov_b32 s60, 0
    """)
    for r in range(16): a.e(f"v_mov_b32 v{Os+r}, 0")
    a.label(f"{L}_sin")
    sl1=len(a.lines)
    a.e(f"""
    buffer_load_dwordx4 {R4(kA)}, v{vL}, s[{SKV}:{SKV+3}], s60 offen sc1
    buffer_load_dwordx4 {R4(kB)}, v{vL}, s[{SKV}:{SKV+3}], s60 offen offset:1024 sc1
    buffer_load_dwordx4 {R4(vA)}, v{vL}, s[{SKV}:{SKV+3}], s60 offen offset:2048 sc1
    buffer_load_dwordx4 {R4(vB)}, v{vL}, s[{SKV}:{SKV+3}], s60 offen offset:3072 sc1
    s_waitcnt vmcnt(0)
    {MF} {R16(sc)}, {R4(kA)}, {R4(q0)}, 0
    {MF} {R16(sc)}, {R4(kB)}, {R4(q1)}, {R16(sc)}
    s_nop 15
    v_max3_f32 v5, v{sc}, v{sc+1}, v{sc+2}
    """)
    for k in range(3,15,2): a.e(f"v_max3_f32 v5, v5, v{sc+k}, v{sc+k+1}")
    a.e(f"""
    v_max_f32 v5, v5, v{sc+15}
    s_nop 0
    v_mov_b32 v6, v5
    s_nop 1
    v_permlane32_swap_b32 v5, v6
    s_nop 1
    v_max3_f32 v5, v5, v6, v{m}
    v_sub_f32 v6, v{m}, v5
    v_exp_f32 v6, v6
    v_mov_b32 v{m}, v5
    """)
    for r in range(16): a.e(f"v_sub_f32 v{sc+r}, v{sc+r}, v5")
    for r in range(16): a.e(f"v_exp_f32 v{sc+r}, v{sc+r}")
    for r in range(16): a.e(f"v_mul_f32 v{Os+r}, v{Os+r}, v6")
    for k in range(8): a.e(f"v_cvt_pk_bf16_f32 v{P+k}, v{sc+2*k}, v{sc+2*k+1}")
    a.e(f"""
    s_nop 1
    {MF} {R16(Os)}, {R4(vA)}, {R4(P)}, {R16(Os)}
    {MF} {R16(Os)}, {R4(vB)}, {R4(P+4)}, {R16(Os)}
    s_nop 15
    s_add_u32 s60, s60, 4096
    s_cmp_lt_u32 s60, 0x40000
    s_cbranch_scc1 {L}_sin
    """)
    sl2=len(a.lines)
    a.e(f"s_mov_b32 s70, 1\ns_branch {L}_final")
    a.loops=[(sl1,sl2)]
    return dict(vgpr=144,sgpr=(100 if DBG else 72),lds=LDS_TOTAL,grid=256,block=512)

HDR=open("cdna_kernels/"+NAME+".s.ref").read().split("; Override")[0]
def build(path):
    name=NAME+"_kernel"
    a=Asm(); info=fused(a)
    errs=check(a.lines,name)
    for (s,e) in a.loops: errs+=check(a.lines[s:e]+a.lines[s:e],name+"-loop")
    t=HDR+f"; @launch grid=({info['grid']},1,1) block=({info['block']},1,1) lds={info['lds']}\n"
    t+='.amdgcn_target "amdgcn-amd-amdhsa--gfx950"\n.text\n'
    t+=f".globl {name}\n.p2align 8\n.type {name},@function\n{name}:\n"+a.text()
    t+=f""".section .rodata,"a"
.p2align 6
.amdhsa_kernel {name}
  .amdhsa_next_free_vgpr {info['vgpr']}
  .amdhsa_next_free_sgpr {info['sgpr']}
  .amdhsa_accum_offset {info['vgpr']}
  .amdhsa_group_segment_fixed_size 0
  .amdhsa_kernarg_size 80
  .amdhsa_user_sgpr_count 2
  .amdhsa_user_sgpr_kernarg_segment_ptr 1
  .amdhsa_system_sgpr_workgroup_id_x 1
.end_amdhsa_kernel
"""
    open(path,"w").write(t)
    open("launch.txt","w").write(f"{name} {info['grid']} {info['block']} {info['lds']}\n")
    for e in errs: print("HAZARD",e)
    print("hazard errors:",len(errs))
if __name__=="__main__":
    if len(sys.argv)>2 and sys.argv[2]=="dbg": DBG=True
    build(sys.argv[1] if len(sys.argv)>1 else "cdna_kernels/"+NAME+".s")
```

```python
import sys, math, struct
from asm import Asm, check
NAME="gated_mix__mha_block__softmax_full_mha__prompt"
WS_KV=0; WS_O=8<<20; WS_FKV=16<<20; WS_FO=(16<<20)+65536; WS_DBG=17<<20; WS_END=(18<<20)
XB=2048*448*2; WB=448*1344*2; WOB=448*448*2
QSCALE=math.log2(math.e)/math.sqrt(28.0)
def f2u(f): return struct.unpack("<I",struct.pack("<f",f))[0]
import os
DBG=False
DMASC=os.environ.get('DMASC','sc1')
STSC=os.environ.get('STSC','sc1')
NST=12
P1DBG=os.environ.get('P1DBG','')
def stamp1(a,i):
    if DBG and P1DBG: a.e(f"s_memtime s[{72+2*i}:{73+2*i}]\ns_waitcnt lgkmcnt(0)")
RTM=os.environ.get('RTM','')
STG=os.environ.get('STG','')
FST=os.environ.get('FST','')
def stampF(a,i):
    if DBG and FST: a.e(f"s_memtime s[{72+2*i}:{73+2*i}]\ns_waitcnt lgkmcnt(0)")
def stampS(a,i):
    if DBG and STG: a.e(f"s_memtime s[{72+2*i}:{73+2*i}]\ns_waitcnt lgkmcnt(0)")
TDBG=os.environ.get('TDBG','')
def stampT(a,i):
    if DBG and TDBG: a.e(f"s_memtime s[{72+2*i}:{73+2*i}]\ns_waitcnt lgkmcnt(0)")
def stamp(a,i):
    if FST and i in (2,3,4,5,6,7,8,9):
        if i==5: stampF(a,2)
        return
    if TDBG and i in (2,3,4,5): return
    if STG and i in (2,3,4,5,6,7,8,9):
        if i==5: stampS(a,2)
        if i==6: stampS(a,12)
        return
    if RTM and i in (3,9): return
    if RTM and i==5 and DBG: a.e("s_memrealtime s[78:79]\ns_waitcnt lgkmcnt(0)")
    if RTM and i==6 and DBG: a.e("s_memrealtime s[90:91]\ns_waitcnt lgkmcnt(0)")
    if P1DBG and i in (3,6,7,8,9): return
    if DBG: a.e(f"s_memtime s[{72+2*i}:{73+2*i}]\ns_waitcnt lgkmcnt(0)")
def stamp_rt(a,i):
    if DBG: a.e(f"s_memrealtime s[{72+2*i}:{73+2*i}]\ns_waitcnt lgkmcnt(0)")
def stamp_out(a,n,srdws,t0,tag):
    if not DBG: return
    a.e("s_cmp_lg_u32 s9, 0")
    a.e(f"s_cbranch_scc1 STMP{tag}_skip")
    a.e(f"s_lshl_b32 s70, s2, 6\ns_add_u32 s70, s70, {WS_DBG}")
    a.e(f"s_mov_b64 exec, 1\nv_mov_b32 v{t0+1}, 0")
    for i in range(n):
        a.e(f"v_mov_b32 v{t0}, s{72+2*i}")
        a.e(f"buffer_store_dword v{t0}, v{t0+1}, s[{srdws}:{srdws+3}], s70 offen offset:{4*i}")
        a.e("s_nop 1")
    a.e("s_mov_b64 exec, -1")
    a.label(f"STMP{tag}_skip")
def stamp_dbg(a,n,sdb,t0):
    if not (DBG and os.environ.get('TODBG')): return
    wg=int(os.environ['TODBG'])
    a.e(f"s_cmp_lg_u32 s9, 0\ns_cbranch_scc1 SDBG_skip\ns_cmp_lg_u32 s2, {wg}\ns_cbranch_scc1 SDBG_skip")
    a.e(f"s_mov_b64 exec, 1\nv_mov_b32 v{t0+1}, 0")
    for i in range(2,n):
        if i==11: a.e(f"s_sub_u32 s70, s{72+2*i}, s74")
        else: a.e(f"s_sub_u32 s70, s{72+2*i}, s72")
        a.e(f"v_mov_b32 v{t0}, s70")
        a.e(f"buffer_store_dword v{t0}, v{t0+1}, s[{sdb}:{sdb+3}], 0 offen offset:{4*(i-1)}")
        a.e("s_nop 1")
    a.e("s_mov_b64 exec, -1")
    a.label("SDBG_skip")
def srd(a, d, lo, hi, size):
    a.e(f"s_mov_b32 s{d}, {lo}\ns_mov_b32 s{d+1}, {hi}\ns_mov_b32 s{d+2}, {size}\ns_mov_b32 s{d+3}, 0x20000")
R4=lambda r: f"v[{r}:{r+3}]"
R16=lambda r: f"v[{r}:{r+15}]"
MF="v_mfma_f32_32x32x16_bf16"

def fused(a):
    L="F"
    WLDS=0; XLDS=49152; GLDS=XLDS+8*12288; LDS_TOTAL=163840
    QX=65536; WOA=98304; GX=157696; FLAG=158720
    SX=40; SW=44; SG=48; SWS=52; SKV=36; SDB=12
    vLane=1; vL=2; vD=3; vGate=4
    vX=[10,11]; vXw=[22,23]; xs=128; vW=12; vG=13; vXr=[14,15,16,17]; vWr=[18,19]; vGr=20; vOnes=21
    xf=24; wf=[[40,44,48],[52,56,60]]; acc=[64,80,96]
    a.e(f"s_cmp_ge_u32 s2, 256\ns_cbranch_scc1 {L}_done")
    stamp(a,0); stamp_rt(a,1)
    if os.environ.get("SHUF"):
        a.e("s_and_b32 s3, s2, 7\ns_lshl_b32 s3, s3, 5\ns_lshr_b32 s2, s2, 3\ns_or_b32 s2, s2, s3")
    a.e("""
    s_load_dwordx16 s[16:31], s[0:1], 0
    s_load_dwordx4 s[32:35], s[0:1], 64
    s_lshr_b32 s4, s2, 3
    s_bfe_u32 s7, s2, 0x10002
    s_bfe_u32 s3, s2, 0x10001
    s_lshl_b32 s3, s3, 3
    s_and_b32 s8, s4, 7
    s_add_u32 s8, s8, s3
    s_and_b32 s3, s2, 1
    s_lshl_b32 s3, s3, 2
    s_lshr_b32 s6, s4, 3
    s_add_u32 s6, s6, s3
    s_lshl_b32 s5, s7, 4
    s_add_u32 s5, s5, s8
    """)
    if os.environ.get("MAP")=="old":
        a.e("""
        s_and_b32 s3, s2, 7
        s_lshr_b32 s4, s2, 3
        s_and_b32 s5, s4, 3
        s_lshl_b32 s3, s3, 2
        s_add_u32 s5, s5, s3
        s_lshr_b32 s6, s4, 2
        s_lshr_b32 s7, s5, 4
        s_and_b32 s8, s5, 15
        """)
    cpf=os.environ.get("CPF","")
    CPF="s_nop 0"
    if cpf=="all":
        CPF=f"""s_getpc_b64 s[70:71]
    v_mul_u32_u24 v124, 24, v5
    v_add_u32 v124, v124, v{vLane}
    v_lshlrev_b32 v124, 7, v124
    v_mov_b32 v125, s71
    v_add_co_u32 v124, vcc, s70, v124
    v_addc_co_u32 v125, vcc, 0, v125, vcc
    s_mov_b32 exec_lo, 0xffffff
    s_mov_b32 exec_hi, 0
    global_load_dword v126, v[124:125], off
    s_mov_b64 exec, -1"""
    if cpf=="xcd":
        CPF=f"""s_getpc_b64 s[70:71]
    s_mul_i32 s3, s4, 6
    v_add_u32 v124, s3, v{vLane}
    v_lshlrev_b32 v124, 7, v124
    v_mov_b32 v125, s71
    v_add_co_u32 v124, vcc, s70, v124
    v_addc_co_u32 v125, vcc, 0, v125, vcc
    s_mov_b32 exec_lo, 0x3f
    s_mov_b32 exec_hi, 0
    global_load_dword v126, v[124:125], off
    s_mov_b64 exec, -1"""
    a.e(f"""
    v_and_b32 v{vLane}, 63, v0
    v_lshrrev_b32 v5, 6, v0
    v_lshrrev_b32 v6, 3, v{vLane}
    v_readfirstlane_b32 s9, v5
    {CPF}
    v_and_b32 v7, 7, v{vLane}
    v_lshrrev_b32 v5, 4, v{vLane}
    v_xor_b32 v7, v7, v5
    v_mul_u32_u24 v6, 896, v6
    v_lshl_add_u32 v{vX[0]}, v7, 4, v6
    v_xor_b32 v{vX[1]}, 64, v{vX[0]}
    v_mul_u32_u24 v6, 43, v{vLane}
    v_lshrrev_b32 v6, 9, v6
    v_mul_u32_u24 v7, 12, v6
    v_sub_u32 v7, v{vLane}, v7
    v_lshrrev_b32 v5, 2, v7
    v_and_b32 v7, 3, v7
    v_mul_u32_u24 v6, 2688, v6
    v_mul_u32_u24 v5, 896, v5
    v_lshlrev_b32 v7, 4, v7
    v_add3_u32 v{vW}, v6, v7, v5
    v_lshlrev_b32 v{vL}, 4, v{vLane}
    v_lshlrev_b32 v{vD}, 4, v0
    v_and_b32 v6, 31, v{vLane}
    v_lshrrev_b32 v7, 5, v{vLane}
    v_bfe_u32 v5, v{vLane}, 1, 3
    v_xor_b32 v5, v5, v7
    v_lshlrev_b32 v5, 4, v5
    v_lshl_add_u32 v5, v6, 7, v5
    s_mul_i32 s57, s9, 12288
    s_add_u32 s57, s57, {XLDS}
    v_add_u32 v{vXr[0]}, s57, v5
    v_xor_b32 v{vXr[1]}, 32, v{vXr[0]}
    v_xor_b32 v{vXr[2]}, 64, v{vXr[0]}
    v_xor_b32 v{vXr[3]}, 96, v{vXr[0]}
    v_lshlrev_b32 v7, 4, v7
    v_add_u32 v{vGr}, {GLDS}, v7
    v_cmp_eq_u32 vcc, 28, v6
    v_mov_b32 v6, 0x3f803f80
    v_mov_b32 v7, 0
    v_cndmask_b32 v{vOnes}, v7, v6, vcc
    v_lshrrev_b32 v5, 4, v{vLane}
    v_and_b32 v6, 1, v5
    v_lshrrev_b32 v5, 1, v5
    v_bfe_u32 v7, v{vLane}, 2, 2
    v_lshl_add_u32 v5, v5, 3, v7
    v_mul_u32_u24 v5, 192, v5
    v_lshl_add_u32 v5, v6, 5, v5
    v_and_b32 v6, 3, v{vLane}
    v_lshl_add_u32 v{vWr[0]}, v6, 3, v5
    """)
    assert XLDS%128==0
    a.e("""
    s_lshl_b32 s10, s6, 3
    s_add_u32 s10, s10, s9
    s_mul_i32 s56, s10, 28672
    s_mul_i32 s58, s9, 10752
    s_mul_i32 s59, s8, 56
    s_add_u32 s58, s58, s59
    s_mul_i32 s59, s9, 768
    s_mov_b32 s60, 0x10000000
    s_mov_b32 s61, 0x10000000
    s_waitcnt lgkmcnt(0)
    s_cmp_eq_u32 s7, 0
    s_cselect_b32 s38, s18, s24
    s_cselect_b32 s39, s19, s25
    """)
    stamp(a,2)
    srd(a,SX,"s16","s17",XB); srd(a,SW,"s38","s39",WB); srd(a,SG,"s28","s29",896)
    a.e("""
    s_mov_b32 s0, -1
    s_mov_b32 s1, 0xffff
    s_mov_b32 s66, -1
    s_mov_b32 s67, 0xffffff
    """)
    ROT=os.environ.get("ROT","1")=="1"
    if ROT:
        a.e("""
        s_and_b32 s62, s8, 7
        s_and_b32 s63, s6, 3
        s_lshl_b32 s63, s63, 1
        s_add_u32 s62, s62, s63
        s_cmp_ge_u32 s62, 7
        s_cselect_b32 s63, 7, 0
        s_sub_u32 s62, s62, s63
        s_lshl_b32 s62, s62, 7
        s_mov_b32 s4, s62
        """)
    else:
        a.e("s_mov_b32 s62, 0\ns_mov_b32 s4, 0")
    def dmaX1(kc,j):
        slot=kc%3
        if j==0:
            a.e("""
            s_add_u32 s64, s56, s62
            s_mul_i32 s63, s62, 1344
            s_add_u32 s63, s63, s58
            s_add_u32 s62, s62, 128
            s_cmp_eq_u32 s62, 896
            s_cselect_b32 s62, 0, s62
            """)
        a.e(f"""
        s_add_u32 m0, s57, {slot*4096+j*1024}
        s_add_u32 s65, s64, {8*j*896}
        buffer_load_dwordx4 v{vX[j&1]}, s[{SX}:{SX+3}], s65 offen lds
        """)
    def dmaW1(kc,i):
        a.e(f"""
        s_mov_b64 exec, s[0:1]
        s_add_u32 m0, s59, {WLDS+(kc%4)*12288+i*6144}
        s_add_u32 s65, s63, {i*32*2688}
        buffer_load_dwordx4 v{vW}, s[{SW}:{SW+3}], s65 offen lds
        s_mov_b64 exec, -1
        """)
    vmq=[]
    def chunk_ops(kc):
        ops=[]
        for j in range(4): ops.append(lambda j=j: (dmaX1(kc,j), vmq.append(("c",kc))))
        for i in range(2): ops.append(lambda i=i: (dmaW1(kc,i), vmq.append(("c",kc))))
        return ops
    DEPTH=int(os.environ.get("P1DEPTH","2"))
    TD=int(os.environ.get("TOUCHD","0"))
    ST=52
    if TD:
        a.e(f"""
        s_lshr_b32 s3, s2, 3
        s_and_b32 s62, s2, 1
        s_lshl_b32 s62, s62, 10
        s_lshl_b32 s63, s3, 5
        s_add_u32 s62, s62, s63
        s_lshl_b32 s63, s9, 3
        s_add_u32 s62, s62, s63
        v_add_u32 v122, s62, v{vLane}
        v_mul_u32_u24 v122, 896, v122
        s_mul_i32 s62, s3, 24
        s_sub_u32 s63, s9, 4
        s_mul_i32 s63, s63, 6
        s_add_u32 s62, s62, s63
        v_add_u32 v123, s62, v{vLane}
        v_lshrrev_b32 v124, 2, v123
        v_and_b32 v123, 3, v123
        v_mul_u32_u24 v124, 896, v124
        v_lshl_add_u32 v123, v123, 7, v124
        s_bfe_u32 s63, s2, 0x10001
        s_mul_i32 s63, s63, 384
        v_add_u32 v123, s63, v123
        s_cmp_lt_u32 s9, 4
        s_cselect_b64 vcc, -1, 0
        v_cndmask_b32 v122, v123, v122, vcc
        s_cselect_b32 s{ST}, s{SX}, s{SW}
        s_cselect_b32 s{ST+1}, s{SX+1}, s{SW+1}
        s_cselect_b32 s{ST+2}, s{SX+2}, s{SW+2}
        s_mov_b32 s{ST+3}, 0x20000
        s_mov_b32 s64, 172032
        s_cselect_b32 s62, 128, s64
        s_mov_b32 s64, 0xff
        s_cselect_b32 s63, s64, 63
        """)
    def touch(c):
        a.e(f"""
        s_mul_i32 s64, s62, {c}
        s_mov_b32 exec_lo, s63
        s_mov_b32 exec_hi, 0
        buffer_load_dword v123, v122, s[{ST}:{ST+3}], s64 offen
        s_mov_b64 exec, -1
        """)
        vmq.append(("t",c))
    def vmwait(tag):
        idx=max(i for i,t in enumerate(vmq) if t==tag)
        a.e(f"s_waitcnt vmcnt({len(vmq)-idx-1})")
    a.e(f"""
    s_mov_b64 exec, s[66:67]
    s_mov_b32 m0, {GLDS}
    s_nop 0
    buffer_load_dwordx4 v{vL}, s[{SG}:{SG+3}], 0 offen lds
    s_mov_b64 exec, -1
    """)
    for kc in range(2):
        for op in chunk_ops(kc): op()
        if kc<1: a.e("s_barrier")
    stamp1(a,3)
    srd(a,SDB,"s32","s33",256)
    a.e(f"""
    s_or_b32 s3, s2, s9
    s_cmp_lg_u32 s3, 0
    s_cbranch_scc1 {L}_notag
    s_memrealtime s[70:71]
    s_waitcnt lgkmcnt(0)
    s_or_b32 s70, s70, 1
    v_mov_b32 v5, s70
    v_mov_b32 v6, 0
    s_mov_b64 exec, 1
    buffer_store_dword v5, v6, s[{SDB}:{SDB+3}], 0 offen sc1
    s_mov_b64 exec, -1
    """)
    a.label(f"{L}_notag")
    a.e("""
    s_lshl_b32 s3, s5, 18
    s_add_u32 s36, s34, s3
    s_addc_u32 s37, s35, 0
    s_mov_b32 s38, 0x40000
    s_mov_b32 s39, 0x20000
    """)
    for r in range(48): a.e(f"v_mov_b32 v{acc[0]+r}, 0")
    def wreads(ks,buf):
        o=((ks//4)%4)*12288+(ks%4)*3072
        for t in range(3):
            r=wf[buf][t]
            a.e(f"ds_read_b64_tr_b16 v[{r}:{r+1}], v{vWr[0]} offset:{o+t*64}")
            a.e(f"ds_read_b64_tr_b16 v[{r+2}:{r+3}], v{vWr[0]} offset:{o+t*64+768}")
        r=wf[buf][0]
        a.e(f"s_mov_b64 exec, s[60:61]\nds_read_b128 v[{r}:{r+3}], v22 offset:{(ks%4)*32}\ns_mov_b64 exec, -1")
    xfb=[xf,128]
    lq=[]
    def lwait(tag):
        if tag in lq:
            idx=max(i for i,t in enumerate(lq) if t==tag)
            a.e(f"s_waitcnt lgkmcnt({min(15,len(lq)-idx-1)})"); del lq[:idx+1]
    def wreads2(ks,buf):
        wreads(ks,buf); lq.extend([("w",ks)]*7)
    pend=[]
    def sync(k):
        vmwait(("c",k))
        if k in (0,1,3,6): stamp1(a,{0:6,1:7,3:8,6:9}[k])
        if k==6: a.e(f"v_mov_b32 v120, 0\nbuffer_load_dword v121, v120, s[{SDB}:{SDB+3}], 0 offen sc1")
        a.e("s_barrier")
        for kk in range(4):
            a.e(f"ds_read_b128 {R4(xfb[k%2]+4*kk)}, v{vXr[kk]} offset:{(k%3)*4096}"); lq.append(("x",k))
        if k+2<7: pend.extend(chunk_ops(k+2))
    def gate_base():
        a.e(f"v_add_u32 v22, s4, v{vGr}\ns_add_u32 s4, s4, 128\ns_cmp_eq_u32 s4, 896\ns_cselect_b32 s4, 0, s4")
    sync(0)
    gate_base()
    wreads2(0,0)
    for kc in range(7):
        for kk in range(4):
            ks=4*kc+kk; buf=ks&1
            lwait(("w",ks)); lwait(("x",kc))
            if kk==2 and kc<6: sync(kc+1)
            if ks+1<28:
                if kk==3: gate_base()
                wreads2(ks+1,buf^1)
            x=R4(xfb[kc%2]+4*kk)
            for t in range(3):
                w=R4(wf[buf][t]); c=R16(acc[t])
                if t<2: a.e(f"{MF} {c}, {w}, {x}, {c}")
                else:   a.e(f"{MF} {c}, {x}, {w}, {c}")
            for _ in range(2):
                if pend: pend.pop(0)()
    assert not pend
    srd(a,SWS,"s34","s35",WS_END)
    stamp(a,4)
    a.e(f"""
    s_lshl_b32 s11, s10, 12
    s_mov_b32 s67, {hex(f2u(QSCALE))}
    s_mov_b32 s68, 0
    s_mov_b32 s69, -1
    s_mov_b32 s70, 0xf0000000
    s_mov_b32 s71, 0xf0000000
    s_nop 7
    """)
    for t in (1,2):
        for i in range(8): a.e(f"v_cvt_pk_bf16_f32 v{acc[t]+i}, v{acc[t]+2*i}, v{acc[t]+2*i+1}")
    a.e(f"""
    s_mov_b64 exec, s[68:69]
    v_mov_b32 v{acc[1]+6}, 0x3f80
    v_mov_b32 v{acc[1]+7}, 0
    s_mov_b64 exec, s[70:71]
    """)
    for i in range(8): a.e(f"v_mov_b32 v{acc[2]+i}, v{vOnes}")
    a.e("s_mov_b64 exec, -1")
    a.e(f"s_lshl_b32 s3, s9, 12\nv_add_u32 v5, s3, v{vL}")
    for t in (1,2):
        for c in range(2):
            r=acc[t]+4*c
            a.e(f"buffer_store_dwordx4 {R4(r)}, v{vL}, s[{SKV}:{SKV+3}], s11 offen offset:{(t-1)*2048+c*1024} {os.environ.get('KVST','sc1')}")
    a.e(f"""
    v_mul_f32 v6, {hex(f2u(-math.log2(math.e)))}, v{acc[0]+12}
    v_exp_f32 v6, v6
    s_nop 0
    v_add_f32 v6, 1.0, v6
    v_rcp_f32 v6, v6
    s_nop 0
    v_sub_f32 v7, 1.0, v6
    s_cmp_eq_u32 s7, 0
    s_cselect_b64 vcc, -1, 0
    v_cndmask_b32 v6, v7, v6, vcc
    """)
    for r in range(16): a.e(f"v_mul_f32 v{acc[0]+r}, s67, v{acc[0]+r}")
    for i in range(8): a.e(f"v_cvt_pk_bf16_f32 v{acc[0]+i}, v{acc[0]+2*i}, v{acc[0]+2*i+1}")
    a.e(f"""
    s_lshl_b32 s3, s9, 11
    s_add_u32 s3, s3, {QX}
    v_add_u32 v7, s3, v{vL}
    s_lshl_b32 s3, s9, 7
    s_add_u32 s3, s3, {GX-128}
    v_lshl_add_u32 v8, v{vLane}, 2, s3
    s_mov_b64 exec, s[68:69]
    v_mov_b32 v{acc[0]+6}, 0
    v_mov_b32 v{acc[0]+7}, 0
    s_mov_b64 exec, -1
    s_barrier
    """)
    for t in (1,2):
        for c in range(2):
            a.e(f"ds_write_b128 v5, {R4(acc[t]+4*c)} offset:{(t-1)*2048+c*1024}")
    for c in range(2): a.e(f"ds_write_b128 v7, {R4(acc[0]+4*c)} offset:{c*1024}")
    a.e(f"""
    s_mov_b64 exec, s[68:69]
    ds_write_b32 v8, v6
    s_mov_b64 exec, -1
    v_mov_b32 v123, {FLAG}
    v_mov_b32 v6, 0
    ds_write_b32 v123, v6
    """)
    Q=[[16,20],[24,28]]; S=[32,48]; P=64; kA=72; kB=76; vA=80; vB=84; O=[88,104]; vM=[8,14]; vR0=9; vR2=13
    a.e(f"""
    s_and_b32 s62, s9, 3
    s_lshr_b32 s63, s9, 2
    s_lshl_b32 s64, s62, 1
    s_add_u32 s64, s64, s63
    s_lshl_b32 s3, s63, 14
    v_add_u32 v{vR0}, s3, v{vL}
    v_add_u32 v{vR2}, 65536, v{vR0}
    s_lshl_b32 s57, s9, 10
    v_lshlrev_b32 v10, 7, v{vLane}
    s_lshl_b32 s61, s5, 10
    s_add_u32 s61, s61, {WS_FKV}
    s_lshl_b32 s58, 1, s6
    s_xor_b32 s58, s58, 0xff
    s_mov_b32 s59, 0
    s_waitcnt lgkmcnt(0)
    s_barrier
    """)
    stamp(a,5)
    def gettag():
        a.label(f"{L}_tag")
        a.e(f"""
        v_readfirstlane_b32 s71, v121
        s_nop 3
        s_cmp_lg_u32 s71, 0
        s_cbranch_scc1 {L}_tagok
        s_sleep 2
        buffer_load_dword v121, v120, s[{SDB}:{SDB+3}], 0 offen sc1
        s_waitcnt vmcnt(0)
        s_branch {L}_tag
        """)
        a.label(f"{L}_tagok")
    def poll_check(soff,mask_lo,tag,first_issued,vaddr=10,sleep=2):
        if mask_lo is not None: a.e(f"s_mov_b32 exec_lo, {mask_lo}\ns_mov_b32 exec_hi, 0")
        if first_issued: a.e(f"s_branch {L}_pchk{tag}")
        a.label(f"{L}_poll{tag}")
        a.e(f"buffer_load_dword v12, v{vaddr}, s[{SWS}:{SWS+3}], {soff} offen sc1")
        a.label(f"{L}_pchk{tag}")
        a.e(f"""
        s_waitcnt vmcnt(0)
        v_cmp_ne_u32 vcc, s71, v12
        s_nop 1
        s_cmp_eq_u64 vcc, 0
        s_cbranch_scc1 {L}_pdone{tag}
        s_mov_b64 exec, vcc
        s_sleep {sleep}
        s_branch {L}_poll{tag}
        """)
        a.label(f"{L}_pdone{tag}")
        a.e("s_mov_b64 exec, -1")
    def poll_pipe(soff,mask_lo,tag,regs=(12,11,8)):
        a.e(f"s_mov_b32 exec_lo, {mask_lo}\ns_mov_b32 exec_hi, 0")
        k=len(regs)
        for r in regs[:-1]:
            a.e(f"buffer_load_dword v{r}, v10, s[{SWS}:{SWS+3}], {soff} offen sc1\ns_sleep 2")
        a.e(f"buffer_load_dword v{regs[-1]}, v10, s[{SWS}:{SWS+3}], {soff} offen sc1")
        a.label(f"{L}_pp{tag}")
        for r in regs:
            a.e(f"""
            s_waitcnt vmcnt({k-1})
            v_cmp_ne_u32 vcc, s71, v{r}
            s_nop 1
            s_cmp_eq_u64 vcc, 0
            s_cbranch_scc1 {L}_ppd{tag}
            buffer_load_dword v{r}, v10, s[{SWS}:{SWS+3}], {soff} offen sc1
            """)
        a.e(f"s_branch {L}_pp{tag}")
        a.label(f"{L}_ppd{tag}")
        a.e("s_mov_b64 exec, -1")
    def signal(soff,tag):
        a.e(f"""
        v_mov_b32 v12, s71
        s_mov_b64 exec, 1
        buffer_store_dword v12, v120, s[{SWS}:{SWS+3}], {soff} offen sc1
        s_mov_b64 exec, -1
        """)
    a.e(f"""
    s_lshl_b32 s3, s64, 11
    s_add_u32 s3, s3, {QX}
    v_add_u32 v5, s3, v{vL}
    v_xor_b32 v6, 2048, v5
    ds_read_b128 {R4(Q[0][0])}, v5
    ds_read_b128 {R4(Q[0][1])}, v5 offset:1024
    ds_read_b128 {R4(Q[1][0])}, v6
    ds_read_b128 {R4(Q[1][1])}, v6 offset:1024
    ds_read_b128 {R4(kA)}, v{vL}
    ds_read_b128 {R4(kB)}, v{vL} offset:1024
    s_lshl_b32 s3, s64, 7
    s_add_u32 s3, s3, {GX}
    v_and_b32 v7, 31, v{vLane}
    v_lshl_add_u32 v7, v7, 2, s3
    ds_read_b32 v{vGate}, v7
    s_waitcnt lgkmcnt(0)
    """)
    assert QX%4096==0
    for X in range(2):
        a.e(f"{MF} {R16(S[X])}, {R4(kA)}, {R4(Q[X][0])}, 0")
        a.e(f"{MF} {R16(S[X])}, {R4(kB)}, {R4(Q[X][1])}, {R16(S[X])}")
    def toff(s,j):
        slot=s%3
        return (vR0,slot*32768+j*4096) if slot<2 else (vR2,j*4096)
    def rdk(r,s,j,o):
        b,off=toff(s,j)
        a.e(f"ds_read_b128 {R4(r)}, v{b} offset:{off+o}")
    rdk(kA,0,0,0); rdk(kB,0,0,1024); rdk(vA,0,0,2048)
    for r in range(32): a.e(f"v_mov_b32 v{O[0]+r}, 0")
    a.e("s_mov_b64 s[62:63], 0\ns_mov_b32 s60, 0x45000000")
    for X in range(2):
        s0=S[X]; m=vM[X]
        a.e(f"v_max3_f32 v{m}, v{s0}, v{s0+1}, v{s0+2}")
        for i in range(3,15,2): a.e(f"v_max3_f32 v{m}, v{m}, v{s0+i}, v{s0+i+1}")
        a.e(f"""
        v_max_f32 v{m}, v{m}, v{s0+15}
        v_mov_b32 v5, v{m}
        s_nop 0
        v_mov_b32 v6, v{m}
        s_nop 1
        v_permlane32_swap_b32 v5, v6
        s_nop 1
        v_max_f32 v{m}, v5, v6
        v_cmp_nge_f32 vcc, s60, abs(v{m})
        v_lshrrev_b32 v5, 16, v{m}
        v_xor_b32 v5, 0x8000, v5
        s_or_b64 s[62:63], s[62:63], vcc
        s_mov_b64 exec, s[68:69]
        v_mov_b32 v{Q[X][1]+2}, v5
        s_mov_b64 exec, -1
        """)
    a.e("s_waitcnt lgkmcnt(0)")
    a.e(f"{MF} {R16(S[0])}, {R4(kA)}, {R4(Q[0][0])}, 0")
    a.e(f"{MF} {R16(S[0])}, {R4(kB)}, {R4(Q[0][1])}, {R16(S[0])}")
    a.e("s_nop 7\ns_nop 3")
    def dma_stage_ops(s):
        slot=s%3
        def first():
            a.e(f"s_add_u32 s55x, s6, {s}")
        ops=[]
        for i in range(4):
            def op(i=i):
                if i==0: a.e(f"s_add_u32 s58x, s6, {s}\ns_and_b32 s58x, s58x, 7\ns_lshl_b32 s58x, s58x, 15".replace("s58x","s70"))
                a.e(f"""
                s_add_u32 m0, s57, {slot*32768+i*8192}
                s_add_u32 s65, s70, {i*8192}
                buffer_load_dwordx4 v{vD}, s[{SKV}:{SKV+3}], s65 offen {DMASC} lds
                """)
            ops.append(op)
        return ops
    def dma_stage(s):
        for op in dma_stage_ops(s): op()
    SWA=40; SWB=44; SO=48; vD3=15
    a.e(f"""
    s_mul_i32 s3, s5, 37
    s_lshr_b32 s4, s3, 8
    s_mul_i32 s3, s4, 7
    s_sub_u32 s3, s5, s3
    s_lshl_b32 s11, s6, 2
    s_add_u32 s4, s4, s11
    s_lshl_b32 s56, s3, 7
    v_lshrrev_b32 v6, 3, v{vLane}
    v_mul_u32_u24 v6, 896, v6
    v_and_b32 v7, 7, v{vLane}
    v_bfe_u32 v5, v{vLane}, 4, 1
    v_lshlrev_b32 v5, 2, v5
    v_xor_b32 v7, v7, v5
    v_lshl_add_u32 v{vD3}, v7, 4, v6
    """)
    srd(a,SWA,"s20","s21",WOB); srd(a,SWB,"s26","s27",WOB); srd(a,SO,"s30","s31",XB)
    wo_ctr=[0]
    def dma_wo(sw,ldsbase,m,tag):
        a.e(f"s_add_u32 s65, s9, {8*m}")
        if m==7: a.e("s_cmp_ge_u32 s65, 58\ns_cselect_b32 s66, 58, 0\ns_sub_u32 s65, s65, s66")
        a.e(f"""
        s_cmp_ge_u32 s65, 29
        s_cselect_b32 s66, 29, 0
        s_cselect_b32 s67, {224*896}, 0
        s_cselect_b32 s60, 29696, 0
        s_sub_u32 s65, s65, s66
        s_lshl_b32 s66, s65, 10
        s_add_u32 s66, s66, s60
        s_add_u32 m0, s66, {ldsbase}
        s_mul_i32 s65, s65, {8*896}
        s_add_u32 s65, s65, s67
        s_add_u32 s65, s65, s56
        buffer_load_dwordx4 v{vD3}, s[{sw}:{sw+3}], s65 offen lds
        """)
    def touch_wob():
        a.e(f"""
        s_mul_i32 s65, s9, {56*896}
        s_add_u32 s65, s65, s56
        v_mul_u32_u24 v5, 896, v{vLane}
        s_mov_b32 exec_lo, -1
        s_mov_b32 exec_hi, 0xffffff
        buffer_load_dword v11, v5, s[{SWB}:{SWB+3}], s65 offen
        s_mov_b64 exec, -1
        """)
    units=[(s,j,X) for s in range(8) for j in range(4) for X in (0,1)]
    KVP=[int(x) for x in os.environ.get('KVP','1,3').split(',')]
    SIGN=int(os.environ.get('SIGN','0'))
    outst=[]; deferred=[]
    def rd(name,r,s,j,o):
        rdk(r,s,j,o); outst.append(name)
    def need(name):
        if name in outst:
            idx=outst.index(name); a.e(f"s_waitcnt lgkmcnt({len(outst)-idx-1})"); del outst[:idx+1]
    a.loopstart=len(a.lines)
    for n,(s,j,X) in enumerate(units):
        sc=S[n%2]; sn=S[(n+1)%2]
        nxt=units[n+1] if n+1<64 else None
        prv=units[n-1] if n>0 else None
        nt=(s,j+1) if j<3 else ((s+1,0) if s<7 else None)
        if n==SIGN:
            stampF(a,3); outst.clear() if (FST and DBG) else None
            a.e("s_waitcnt vmcnt(0)\ns_barrier")
            stampF(a,4)
            gettag()
            a.e(f"s_cmp_lg_u32 s9, 0\ns_cbranch_scc1 {L}_nsig")
            a.e("s_lshl_b32 s3, s6, 7\ns_add_u32 s3, s3, s61")
            signal("s3","kv")
            a.label(f"{L}_nsig")
        if n==KVP[0]:
            a.e(f"s_cmp_lg_u32 s9, 0\ns_cbranch_scc1 {L}_npi")
            a.e(f"s_mov_b64 exec, s[58:59]\nbuffer_load_dword v12, v10, s[{SWS}:{SWS+3}], s61 offen sc1\ns_mov_b64 exec, -1")
            a.label(f"{L}_npi")
        if n==KVP[1]:
            stampF(a,5); outst.clear() if (FST and DBG) else None
            a.e(f"s_cmp_lg_u32 s9, 0\ns_cbranch_scc1 {L}_npc")
            a.e("s_mov_b64 exec, s[58:59]")
            poll_check("s61",None,"kv",True,vaddr=10,sleep=1)
            a.e(f"v_mov_b32 v12, 1\nds_write_b32 v123, v12")
            a.label(f"{L}_npc")
            a.e("s_mov_b32 s60, 0")
        if n in (KVP[1],KVP[1]+1) :
            last = (n==KVP[1]+1)
            a.e(f"s_cmp_lg_u32 s60, 0\ns_cbranch_scc1 {L}_go{n}x")
            a.label(f"{L}_go{n}")
            a.e(f"""
            ds_read_b32 v12, v123
            s_waitcnt lgkmcnt(0)
            v_readfirstlane_b32 s60, v12
            s_nop 3
            s_cmp_lg_u32 s60, 0
            """)
            if last: a.e(f"s_cbranch_scc0 {L}_go{n}")
            else: a.e(f"s_cbranch_scc0 {L}_go{n}x")
            if last: stampF(a,6)
            dma_stage(1)
            a.label(f"{L}_go{n}x")
        if j==3 and X==0 and s<7:
            if s==0 and FST and DBG:
                stampF(a,7); outst.clear(); a.e("s_waitcnt vmcnt(0)"); stampF(a,8)
            a.e("s_waitcnt vmcnt(0)\ns_barrier")
            if s==0: stampF(a,9)
            if STG and DBG:
                stampS(a,3+s); outst.clear()
            if s+2<8: deferred+=dma_stage_ops(s+2)
            if s==5: deferred+=[touch_wob]
            if 1<=s<=4:
                deferred+=[lambda s=s: dma_wo(SWA,WOA,2*(s-1),f"a{s}0"), lambda s=s: dma_wo(SWA,WOA,2*(s-1)+1,f"a{s}1")]
        if n<6: pr=3-(n*4)//6
        elif n>=54: pr=3-((n-54)*4)//10
        else: pr=3-((n-6)%8)//2
        a.e(f"s_setprio {pr}")
        def grp(g):
            for k in range(4): a.e(f"v_exp_f32 v{sc+4*g+k}, v{sc+4*g+k}")
            a.e(f"v_cvt_pk_bf16_f32 v{P+2*g}, v{sc+4*g}, v{sc+4*g+1}")
            a.e(f"v_cvt_pk_bf16_f32 v{P+2*g+1}, v{sc+4*g+2}, v{sc+4*g+3}")
        ORD=os.environ.get("ORD","0")
        def E(g,ks=range(4)):
            for k in ks: a.e(f"v_exp_f32 v{sc+4*g+k}, v{sc+4*g+k}")
        def C(g,base=None):
            b=sc if base is None else base
            a.e(f"v_cvt_pk_bf16_f32 v{P+2*g}, v{b+4*g}, v{b+4*g+1}")
            a.e(f"v_cvt_pk_bf16_f32 v{P+2*g+1}, v{b+4*g+2}, v{b+4*g+3}")
        def M1():
            if nxt:
                need("kA"); a.e(f"{MF} {R16(sn)}, {R4(kA)}, {R4(Q[nxt[2]][0])}, 0")
            if X==0 and nt: rd("kA",kA,nt[0],nt[1],0)
        def M2():
            if nxt:
                need("kB"); a.e(f"{MF} {R16(sn)}, {R4(kB)}, {R4(Q[nxt[2]][1])}, {R16(sn)}")
            if X==0 and nt: rd("kB",kB,nt[0],nt[1],1024)
        def M3():
            if prv:
                need("vB"); a.e(f"{MF} {R16(O[prv[2]])}, {R4(vB)}, {R4(P+4)}, {R16(O[prv[2]])}")
            if X==0: rd("vB",vB,s,j,3072)
        def M4():
            need("vA"); a.e(f"{MF} {R16(O[X])}, {R4(vA)}, {R4(P)}, {R16(O[X])}")
            if X==1 and nt: rd("vA",vA,nt[0],nt[1],2048)
        if ORD=="0":
            M1(); E(0); C(0); M2(); E(1,(0,1))
            if deferred: deferred.pop(0)()
            E(1,(2,3)); C(1); M3(); E(2); C(2); M4(); E(3); C(3)
        elif ORD=="1":
            if prv: C(3,sn)
            M1(); E(0)
            M2(); E(1); C(0)
            if prv: a.e("s_nop 0") if False else None
            M3(); E(2); C(1)
            E(3,(0,1)); M4(); E(3,(2,3)); C(2)
            if n==63: C(3)
    a.loopend=len(a.lines)
    a.e("s_setprio 0")
    stamp(a,6)
    a.e("s_nop 1")
    a.e(f"{MF} {R16(O[1])}, {R4(vB)}, {R4(P+4)}, {R16(O[1])}")
    a.e("s_nop 15")
    a.e(f"""
    s_lshl_b32 s3, s9, 12
    s_add_u32 s3, s3, 65536
    v_add_u32 v6, s3, v{vL}
    """)
    for g in range(4): a.e(f"ds_write_b128 v6, {R4(O[1]+4*g)} offset:{g*1024}")
    a.e(f"""
    v_xor_b32 v6, 16384, v6
    s_waitcnt lgkmcnt(0)
    s_barrier
    """)
    stampT(a,2)
    for g in range(4): a.e(f"ds_read_b128 {R4(O[1]+4*g)}, v6 offset:{g*1024}")
    a.e("s_waitcnt lgkmcnt(0)")
    for r in range(16): a.e(f"v_add_f32 v{O[0]+r}, v{O[0]+r}, v{O[1]+r}")
    a.e("s_mov_b32 s70, 0")
    a.label(f"{L}_final")
    Of=O[0]; On=O[1]; Opk=S[0]
    a.e(f"v_mov_b32 v5, v{Of+12}\nv_mov_b32 v6, v{Of+12}\ns_nop 1\nv_permlane32_swap_b32 v5, v6")
    a.e(f"""
    v_rcp_f32 v7, v6
    s_lshl_b32 s11, s5, 17
    v_mul_f32 v7, v7, v{vGate}
    s_lshl_b32 s3, s6, 3
    s_add_u32 s3, s3, s64
    """)
    for r in range(16): a.e(f"v_mul_f32 v{On+r}, v{Of+r}, v7")
    for i in range(8): a.e(f"v_cvt_pk_bf16_f32 v{Opk+i}, v{On+2*i}, v{On+2*i+1}")
    a.e(f"""
    s_lshl_b32 s59, s3, 12
    s_add_u32 s59, s59, {WS_FO}
    s_lshl_b32 s3, s3, 11
    s_add_u32 s11, s11, s3
    s_add_u32 s11, s11, {WS_O}
    s_mov_b64 exec, s[68:69]
    v_mov_b32 v{Opk+6}, 0
    v_mov_b32 v{Opk+7}, 0
    s_mov_b64 exec, -1
    s_lshl_b32 s3, s5, 7
    s_add_u32 s3, s3, s59
    buffer_store_dwordx4 {R4(Opk)}, v{vL}, s[{SWS}:{SWS+3}], s11 offen sc1
    buffer_store_dwordx4 {R4(Opk+4)}, v{vL}, s[{SWS}:{SWS+3}], s11 offen offset:1024 sc1
    """)
    stampT(a,3)
    a.e(f"s_cmp_lg_u32 s70, 0\ns_cbranch_scc1 {L}_chkd")
    a.e(f"v_mul_f32 v7, 0, v{On}")
    for r in range(1,16): a.e(f"v_fmac_f32 v7, 0, v{On+r}")
    a.e(f"""
    v_cmp_u_f32 vcc, v7, v7
    s_nop 0
    s_or_b64 s[62:63], s[62:63], vcc
    v_cmp_nge_f32 vcc, 0x4e800000, v6
    s_nop 0
    s_or_b64 s[62:63], s[62:63], vcc
    v_cmp_nle_f32 vcc, 0x35800000, v6
    s_nop 0
    s_or_b64 s[62:63], s[62:63], vcc
    s_cmp_lg_u64 s[62:63], 0
    s_cbranch_scc1 {L}_slow
    """)
    a.label(f"{L}_chkd")
    for m in range(8): dma_wo(SWB,0,m,f"b{m}")
    a.e("s_waitcnt vmcnt(8)")
    stampT(a,4)
    signal("s3","o")
    stamp(a,7)
    a.e(f"s_cmp_ge_u32 s5, 28\ns_cbranch_scc1 {L}_end")
    of=16; wfo=[[80,84],[88,92]]; acc3=[96,112]; vA3=[14,15]
    a.e(f"""
    s_and_b32 s60, s9, 1
    s_lshr_b32 s61, s9, 1
    v_lshrrev_b32 v6, 4, v{vLane}
    v_and_b32 v7, 1, v6
    v_lshrrev_b32 v6, 1, v6
    v_bfe_u32 v5, v{vLane}, 2, 2
    v_lshl_add_u32 v6, v6, 2, v5
    v_lshlrev_b32 v6, 7, v6
    v_lshrrev_b32 v5, 1, v5
    v_lshl_add_u32 v6, v5, 6, v6
    v_lshl_add_u32 v6, v7, 5, v6
    v_and_b32 v7, 3, v{vLane}
    v_lshl_add_u32 v6, v7, 3, v6
    s_and_b32 s63, s61, 1
    s_mul_i32 s63, s63, 29696
    s_cmp_lt_u32 s61, 2
    s_cselect_b32 s62, {WOA}, 0
    s_add_u32 s62, s62, s63
    v_add_u32 v{vA3[0]}, s62, v6
    v_xor_b32 v{vA3[1]}, 64, v{vA3[0]}
    s_lshl_b32 s62, s4, 1
    s_add_u32 s62, s62, s60
    s_lshl_b32 s62, s62, 11
    s_lshl_b32 s63, s61, 20
    s_add_u32 s62, s62, s63
    s_add_u32 s62, s62, {WS_O}
    """)
    for r in range(32): a.e(f"v_mov_b32 v{acc3[0]+r}, 0")
    a.e(f"""
    s_lshl_b32 s3, s4, 1
    s_add_u32 s3, s3, s60
    s_lshl_b32 s59, s3, 12
    s_lshl_b32 s3, s61, 10
    s_add_u32 s59, s59, s3
    s_add_u32 s59, s59, {WS_FO}
    s_waitcnt vmcnt(0)
    s_barrier
    """)
    if os.environ.get("PIPE","0")=="1": poll_pipe("s59","0xff","o")
    else: poll_check("s59","0xff","o",False,sleep=int(os.environ.get("SLP","2")))
    stamp(a,8)
    for i in range(8):
        a.e(f"s_add_u32 s63, s62, {i*131072}")
        for c in range(2):
            a.e(f"buffer_load_dwordx4 {R4(of+8*i+4*c)}, v{vL}, s[{SWS}:{SWS+3}], s63 offen offset:{c*1024} sc1")
    stampT(a,5)
    def wr(step,buf):
        i,c=step//2,step%2
        o=(i*28+16*c)*128
        for nt in range(2):
            r=wfo[buf][nt]
            a.e(f"ds_read_b64_tr_b16 v[{r}:{r+1}], v{vA3[nt]} offset:{o}")
            a.e(f"ds_read_b64_tr_b16 v[{r+2}:{r+3}], v{vA3[nt]} offset:{o+1024}")
    wr(0,0)
    for step in range(16):
        buf=step&1
        if step<15:
            wr(step+1,buf^1); a.e(f"s_waitcnt vmcnt({15-step}) lgkmcnt(4)")
        else: a.e("s_waitcnt vmcnt(0) lgkmcnt(0)")
        i,c=step//2,step%2
        for nt in range(2):
            cc=R16(acc3[nt])
            a.e(f"{MF} {cc}, {R4(wfo[buf][nt])}, {R4(of+8*i+4*c)}, {cc}")
    a.e("s_nop 15\ns_barrier")
    stamp(a,9)
    a.e(f"s_lshl_b32 s62, s9, 13\nv_add_u32 v6, s62, v{vL}")
    for nt in range(2):
        for g in range(4):
            a.e(f"ds_write_b128 v6, {R4(acc3[nt]+4*g)} offset:{nt*4096+g*1024}")
    a.e(f"""
    s_waitcnt lgkmcnt(0)
    s_barrier
    s_lshr_b32 s61, s9, 1
    s_and_b32 s61, s61, 1
    s_lshr_b32 s57, s9, 2
    s_lshl_b32 s62, s60, 13
    s_lshl_b32 s63, s61, 12
    s_add_u32 s62, s62, s63
    s_lshl_b32 s63, s57, 11
    s_add_u32 s62, s62, s63
    v_add_u32 v6, s62, v{vL}
    """)
    for kq in range(4):
        if kq==2: a.e(f"v_add_u32 v6, {4*8192}, v6")
        for g in range(2):
            a.e(f"ds_read_b128 {R4(16+kq*8+g*4)}, v6 offset:{(kq&1)*16384+g*1024}")
    a.e("s_waitcnt lgkmcnt(0)")
    for k in range(8):
        a.e(f"v_add_f32 v{16+k}, v{16+k}, v{24+k}")
        a.e(f"v_add_f32 v{32+k}, v{32+k}, v{40+k}")
    for k in range(8): a.e(f"v_add_f32 v{16+k}, v{16+k}, v{32+k}")
    a.e(f"""
    v_cvt_pk_bf16_f32 v48, v16, v17
    v_cvt_pk_bf16_f32 v49, v18, v19
    v_cvt_pk_bf16_f32 v50, v20, v21
    v_cvt_pk_bf16_f32 v51, v22, v23
    v_and_b32 v6, 31, v{vLane}
    v_lshrrev_b32 v7, 5, v{vLane}
    v_permlane32_swap_b32 v48, v50
    v_permlane32_swap_b32 v49, v51
    v_mul_u32_u24 v6, 896, v6
    v_lshl_add_u32 v6, v7, 4, v6
    s_lshl_b32 s62, s4, 1
    s_add_u32 s62, s62, s60
    s_mul_i32 s62, s62, {32*896}
    s_add_u32 s62, s62, s56
    s_lshl_b32 s63, s61, 6
    s_add_u32 s62, s62, s63
    s_lshl_b32 s63, s57, 5
    s_add_u32 s62, s62, s63
    buffer_store_dwordx4 v[48:51], v6, s[{SO}:{SO+3}], s62 offen
    """)
    a.label(f"{L}_end")
    if DBG:
        a.e("s_waitcnt vmcnt(0)"); stamp(a,10); stamp_rt(a,11); stamp_out(a,13,SWS,60,"f"); stamp_dbg(a,12,SDB,60)
    a.label(f"{L}_done")
    a.e("s_endpgm")
    a.label(f"{L}_slow")
    m=vM[0]; Os=O[0]; sc=S[0]; q0=Q[0][0]; q1=Q[0][1]
    a.e(f"""
    s_mov_b64 exec, s[68:69]
    v_mov_b32 v{q1+2}, 0
    s_mov_b64 exec, -1
    v_mov_b32 v{m}, 0xff800000
    s_mov_b32 s60, 0
    """)
    for r in range(16): a.e(f"v_mov_b32 v{Os+r}, 0")
    a.label(f"{L}_sin")
    sl1=len(a.lines)
    a.e(f"""
    buffer_load_dwordx4 {R4(kA)}, v{vL}, s[{SKV}:{SKV+3}], s60 offen sc1
    buffer_load_dwordx4 {R4(kB)}, v{vL}, s[{SKV}:{SKV+3}], s60 offen offset:1024 sc1
    buffer_load_dwordx4 {R4(vA)}, v{vL}, s[{SKV}:{SKV+3}], s60 offen offset:2048 sc1
    buffer_load_dwordx4 {R4(vB)}, v{vL}, s[{SKV}:{SKV+3}], s60 offen offset:3072 sc1
    s_waitcnt vmcnt(0)
    {MF} {R16(sc)}, {R4(kA)}, {R4(q0)}, 0
    {MF} {R16(sc)}, {R4(kB)}, {R4(q1)}, {R16(sc)}
    s_nop 15
    v_max3_f32 v5, v{sc}, v{sc+1}, v{sc+2}
    """)
    for k in range(3,15,2): a.e(f"v_max3_f32 v5, v5, v{sc+k}, v{sc+k+1}")
    a.e(f"""
    v_max_f32 v5, v5, v{sc+15}
    s_nop 0
    v_mov_b32 v6, v5
    s_nop 1
    v_permlane32_swap_b32 v5, v6
    s_nop 1
    v_max3_f32 v5, v5, v6, v{m}
    v_sub_f32 v6, v{m}, v5
    v_exp_f32 v6, v6
    v_mov_b32 v{m}, v5
    """)
    for r in range(16): a.e(f"v_sub_f32 v{sc+r}, v{sc+r}, v5")
    for r in range(16): a.e(f"v_exp_f32 v{sc+r}, v{sc+r}")
    for r in range(16): a.e(f"v_mul_f32 v{Os+r}, v{Os+r}, v6")
    for k in range(8): a.e(f"v_cvt_pk_bf16_f32 v{P+k}, v{sc+2*k}, v{sc+2*k+1}")
    a.e(f"""
    s_nop 1
    {MF} {R16(Os)}, {R4(vA)}, {R4(P)}, {R16(Os)}
    {MF} {R16(Os)}, {R4(vB)}, {R4(P+4)}, {R16(Os)}
    s_nop 15
    s_add_u32 s60, s60, 4096
    s_cmp_lt_u32 s60, 0x40000
    s_cbranch_scc1 {L}_sin
    """)
    sl2=len(a.lines)
    a.e(f"s_mov_b32 s70, 1\ns_branch {L}_final")
    a.loops=[(sl1,sl2)]
    return dict(vgpr=144,sgpr=(100 if DBG else 72),lds=LDS_TOTAL,grid=256,block=512)

HDR=open("cdna_kernels/"+NAME+".s.ref").read().split("; Override")[0]
def build(path):
    name=NAME+"_kernel"
    a=Asm(); info=fused(a)
    errs=check(a.lines,name)
    for (s,e) in a.loops: errs+=check(a.lines[s:e]+a.lines[s:e],name+"-loop")
    t=HDR+f"; @launch grid=({info['grid']},1,1) block=({info['block']},1,1) lds={info['lds']}\n"
    t+='.amdgcn_target "amdgcn-amd-amdhsa--gfx950"\n.text\n'
    t+=f".globl {name}\n.p2align 8\n.type {name},@function\n{name}:\n"+a.text()
    t+=f""".section .rodata,"a"
.p2align 6
.amdhsa_kernel {name}
  .amdhsa_next_free_vgpr {info['vgpr']}
  .amdhsa_next_free_sgpr {info['sgpr']}
  .amdhsa_accum_offset {info['vgpr']}
  .amdhsa_group_segment_fixed_size 0
  .amdhsa_kernarg_size 80
  .amdhsa_user_sgpr_count 2
  .amdhsa_user_sgpr_kernarg_segment_ptr 1
  .amdhsa_system_sgpr_workgroup_id_x 1
.end_amdhsa_kernel
"""
    open(path,"w").write(t)
    open("launch.txt","w").write(f"{name} {info['grid']} {info['block']} {info['lds']}\n")
    for e in errs: print("HAZARD",e)
    print("hazard errors:",len(errs))
if __name__=="__main__":
    if len(sys.argv)>2 and sys.argv[2]=="dbg": DBG=True
    build(sys.argv[1] if len(sys.argv)>1 else "cdna_kernels/"+NAME+".s")
```

```python
import sys, math, struct
from asm import Asm, check
NAME="gated_mix__mha_block__softmax_full_mha__prompt"
WS_KV=0; WS_O=8<<20; WS_FKV=16<<20; WS_FO=(16<<20)+65536; WS_DBG=17<<20; WS_END=(18<<20)
XB=2048*448*2; WB=448*1344*2; WOB=448*448*2
QSCALE=math.log2(math.e)/math.sqrt(28.0)
def f2u(f): return struct.unpack("<I",struct.pack("<f",f))[0]
import os
DBG=False
DMASC=os.environ.get('DMASC','sc1')
STSC=os.environ.get('STSC','sc1')
NST=12
P1DBG=os.environ.get('P1DBG','')
def stamp1(a,i):
    if DBG and P1DBG: a.e(f"s_memtime s[{72+2*i}:{73+2*i}]\ns_waitcnt lgkmcnt(0)")
RTM=os.environ.get('RTM','')
STG=os.environ.get('STG','')
FST=os.environ.get('FST','')
def stampF(a,i):
    if DBG and FST: a.e(f"s_memtime s[{72+2*i}:{73+2*i}]\ns_waitcnt lgkmcnt(0)")
def stampS(a,i):
    if DBG and STG: a.e(f"s_memtime s[{72+2*i}:{73+2*i}]\ns_waitcnt lgkmcnt(0)")
TDBG=os.environ.get('TDBG','')
def stampT(a,i):
    if DBG and TDBG: a.e(f"s_memtime s[{72+2*i}:{73+2*i}]\ns_waitcnt lgkmcnt(0)")
def stamp(a,i):
    if FST and i in (2,3,4,5,6,7,8,9):
        if i==5: stampF(a,2)
        return
    if TDBG and i in (2,3,4,5): return
    if STG and i in (2,3,4,5,6,7,8,9):
        if i==5: stampS(a,2)
        if i==6: stampS(a,12)
        return
    if RTM and i in (3,9): return
    if RTM and i==5 and DBG: a.e("s_memrealtime s[78:79]\ns_waitcnt lgkmcnt(0)")
    if RTM and i==6 and DBG: a.e("s_memrealtime s[90:91]\ns_waitcnt lgkmcnt(0)")
    if P1DBG and i in (3,6,7,8,9): return
    if DBG: a.e(f"s_memtime s[{72+2*i}:{73+2*i}]\ns_waitcnt lgkmcnt(0)")
def stamp_rt(a,i):
    if DBG: a.e(f"s_memrealtime s[{72+2*i}:{73+2*i}]\ns_waitcnt lgkmcnt(0)")
def stamp_out(a,n,srdws,t0,tag):
    if not DBG: return
    a.e("s_cmp_lg_u32 s9, 0")
    a.e(f"s_cbranch_scc1 STMP{tag}_skip")
    a.e(f"s_lshl_b32 s70, s2, 6\ns_add_u32 s70, s70, {WS_DBG}")
    a.e(f"s_mov_b64 exec, 1\nv_mov_b32 v{t0+1}, 0")
    for i in range(n):
        a.e(f"v_mov_b32 v{t0}, s{72+2*i}")
        a.e(f"buffer_store_dword v{t0}, v{t0+1}, s[{srdws}:{srdws+3}], s70 offen offset:{4*i}")
        a.e("s_nop 1")
    a.e("s_mov_b64 exec, -1")
    a.label(f"STMP{tag}_skip")
def stamp_dbg(a,n,sdb,t0):
    if not (DBG and os.environ.get('TODBG')): return
    wg=int(os.environ['TODBG'])
    a.e(f"s_cmp_lg_u32 s9, 0\ns_cbranch_scc1 SDBG_skip\ns_cmp_lg_u32 s2, {wg}\ns_cbranch_scc1 SDBG_skip")
    a.e(f"s_mov_b64 exec, 1\nv_mov_b32 v{t0+1}, 0")
    for i in range(2,n):
        if i==11: a.e(f"s_sub_u32 s70, s{72+2*i}, s74")
        else: a.e(f"s_sub_u32 s70, s{72+2*i}, s72")
        a.e(f"v_mov_b32 v{t0}, s70")
        a.e(f"buffer_store_dword v{t0}, v{t0+1}, s[{sdb}:{sdb+3}], 0 offen offset:{4*(i-1)}")
        a.e("s_nop 1")
    a.e("s_mov_b64 exec, -1")
    a.label("SDBG_skip")
def srd(a, d, lo, hi, size):
    a.e(f"s_mov_b32 s{d}, {lo}\ns_mov_b32 s{d+1}, {hi}\ns_mov_b32 s{d+2}, {size}\ns_mov_b32 s{d+3}, 0x20000")
R4=lambda r: f"v[{r}:{r+3}]"
R16=lambda r: f"v[{r}:{r+15}]"
MF="v_mfma_f32_32x32x16_bf16"

def fused(a):
    L="F"
    WLDS=0; XLDS=49152; GLDS=XLDS+8*12288; LDS_TOTAL=163840
    QX=65536; WOA=98304; GX=157696; FLAG=158720
    SX=40; SW=44; SG=48; SWS=52; SKV=36; SDB=12
    vLane=1; vL=2; vD=3; vGate=4
    vX=[10,11]; vXw=[22,23]; xs=128; vW=12; vG=13; vXr=[14,15,16,17]; vWr=[18,19]; vGr=20; vOnes=21
    xf=24; wf=[[40,44,48],[52,56,60]]; acc=[64,80,96]
    a.e(f"s_cmp_ge_u32 s2, 256\ns_cbranch_scc1 {L}_done")
    stamp(a,0); stamp_rt(a,1)
    if os.environ.get("SHUF"):
        a.e("s_and_b32 s3, s2, 7\ns_lshl_b32 s3, s3, 5\ns_lshr_b32 s2, s2, 3\ns_or_b32 s2, s2, s3")
    a.e("""
    s_load_dwordx16 s[16:31], s[0:1], 0
    s_load_dwordx4 s[32:35], s[0:1], 64
    s_lshr_b32 s4, s2, 3
    s_bfe_u32 s7, s2, 0x10002
    s_bfe_u32 s3, s2, 0x10001
    s_lshl_b32 s3, s3, 3
    s_and_b32 s8, s4, 7
    s_add_u32 s8, s8, s3
    s_and_b32 s3, s2, 1
    s_lshl_b32 s3, s3, 2
    s_lshr_b32 s6, s4, 3
    s_add_u32 s6, s6, s3
    s_lshl_b32 s5, s7, 4
    s_add_u32 s5, s5, s8
    """)
    if os.environ.get("MAP")=="old":
        a.e("""
        s_and_b32 s3, s2, 7
        s_lshr_b32 s4, s2, 3
        s_and_b32 s5, s4, 3
        s_lshl_b32 s3, s3, 2
        s_add_u32 s5, s5, s3
        s_lshr_b32 s6, s4, 2
        s_lshr_b32 s7, s5, 4
        s_and_b32 s8, s5, 15
        """)
    cpf=os.environ.get("CPF","")
    CPF="s_nop 0"
    if cpf=="all":
        CPF=f"""s_getpc_b64 s[70:71]
    v_mul_u32_u24 v124, 24, v5
    v_add_u32 v124, v124, v{vLane}
    v_lshlrev_b32 v124, 7, v124
    v_mov_b32 v125, s71
    v_add_co_u32 v124, vcc, s70, v124
    v_addc_co_u32 v125, vcc, 0, v125, vcc
    s_mov_b32 exec_lo, 0xffffff
    s_mov_b32 exec_hi, 0
    global_load_dword v126, v[124:125], off
    s_mov_b64 exec, -1"""
    if cpf=="xcd":
        CPF=f"""s_getpc_b64 s[70:71]
    s_mul_i32 s3, s4, 6
    v_add_u32 v124, s3, v{vLane}
    v_lshlrev_b32 v124, 7, v124
    v_mov_b32 v125, s71
    v_add_co_u32 v124, vcc, s70, v124
    v_addc_co_u32 v125, vcc, 0, v125, vcc
    s_mov_b32 exec_lo, 0x3f
    s_mov_b32 exec_hi, 0
    global_load_dword v126, v[124:125], off
    s_mov_b64 exec, -1"""
    a.e(f"""
    v_and_b32 v{vLane}, 63, v0
    v_lshrrev_b32 v5, 6, v0
    v_lshrrev_b32 v6, 3, v{vLane}
    v_readfirstlane_b32 s9, v5
    {CPF}
    v_and_b32 v7, 7, v{vLane}
    v_lshrrev_b32 v5, 4, v{vLane}
    v_xor_b32 v7, v7, v5
    v_mul_u32_u24 v6, 896, v6
    v_lshl_add_u32 v{vX[0]}, v7, 4, v6
    v_xor_b32 v{vX[1]}, 64, v{vX[0]}
    v_mul_u32_u24 v6, 43, v{vLane}
    v_lshrrev_b32 v6, 9, v6
    v_mul_u32_u24 v7, 12, v6
    v_sub_u32 v7, v{vLane}, v7
    v_lshrrev_b32 v5, 2, v7
    v_and_b32 v7, 3, v7
    v_mul_u32_u24 v6, 2688, v6
    v_mul_u32_u24 v5, 896, v5
    v_lshlrev_b32 v7, 4, v7
    v_add3_u32 v{vW}, v6, v7, v5
    v_lshlrev_b32 v{vL}, 4, v{vLane}
    v_lshlrev_b32 v{vD}, 4, v0
    v_and_b32 v6, 31, v{vLane}
    v_lshrrev_b32 v7, 5, v{vLane}
    v_bfe_u32 v5, v{vLane}, 1, 3
    v_xor_b32 v5, v5, v7
    v_lshlrev_b32 v5, 4, v5
    v_lshl_add_u32 v5, v6, 7, v5
    s_mul_i32 s57, s9, 12288
    s_add_u32 s57, s57, {XLDS}
    v_add_u32 v{vXr[0]}, s57, v5
    v_xor_b32 v{vXr[1]}, 32, v{vXr[0]}
    v_xor_b32 v{vXr[2]}, 64, v{vXr[0]}
    v_xor_b32 v{vXr[3]}, 96, v{vXr[0]}
    v_lshlrev_b32 v7, 4, v7
    v_add_u32 v{vGr}, {GLDS}, v7
    v_cmp_eq_u32 vcc, 28, v6
    v_mov_b32 v6, 0x3f803f80
    v_mov_b32 v7, 0
    v_cndmask_b32 v{vOnes}, v7, v6, vcc
    v_lshrrev_b32 v5, 4, v{vLane}
    v_and_b32 v6, 1, v5
    v_lshrrev_b32 v5, 1, v5
    v_bfe_u32 v7, v{vLane}, 2, 2
    v_lshl_add_u32 v5, v5, 3, v7
    v_mul_u32_u24 v5, 192, v5
    v_lshl_add_u32 v5, v6, 5, v5
    v_and_b32 v6, 3, v{vLane}
    v_lshl_add_u32 v{vWr[0]}, v6, 3, v5
    """)
    assert XLDS%128==0
    a.e("""
    s_lshl_b32 s10, s6, 3
    s_add_u32 s10, s10, s9
    s_mul_i32 s56, s10, 28672
    s_mul_i32 s58, s9, 10752
    s_mul_i32 s59, s8, 56
    s_add_u32 s58, s58, s59
    s_mul_i32 s59, s9, 768
    s_mov_b32 s60, 0x10000000
    s_mov_b32 s61, 0x10000000
    s_waitcnt lgkmcnt(0)
    s_cmp_eq_u32 s7, 0
    s_cselect_b32 s38, s18, s24
    s_cselect_b32 s39, s19, s25
    """)
    stamp(a,2)
    srd(a,SX,"s16","s17",XB); srd(a,SW,"s38","s39",WB); srd(a,SG,"s28","s29",896)
    a.e("""
    s_mov_b32 s0, -1
    s_mov_b32 s1, 0xffff
    s_mov_b32 s66, -1
    s_mov_b32 s67, 0xffffff
    """)
    ROT2=os.environ.get("ROT","1")=="2"
    ROT=os.environ.get("ROT","1")=="1"
    if ROT2:
        a.e("""
        s_and_b32 s62, s8, 7
        s_and_b32 s63, s6, 3
        s_lshl_b32 s63, s63, 1
        s_add_u32 s62, s62, s63
        s_cmp_ge_u32 s62, 12
        s_cselect_b32 s63, 12, 0
        s_sub_u32 s62, s62, s63
        s_cmp_ge_u32 s62, 6
        s_cselect_b32 s63, 6, 0
        s_sub_u32 s62, s62, s63
        s_add_u32 s62, s62, 1
        s_lshl_b32 s62, s62, 7
        s_mov_b32 s4, s62
        """)
    elif ROT:
        a.e("""
        s_and_b32 s62, s8, 7
        s_and_b32 s63, s6, 3
        s_lshl_b32 s63, s63, 1
        s_add_u32 s62, s62, s63
        s_cmp_ge_u32 s62, 7
        s_cselect_b32 s63, 7, 0
        s_sub_u32 s62, s62, s63
        s_lshl_b32 s62, s62, 7
        s_mov_b32 s4, s62
        """)
    else:
        a.e("s_mov_b32 s62, 0\ns_mov_b32 s4, 0")
    def dmaX1(kc,j):
        slot=kc%3
        if j==0 and ROT2 and kc==0:
            a.e("s_mov_b32 s64, s56\ns_mov_b32 s63, s58")
        elif j==0 and ROT2:
            a.e("""
            s_add_u32 s64, s56, s62
            s_mul_i32 s63, s62, 1344
            s_add_u32 s63, s63, s58
            s_add_u32 s62, s62, 128
            s_cmp_eq_u32 s62, 896
            s_cselect_b32 s62, 128, s62
            """)
        elif j==0:
            a.e("""
            s_add_u32 s64, s56, s62
            s_mul_i32 s63, s62, 1344
            s_add_u32 s63, s63, s58
            s_add_u32 s62, s62, 128
            s_cmp_eq_u32 s62, 896
            s_cselect_b32 s62, 0, s62
            """)
        a.e(f"""
        s_add_u32 m0, s57, {slot*4096+j*1024}
        s_add_u32 s65, s64, {8*j*896}
        buffer_load_dwordx4 v{vX[j&1]}, s[{SX}:{SX+3}], s65 offen lds
        """)
    def dmaW1(kc,i):
        a.e(f"""
        s_mov_b64 exec, s[0:1]
        s_add_u32 m0, s59, {WLDS+(kc%4)*12288+i*6144}
        s_add_u32 s65, s63, {i*32*2688}
        buffer_load_dwordx4 v{vW}, s[{SW}:{SW+3}], s65 offen lds
        s_mov_b64 exec, -1
        """)
    vmq=[]
    def chunk_ops(kc):
        ops=[]
        for j in range(4): ops.append(lambda j=j: (dmaX1(kc,j), vmq.append(("c",kc))))
        for i in range(2): ops.append(lambda i=i: (dmaW1(kc,i), vmq.append(("c",kc))))
        return ops
    DEPTH=int(os.environ.get("P1DEPTH","2"))
    TD=int(os.environ.get("TOUCHD","0"))
    ST=52
    if TD:
        a.e(f"""
        s_lshr_b32 s3, s2, 3
        s_and_b32 s62, s2, 1
        s_lshl_b32 s62, s62, 10
        s_lshl_b32 s63, s3, 5
        s_add_u32 s62, s62, s63
        s_lshl_b32 s63, s9, 3
        s_add_u32 s62, s62, s63
        v_add_u32 v122, s62, v{vLane}
        v_mul_u32_u24 v122, 896, v122
        s_mul_i32 s62, s3, 24
        s_sub_u32 s63, s9, 4
        s_mul_i32 s63, s63, 6
        s_add_u32 s62, s62, s63
        v_add_u32 v123, s62, v{vLane}
        v_lshrrev_b32 v124, 2, v123
        v_and_b32 v123, 3, v123
        v_mul_u32_u24 v124, 896, v124
        v_lshl_add_u32 v123, v123, 7, v124
        s_bfe_u32 s63, s2, 0x10001
        s_mul_i32 s63, s63, 384
        v_add_u32 v123, s63, v123
        s_cmp_lt_u32 s9, 4
        s_cselect_b64 vcc, -1, 0
        v_cndmask_b32 v122, v123, v122, vcc
        s_cselect_b32 s{ST}, s{SX}, s{SW}
        s_cselect_b32 s{ST+1}, s{SX+1}, s{SW+1}
        s_cselect_b32 s{ST+2}, s{SX+2}, s{SW+2}
        s_mov_b32 s{ST+3}, 0x20000
        s_mov_b32 s64, 172032
        s_cselect_b32 s62, 128, s64
        s_mov_b32 s64, 0xff
        s_cselect_b32 s63, s64, 63
        """)
    def touch(c):
        a.e(f"""
        s_mul_i32 s64, s62, {c}
        s_mov_b32 exec_lo, s63
        s_mov_b32 exec_hi, 0
        buffer_load_dword v123, v122, s[{ST}:{ST+3}], s64 offen
        s_mov_b64 exec, -1
        """)
        vmq.append(("t",c))
    def vmwait(tag):
        idx=max(i for i,t in enumerate(vmq) if t==tag)
        a.e(f"s_waitcnt vmcnt({len(vmq)-idx-1})")
    a.e(f"""
    s_mov_b64 exec, s[66:67]
    s_mov_b32 m0, {GLDS}
    s_nop 0
    buffer_load_dwordx4 v{vL}, s[{SG}:{SG+3}], 0 offen lds
    s_mov_b64 exec, -1
    """)
    for kc in range(2):
        for op in chunk_ops(kc): op()
        if kc<1: a.e("s_barrier")
    stamp1(a,3)
    srd(a,SDB,"s32","s33",256)
    a.e(f"""
    s_or_b32 s3, s2, s9
    s_cmp_lg_u32 s3, 0
    s_cbranch_scc1 {L}_notag
    s_memrealtime s[70:71]
    s_waitcnt lgkmcnt(0)
    s_or_b32 s70, s70, 1
    v_mov_b32 v5, s70
    v_mov_b32 v6, 0
    s_mov_b64 exec, 1
    buffer_store_dword v5, v6, s[{SDB}:{SDB+3}], 0 offen sc1
    s_mov_b64 exec, -1
    """)
    a.label(f"{L}_notag")
    a.e("""
    s_lshl_b32 s3, s5, 18
    s_add_u32 s36, s34, s3
    s_addc_u32 s37, s35, 0
    s_mov_b32 s38, 0x40000
    s_mov_b32 s39, 0x20000
    """)
    for r in range(48): a.e(f"v_mov_b32 v{acc[0]+r}, 0")
    def wreads(ks,buf):
        o=((ks//4)%4)*12288+(ks%4)*3072
        for t in range(3):
            r=wf[buf][t]
            a.e(f"ds_read_b64_tr_b16 v[{r}:{r+1}], v{vWr[0]} offset:{o+t*64}")
            a.e(f"ds_read_b64_tr_b16 v[{r+2}:{r+3}], v{vWr[0]} offset:{o+t*64+768}")
        r=wf[buf][0]
        a.e(f"s_mov_b64 exec, s[60:61]\nds_read_b128 v[{r}:{r+3}], v22 offset:{(ks%4)*32}\ns_mov_b64 exec, -1")
    xfb=[xf,128]
    lq=[]
    def lwait(tag):
        if tag in lq:
            idx=max(i for i,t in enumerate(lq) if t==tag)
            a.e(f"s_waitcnt lgkmcnt({min(15,len(lq)-idx-1)})"); del lq[:idx+1]
    def wreads2(ks,buf):
        wreads(ks,buf); lq.extend([("w",ks)]*7)
    pend=[]
    def sync(k):
        vmwait(("c",k))
        if k in (0,1,3,6): stamp1(a,{0:6,1:7,3:8,6:9}[k])
        if k==6: a.e(f"v_mov_b32 v120, 0\nbuffer_load_dword v121, v120, s[{SDB}:{SDB+3}], 0 offen sc1")
        a.e("s_barrier")
        for kk in range(4):
            a.e(f"ds_read_b128 {R4(xfb[k%2]+4*kk)}, v{vXr[kk]} offset:{(k%3)*4096}"); lq.append(("x",k))
        if k+2<7: pend.extend(chunk_ops(k+2))
    gb_n=[0]
    def gate_base():
        if ROT2 and gb_n[0]==0:
            a.e(f"v_mov_b32 v22, v{vGr}")
        elif ROT2:
            a.e(f"v_add_u32 v22, s4, v{vGr}\ns_add_u32 s4, s4, 128\ns_cmp_eq_u32 s4, 896\ns_cselect_b32 s4, 128, s4")
        else:
            a.e(f"v_add_u32 v22, s4, v{vGr}\ns_add_u32 s4, s4, 128\ns_cmp_eq_u32 s4, 896\ns_cselect_b32 s4, 0, s4")
        gb_n[0]+=1
    sync(0)
    gate_base()
    wreads2(0,0)
    for kc in range(7):
        for kk in range(4):
            ks=4*kc+kk; buf=ks&1
            lwait(("w",ks)); lwait(("x",kc))
            if kk==2 and kc<6: sync(kc+1)
            if ks+1<28:
                if kk==3: gate_base()
                wreads2(ks+1,buf^1)
            x=R4(xfb[kc%2]+4*kk)
            for t in range(3):
                w=R4(wf[buf][t]); c=R16(acc[t])
                if t<2: a.e(f"{MF} {c}, {w}, {x}, {c}")
                else:   a.e(f"{MF} {c}, {x}, {w}, {c}")
            for _ in range(2):
                if pend: pend.pop(0)()
    assert not pend
    srd(a,SWS,"s34","s35",WS_END)
    stamp(a,4)
    a.e(f"""
    s_lshl_b32 s11, s10, 12
    s_mov_b32 s67, {hex(f2u(QSCALE))}
    s_mov_b32 s68, 0
    s_mov_b32 s69, -1
    s_mov_b32 s70, 0xf0000000
    s_mov_b32 s71, 0xf0000000
    s_nop 7
    """)
    for t in (1,2):
        for i in range(8): a.e(f"v_cvt_pk_bf16_f32 v{acc[t]+i}, v{acc[t]+2*i}, v{acc[t]+2*i+1}")
    a.e(f"""
    s_mov_b64 exec, s[68:69]
    v_mov_b32 v{acc[1]+6}, 0x3f80
    v_mov_b32 v{acc[1]+7}, 0
    s_mov_b64 exec, s[70:71]
    """)
    for i in range(8): a.e(f"v_mov_b32 v{acc[2]+i}, v{vOnes}")
    a.e("s_mov_b64 exec, -1")
    a.e(f"s_lshl_b32 s3, s9, 12\nv_add_u32 v5, s3, v{vL}")
    for t in (1,2):
        for c in range(2):
            r=acc[t]+4*c
            a.e(f"buffer_store_dwordx4 {R4(r)}, v{vL}, s[{SKV}:{SKV+3}], s11 offen offset:{(t-1)*2048+c*1024} {os.environ.get('KVST','sc1')}")
    a.e(f"""
    v_mul_f32 v6, {hex(f2u(-math.log2(math.e)))}, v{acc[0]+12}
    v_exp_f32 v6, v6
    s_nop 0
    v_add_f32 v6, 1.0, v6
    v_rcp_f32 v6, v6
    s_nop 0
    v_sub_f32 v7, 1.0, v6
    s_cmp_eq_u32 s7, 0
    s_cselect_b64 vcc, -1, 0
    v_cndmask_b32 v6, v7, v6, vcc
    """)
    for r in range(16): a.e(f"v_mul_f32 v{acc[0]+r}, s67, v{acc[0]+r}")
    for i in range(8): a.e(f"v_cvt_pk_bf16_f32 v{acc[0]+i}, v{acc[0]+2*i}, v{acc[0]+2*i+1}")
    a.e(f"""
    s_lshl_b32 s3, s9, 11
    s_add_u32 s3, s3, {QX}
    v_add_u32 v7, s3, v{vL}
    s_lshl_b32 s3, s9, 7
    s_add_u32 s3, s3, {GX-128}
    v_lshl_add_u32 v8, v{vLane}, 2, s3
    s_mov_b64 exec, s[68:69]
    v_mov_b32 v{acc[0]+6}, 0
    v_mov_b32 v{acc[0]+7}, 0
    s_mov_b64 exec, -1
    s_barrier
    """)
    for t in (1,2):
        for c in range(2):
            a.e(f"ds_write_b128 v5, {R4(acc[t]+4*c)} offset:{(t-1)*2048+c*1024}")
    for c in range(2): a.e(f"ds_write_b128 v7, {R4(acc[0]+4*c)} offset:{c*1024}")
    a.e(f"""
    s_mov_b64 exec, s[68:69]
    ds_write_b32 v8, v6
    s_mov_b64 exec, -1
    v_mov_b32 v123, {FLAG}
    v_mov_b32 v6, 0
    ds_write_b32 v123, v6
    """)
    Q=[[16,20],[24,28]]; S=[32,48]; P=64; kA=72; kB=76; vA=80; vB=84; O=[88,104]; vM=[8,14]; vR0=9; vR2=13
    a.e(f"""
    s_and_b32 s62, s9, 3
    s_lshr_b32 s63, s9, 2
    s_lshl_b32 s64, s62, 1
    s_add_u32 s64, s64, s63
    s_lshl_b32 s3, s63, 14
    v_add_u32 v{vR0}, s3, v{vL}
    v_add_u32 v{vR2}, 65536, v{vR0}
    s_lshl_b32 s57, s9, 10
    v_lshlrev_b32 v10, 7, v{vLane}
    s_lshl_b32 s61, s5, 10
    s_add_u32 s61, s61, {WS_FKV}
    s_lshl_b32 s58, 1, s6
    s_xor_b32 s58, s58, 0xff
    s_mov_b32 s59, 0
    s_waitcnt lgkmcnt(0)
    s_barrier
    """)
    stamp(a,5)
    def gettag():
        a.label(f"{L}_tag")
        a.e(f"""
        v_readfirstlane_b32 s71, v121
        s_nop 3
        s_cmp_lg_u32 s71, 0
        s_cbranch_scc1 {L}_tagok
        s_sleep 2
        buffer_load_dword v121, v120, s[{SDB}:{SDB+3}], 0 offen sc1
        s_waitcnt vmcnt(0)
        s_branch {L}_tag
        """)
        a.label(f"{L}_tagok")
    def poll_check(soff,mask_lo,tag,first_issued,vaddr=10,sleep=2):
        if mask_lo is not None: a.e(f"s_mov_b32 exec_lo, {mask_lo}\ns_mov_b32 exec_hi, 0")
        if first_issued: a.e(f"s_branch {L}_pchk{tag}")
        a.label(f"{L}_poll{tag}")
        a.e(f"buffer_load_dword v12, v{vaddr}, s[{SWS}:{SWS+3}], {soff} offen sc1")
        a.label(f"{L}_pchk{tag}")
        a.e(f"""
        s_waitcnt vmcnt(0)
        v_cmp_ne_u32 vcc, s71, v12
        s_nop 1
        s_cmp_eq_u64 vcc, 0
        s_cbranch_scc1 {L}_pdone{tag}
        s_mov_b64 exec, vcc
        s_sleep {sleep}
        s_branch {L}_poll{tag}
        """)
        a.label(f"{L}_pdone{tag}")
        a.e("s_mov_b64 exec, -1")
    def poll_pipe(soff,mask_lo,tag,regs=(12,11,8)):
        a.e(f"s_mov_b32 exec_lo, {mask_lo}\ns_mov_b32 exec_hi, 0")
        k=len(regs)
        for r in regs[:-1]:
            a.e(f"buffer_load_dword v{r}, v10, s[{SWS}:{SWS+3}], {soff} offen sc1\ns_sleep 2")
        a.e(f"buffer_load_dword v{regs[-1]}, v10, s[{SWS}:{SWS+3}], {soff} offen sc1")
        a.label(f"{L}_pp{tag}")
        for r in regs:
            a.e(f"""
            s_waitcnt vmcnt({k-1})
            v_cmp_ne_u32 vcc, s71, v{r}
            s_nop 1
            s_cmp_eq_u64 vcc, 0
            s_cbranch_scc1 {L}_ppd{tag}
            buffer_load_dword v{r}, v10, s[{SWS}:{SWS+3}], {soff} offen sc1
            """)
        a.e(f"s_branch {L}_pp{tag}")
        a.label(f"{L}_ppd{tag}")
        a.e("s_mov_b64 exec, -1")
    def signal(soff,tag):
        a.e(f"""
        v_mov_b32 v12, s71
        s_mov_b64 exec, 1
        buffer_store_dword v12, v120, s[{SWS}:{SWS+3}], {soff} offen sc1
        s_mov_b64 exec, -1
        """)
    a.e(f"""
    s_lshl_b32 s3, s64, 11
    s_add_u32 s3, s3, {QX}
    v_add_u32 v5, s3, v{vL}
    v_xor_b32 v6, 2048, v5
    ds_read_b128 {R4(Q[0][0])}, v5
    ds_read_b128 {R4(Q[0][1])}, v5 offset:1024
    ds_read_b128 {R4(Q[1][0])}, v6
    ds_read_b128 {R4(Q[1][1])}, v6 offset:1024
    ds_read_b128 {R4(kA)}, v{vL}
    ds_read_b128 {R4(kB)}, v{vL} offset:1024
    s_lshl_b32 s3, s64, 7
    s_add_u32 s3, s3, {GX}
    v_and_b32 v7, 31, v{vLane}
    v_lshl_add_u32 v7, v7, 2, s3
    ds_read_b32 v{vGate}, v7
    s_waitcnt lgkmcnt(0)
    """)
    assert QX%4096==0
    for X in range(2):
        a.e(f"{MF} {R16(S[X])}, {R4(kA)}, {R4(Q[X][0])}, 0")
        a.e(f"{MF} {R16(S[X])}, {R4(kB)}, {R4(Q[X][1])}, {R16(S[X])}")
    def toff(s,j):
        slot=s%3
        return (vR0,slot*32768+j*4096) if slot<2 else (vR2,j*4096)
    def rdk(r,s,j,o):
        b,off=toff(s,j)
        a.e(f"ds_read_b128 {R4(r)}, v{b} offset:{off+o}")
    rdk(kA,0,0,0); rdk(kB,0,0,1024); rdk(vA,0,0,2048)
    for r in range(32): a.e(f"v_mov_b32 v{O[0]+r}, 0")
    a.e("s_mov_b64 s[62:63], 0\ns_mov_b32 s60, 0x45000000")
    for X in range(2):
        s0=S[X]; m=vM[X]
        a.e(f"v_max3_f32 v{m}, v{s0}, v{s0+1}, v{s0+2}")
        for i in range(3,15,2): a.e(f"v_max3_f32 v{m}, v{m}, v{s0+i}, v{s0+i+1}")
        a.e(f"""
        v_max_f32 v{m}, v{m}, v{s0+15}
        v_mov_b32 v5, v{m}
        s_nop 0
        v_mov_b32 v6, v{m}
        s_nop 1
        v_permlane32_swap_b32 v5, v6
        s_nop 1
        v_max_f32 v{m}, v5, v6
        v_cmp_nge_f32 vcc, s60, abs(v{m})
        v_lshrrev_b32 v5, 16, v{m}
        v_xor_b32 v5, 0x8000, v5
        s_or_b64 s[62:63], s[62:63], vcc
        s_mov_b64 exec, s[68:69]
        v_mov_b32 v{Q[X][1]+2}, v5
        s_mov_b64 exec, -1
        """)
    a.e("s_waitcnt lgkmcnt(0)")
    a.e(f"{MF} {R16(S[0])}, {R4(kA)}, {R4(Q[0][0])}, 0")
    a.e(f"{MF} {R16(S[0])}, {R4(kB)}, {R4(Q[0][1])}, {R16(S[0])}")
    a.e("s_nop 7\ns_nop 3")
    def dma_stage_ops(s):
        slot=s%3
        def first():
            a.e(f"s_add_u32 s55x, s6, {s}")
        ops=[]
        for i in range(4):
            def op(i=i):
                if i==0: a.e(f"s_add_u32 s58x, s6, {s}\ns_and_b32 s58x, s58x, 7\ns_lshl_b32 s58x, s58x, 15".replace("s58x","s70"))
                a.e(f"""
                s_add_u32 m0, s57, {slot*32768+i*8192}
                s_add_u32 s65, s70, {i*8192}
                buffer_load_dwordx4 v{vD}, s[{SKV}:{SKV+3}], s65 offen {DMASC} lds
                """)
            ops.append(op)
        return ops
    def dma_stage(s):
        for op in dma_stage_ops(s): op()
    SWA=40; SWB=44; SO=48; vD3=15
    a.e(f"""
    s_mul_i32 s3, s5, 37
    s_lshr_b32 s4, s3, 8
    s_mul_i32 s3, s4, 7
    s_sub_u32 s3, s5, s3
    s_lshl_b32 s11, s6, 2
    s_add_u32 s4, s4, s11
    s_lshl_b32 s56, s3, 7
    v_lshrrev_b32 v6, 3, v{vLane}
    v_mul_u32_u24 v6, 896, v6
    v_and_b32 v7, 7, v{vLane}
    v_bfe_u32 v5, v{vLane}, 4, 1
    v_lshlrev_b32 v5, 2, v5
    v_xor_b32 v7, v7, v5
    v_lshl_add_u32 v{vD3}, v7, 4, v6
    """)
    srd(a,SWA,"s20","s21",WOB); srd(a,SWB,"s26","s27",WOB); srd(a,SO,"s30","s31",XB)
    wo_ctr=[0]
    def dma_wo(sw,ldsbase,m,tag):
        a.e(f"s_add_u32 s65, s9, {8*m}")
        if m==7: a.e("s_cmp_ge_u32 s65, 58\ns_cselect_b32 s66, 58, 0\ns_sub_u32 s65, s65, s66")
        a.e(f"""
        s_cmp_ge_u32 s65, 29
        s_cselect_b32 s66, 29, 0
        s_cselect_b32 s67, {224*896}, 0
        s_cselect_b32 s60, 29696, 0
        s_sub_u32 s65, s65, s66
        s_lshl_b32 s66, s65, 10
        s_add_u32 s66, s66, s60
        s_add_u32 m0, s66, {ldsbase}
        s_mul_i32 s65, s65, {8*896}
        s_add_u32 s65, s65, s67
        s_add_u32 s65, s65, s56
        buffer_load_dwordx4 v{vD3}, s[{sw}:{sw+3}], s65 offen lds
        """)
    def touch_wob():
        a.e(f"""
        s_mul_i32 s65, s9, {56*896}
        s_add_u32 s65, s65, s56
        v_mul_u32_u24 v5, 896, v{vLane}
        s_mov_b32 exec_lo, -1
        s_mov_b32 exec_hi, 0xffffff
        buffer_load_dword v11, v5, s[{SWB}:{SWB+3}], s65 offen
        s_mov_b64 exec, -1
        """)
    units=[(s,j,X) for s in range(8) for j in range(4) for X in (0,1)]
    KVP=[int(x) for x in os.environ.get('KVP','1,3').split(',')]
    SIGN=int(os.environ.get('SIGN','0'))
    outst=[]; deferred=[]
    def rd(name,r,s,j,o):
        rdk(r,s,j,o); outst.append(name)
    def need(name):
        if name in outst:
            idx=outst.index(name); a.e(f"s_waitcnt lgkmcnt({len(outst)-idx-1})"); del outst[:idx+1]
    a.loopstart=len(a.lines)
    for n,(s,j,X) in enumerate(units):
        sc=S[n%2]; sn=S[(n+1)%2]
        nxt=units[n+1] if n+1<64 else None
        prv=units[n-1] if n>0 else None
        nt=(s,j+1) if j<3 else ((s+1,0) if s<7 else None)
        if n==SIGN:
            stampF(a,3); outst.clear() if (FST and DBG) else None
            a.e("s_waitcnt vmcnt(0)\ns_barrier")
            stampF(a,4)
            gettag()
            a.e(f"s_cmp_lg_u32 s9, 0\ns_cbranch_scc1 {L}_nsig")
            a.e("s_lshl_b32 s3, s6, 7\ns_add_u32 s3, s3, s61")
            signal("s3","kv")
            a.label(f"{L}_nsig")
        if n==KVP[0]:
            a.e(f"s_cmp_lg_u32 s9, 0\ns_cbranch_scc1 {L}_npi")
            a.e(f"s_mov_b64 exec, s[58:59]\nbuffer_load_dword v12, v10, s[{SWS}:{SWS+3}], s61 offen sc1\ns_mov_b64 exec, -1")
            a.label(f"{L}_npi")
        if n==KVP[1]:
            stampF(a,5); outst.clear() if (FST and DBG) else None
            a.e(f"s_cmp_lg_u32 s9, 0\ns_cbranch_scc1 {L}_npc")
            a.e("s_mov_b64 exec, s[58:59]")
            poll_check("s61",None,"kv",True,vaddr=10,sleep=1)
            a.e(f"v_mov_b32 v12, 1\nds_write_b32 v123, v12")
            a.label(f"{L}_npc")
            a.e("s_mov_b32 s60, 0")
        if n in (KVP[1],KVP[1]+1) :
            last = (n==KVP[1]+1)
            a.e(f"s_cmp_lg_u32 s60, 0\ns_cbranch_scc1 {L}_go{n}x")
            a.label(f"{L}_go{n}")
            a.e(f"""
            ds_read_b32 v12, v123
            s_waitcnt lgkmcnt(0)
            v_readfirstlane_b32 s60, v12
            s_nop 3
            s_cmp_lg_u32 s60, 0
            """)
            if last: a.e(f"s_cbranch_scc0 {L}_go{n}")
            else: a.e(f"s_cbranch_scc0 {L}_go{n}x")
            if last: stampF(a,6)
            dma_stage(1)
            a.label(f"{L}_go{n}x")
        if j==3 and X==0 and s<7:
            if s==0 and FST and DBG:
                stampF(a,7); outst.clear(); a.e("s_waitcnt vmcnt(0)"); stampF(a,8)
            a.e("s_waitcnt vmcnt(0)\ns_barrier")
            if s==0: stampF(a,9)
            if STG and DBG:
                stampS(a,3+s); outst.clear()
            if s+2<8: deferred+=dma_stage_ops(s+2)
            if s==5: deferred+=[touch_wob]
            if 1<=s<=4:
                deferred+=[lambda s=s: dma_wo(SWA,WOA,2*(s-1),f"a{s}0"), lambda s=s: dma_wo(SWA,WOA,2*(s-1)+1,f"a{s}1")]
        if n<6: pr=3-(n*4)//6
        elif n>=54: pr=3-((n-54)*4)//10
        else: pr=3-((n-6)%8)//2
        a.e(f"s_setprio {pr}")
        def grp(g):
            for k in range(4): a.e(f"v_exp_f32 v{sc+4*g+k}, v{sc+4*g+k}")
            a.e(f"v_cvt_pk_bf16_f32 v{P+2*g}, v{sc+4*g}, v{sc+4*g+1}")
            a.e(f"v_cvt_pk_bf16_f32 v{P+2*g+1}, v{sc+4*g+2}, v{sc+4*g+3}")
        ORD=os.environ.get("ORD","0")
        def E(g,ks=range(4)):
            for k in ks: a.e(f"v_exp_f32 v{sc+4*g+k}, v{sc+4*g+k}")
        def C(g,base=None):
            b=sc if base is None else base
            a.e(f"v_cvt_pk_bf16_f32 v{P+2*g}, v{b+4*g}, v{b+4*g+1}")
            a.e(f"v_cvt_pk_bf16_f32 v{P+2*g+1}, v{b+4*g+2}, v{b+4*g+3}")
        def M1():
            if nxt:
                need("kA"); a.e(f"{MF} {R16(sn)}, {R4(kA)}, {R4(Q[nxt[2]][0])}, 0")
            if X==0 and nt: rd("kA",kA,nt[0],nt[1],0)
        def M2():
            if nxt:
                need("kB"); a.e(f"{MF} {R16(sn)}, {R4(kB)}, {R4(Q[nxt[2]][1])}, {R16(sn)}")
            if X==0 and nt: rd("kB",kB,nt[0],nt[1],1024)
        def M3():
            if prv:
                need("vB"); a.e(f"{MF} {R16(O[prv[2]])}, {R4(vB)}, {R4(P+4)}, {R16(O[prv[2]])}")
            if X==0: rd("vB",vB,s,j,3072)
        def M4():
            need("vA"); a.e(f"{MF} {R16(O[X])}, {R4(vA)}, {R4(P)}, {R16(O[X])}")
            if X==1 and nt: rd("vA",vA,nt[0],nt[1],2048)
        if ORD=="0":
            M1(); E(0); C(0); M2(); E(1,(0,1))
            if deferred: deferred.pop(0)()
            E(1,(2,3)); C(1); M3(); E(2); C(2); M4(); E(3); C(3)
        elif ORD=="1":
            if prv: C(3,sn)
            M1(); E(0)
            M2(); E(1); C(0)
            if prv: a.e("s_nop 0") if False else None
            M3(); E(2); C(1)
            E(3,(0,1)); M4(); E(3,(2,3)); C(2)
            if n==63: C(3)
    a.loopend=len(a.lines)
    a.e("s_setprio 0")
    stamp(a,6)
    a.e("s_nop 1")
    a.e(f"{MF} {R16(O[1])}, {R4(vB)}, {R4(P+4)}, {R16(O[1])}")
    a.e("s_nop 15")
    a.e(f"""
    s_lshl_b32 s3, s9, 12
    s_add_u32 s3, s3, 65536
    v_add_u32 v6, s3, v{vL}
    """)
    for g in range(4): a.e(f"ds_write_b128 v6, {R4(O[1]+4*g)} offset:{g*1024}")
    a.e(f"""
    v_xor_b32 v6, 16384, v6
    s_waitcnt lgkmcnt(0)
    s_barrier
    """)
    stampT(a,2)
    for g in range(4): a.e(f"ds_read_b128 {R4(O[1]+4*g)}, v6 offset:{g*1024}")
    a.e("s_waitcnt lgkmcnt(0)")
    for r in range(16): a.e(f"v_add_f32 v{O[0]+r}, v{O[0]+r}, v{O[1]+r}")
    a.e("s_mov_b32 s70, 0")
    a.label(f"{L}_final")
    Of=O[0]; On=O[1]; Opk=S[0]
    a.e(f"v_mov_b32 v5, v{Of+12}\nv_mov_b32 v6, v{Of+12}\ns_nop 1\nv_permlane32_swap_b32 v5, v6")
    a.e(f"""
    v_rcp_f32 v7, v6
    s_lshl_b32 s11, s5, 17
    v_mul_f32 v7, v7, v{vGate}
    s_lshl_b32 s3, s6, 3
    s_add_u32 s3, s3, s64
    """)
    for r in range(16): a.e(f"v_mul_f32 v{On+r}, v{Of+r}, v7")
    for i in range(8): a.e(f"v_cvt_pk_bf16_f32 v{Opk+i}, v{On+2*i}, v{On+2*i+1}")
    a.e(f"""
    s_lshl_b32 s59, s3, 12
    s_add_u32 s59, s59, {WS_FO}
    s_lshl_b32 s3, s3, 11
    s_add_u32 s11, s11, s3
    s_add_u32 s11, s11, {WS_O}
    s_mov_b64 exec, s[68:69]
    v_mov_b32 v{Opk+6}, 0
    v_mov_b32 v{Opk+7}, 0
    s_mov_b64 exec, -1
    s_lshl_b32 s3, s5, 7
    s_add_u32 s3, s3, s59
    buffer_store_dwordx4 {R4(Opk)}, v{vL}, s[{SWS}:{SWS+3}], s11 offen sc1
    buffer_store_dwordx4 {R4(Opk+4)}, v{vL}, s[{SWS}:{SWS+3}], s11 offen offset:1024 sc1
    """)
    stampT(a,3)
    a.e(f"s_cmp_lg_u32 s70, 0\ns_cbranch_scc1 {L}_chkd")
    a.e(f"v_mul_f32 v7, 0, v{On}")
    for r in range(1,16): a.e(f"v_fmac_f32 v7, 0, v{On+r}")
    a.e(f"""
    v_cmp_u_f32 vcc, v7, v7
    s_nop 0
    s_or_b64 s[62:63], s[62:63], vcc
    v_cmp_nge_f32 vcc, 0x4e800000, v6
    s_nop 0
    s_or_b64 s[62:63], s[62:63], vcc
    v_cmp_nle_f32 vcc, 0x35800000, v6
    s_nop 0
    s_or_b64 s[62:63], s[62:63], vcc
    s_cmp_lg_u64 s[62:63], 0
    s_cbranch_scc1 {L}_slow
    """)
    a.label(f"{L}_chkd")
    for m in range(8): dma_wo(SWB,0,m,f"b{m}")
    a.e("s_waitcnt vmcnt(8)")
    stampT(a,4)
    signal("s3","o")
    stamp(a,7)
    a.e(f"s_cmp_ge_u32 s5, 28\ns_cbranch_scc1 {L}_end")
    of=16; wfo=[[80,84],[88,92]]; acc3=[96,112]; vA3=[14,15]
    a.e(f"""
    s_and_b32 s60, s9, 1
    s_lshr_b32 s61, s9, 1
    v_lshrrev_b32 v6, 4, v{vLane}
    v_and_b32 v7, 1, v6
    v_lshrrev_b32 v6, 1, v6
    v_bfe_u32 v5, v{vLane}, 2, 2
    v_lshl_add_u32 v6, v6, 2, v5
    v_lshlrev_b32 v6, 7, v6
    v_lshrrev_b32 v5, 1, v5
    v_lshl_add_u32 v6, v5, 6, v6
    v_lshl_add_u32 v6, v7, 5, v6
    v_and_b32 v7, 3, v{vLane}
    v_lshl_add_u32 v6, v7, 3, v6
    s_and_b32 s63, s61, 1
    s_mul_i32 s63, s63, 29696
    s_cmp_lt_u32 s61, 2
    s_cselect_b32 s62, {WOA}, 0
    s_add_u32 s62, s62, s63
    v_add_u32 v{vA3[0]}, s62, v6
    v_xor_b32 v{vA3[1]}, 64, v{vA3[0]}
    s_lshl_b32 s62, s4, 1
    s_add_u32 s62, s62, s60
    s_lshl_b32 s62, s62, 11
    s_lshl_b32 s63, s61, 20
    s_add_u32 s62, s62, s63
    s_add_u32 s62, s62, {WS_O}
    """)
    for r in range(32): a.e(f"v_mov_b32 v{acc3[0]+r}, 0")
    a.e(f"""
    s_lshl_b32 s3, s4, 1
    s_add_u32 s3, s3, s60
    s_lshl_b32 s59, s3, 12
    s_lshl_b32 s3, s61, 10
    s_add_u32 s59, s59, s3
    s_add_u32 s59, s59, {WS_FO}
    s_waitcnt vmcnt(0)
    s_barrier
    """)
    if os.environ.get("PIPE","0")=="1": poll_pipe("s59","0xff","o")
    else: poll_check("s59","0xff","o",False,sleep=int(os.environ.get("SLP","2")))
    stamp(a,8)
    for i in range(8):
        a.e(f"s_add_u32 s63, s62, {i*131072}")
        for c in range(2):
            a.e(f"buffer_load_dwordx4 {R4(of+8*i+4*c)}, v{vL}, s[{SWS}:{SWS+3}], s63 offen offset:{c*1024} sc1")
    stampT(a,5)
    def wr(step,buf):
        i,c=step//2,step%2
        o=(i*28+16*c)*128
        for nt in range(2):
            r=wfo[buf][nt]
            a.e(f"ds_read_b64_tr_b16 v[{r}:{r+1}], v{vA3[nt]} offset:{o}")
            a.e(f"ds_read_b64_tr_b16 v[{r+2}:{r+3}], v{vA3[nt]} offset:{o+1024}")
    wr(0,0)
    for step in range(16):
        buf=step&1
        if step<15:
            wr(step+1,buf^1); a.e(f"s_waitcnt vmcnt({15-step}) lgkmcnt(4)")
        else: a.e("s_waitcnt vmcnt(0) lgkmcnt(0)")
        i,c=step//2,step%2
        for nt in range(2):
            cc=R16(acc3[nt])
            a.e(f"{MF} {cc}, {R4(wfo[buf][nt])}, {R4(of+8*i+4*c)}, {cc}")
    a.e("s_nop 15\ns_barrier")
    stamp(a,9)
    a.e(f"s_lshl_b32 s62, s9, 13\nv_add_u32 v6, s62, v{vL}")
    for nt in range(2):
        for g in range(4):
            a.e(f"ds_write_b128 v6, {R4(acc3[nt]+4*g)} offset:{nt*4096+g*1024}")
    a.e(f"""
    s_waitcnt lgkmcnt(0)
    s_barrier
    s_lshr_b32 s61, s9, 1
    s_and_b32 s61, s61, 1
    s_lshr_b32 s57, s9, 2
    s_lshl_b32 s62, s60, 13
    s_lshl_b32 s63, s61, 12
    s_add_u32 s62, s62, s63
    s_lshl_b32 s63, s57, 11
    s_add_u32 s62, s62, s63
    v_add_u32 v6, s62, v{vL}
    """)
    for kq in range(4):
        if kq==2: a.e(f"v_add_u32 v6, {4*8192}, v6")
        for g in range(2):
            a.e(f"ds_read_b128 {R4(16+kq*8+g*4)}, v6 offset:{(kq&1)*16384+g*1024}")
    a.e("s_waitcnt lgkmcnt(0)")
    for k in range(8):
        a.e(f"v_add_f32 v{16+k}, v{16+k}, v{24+k}")
        a.e(f"v_add_f32 v{32+k}, v{32+k}, v{40+k}")
    for k in range(8): a.e(f"v_add_f32 v{16+k}, v{16+k}, v{32+k}")
    a.e(f"""
    v_cvt_pk_bf16_f32 v48, v16, v17
    v_cvt_pk_bf16_f32 v49, v18, v19
    v_cvt_pk_bf16_f32 v50, v20, v21
    v_cvt_pk_bf16_f32 v51, v22, v23
    v_and_b32 v6, 31, v{vLane}
    v_lshrrev_b32 v7, 5, v{vLane}
    v_permlane32_swap_b32 v48, v50
    v_permlane32_swap_b32 v49, v51
    v_mul_u32_u24 v6, 896, v6
    v_lshl_add_u32 v6, v7, 4, v6
    s_lshl_b32 s62, s4, 1
    s_add_u32 s62, s62, s60
    s_mul_i32 s62, s62, {32*896}
    s_add_u32 s62, s62, s56
    s_lshl_b32 s63, s61, 6
    s_add_u32 s62, s62, s63
    s_lshl_b32 s63, s57, 5
    s_add_u32 s62, s62, s63
    buffer_store_dwordx4 v[48:51], v6, s[{SO}:{SO+3}], s62 offen
    """)
    a.label(f"{L}_end")
    if DBG:
        a.e("s_waitcnt vmcnt(0)"); stamp(a,10); stamp_rt(a,11); stamp_out(a,13,SWS,60,"f"); stamp_dbg(a,12,SDB,60)
    a.label(f"{L}_done")
    a.e("s_endpgm")
    a.label(f"{L}_slow")
    m=vM[0]; Os=O[0]; sc=S[0]; q0=Q[0][0]; q1=Q[0][1]
    a.e(f"""
    s_mov_b64 exec, s[68:69]
    v_mov_b32 v{q1+2}, 0
    s_mov_b64 exec, -1
    v_mov_b32 v{m}, 0xff800000
    s_mov_b32 s60, 0
    """)
    for r in range(16): a.e(f"v_mov_b32 v{Os+r}, 0")
    a.label(f"{L}_sin")
    sl1=len(a.lines)
    a.e(f"""
    buffer_load_dwordx4 {R4(kA)}, v{vL}, s[{SKV}:{SKV+3}], s60 offen sc1
    buffer_load_dwordx4 {R4(kB)}, v{vL}, s[{SKV}:{SKV+3}], s60 offen offset:1024 sc1
    buffer_load_dwordx4 {R4(vA)}, v{vL}, s[{SKV}:{SKV+3}], s60 offen offset:2048 sc1
    buffer_load_dwordx4 {R4(vB)}, v{vL}, s[{SKV}:{SKV+3}], s60 offen offset:3072 sc1
    s_waitcnt vmcnt(0)
    {MF} {R16(sc)}, {R4(kA)}, {R4(q0)}, 0
    {MF} {R16(sc)}, {R4(kB)}, {R4(q1)}, {R16(sc)}
    s_nop 15
    v_max3_f32 v5, v{sc}, v{sc+1}, v{sc+2}
    """)
    for k in range(3,15,2): a.e(f"v_max3_f32 v5, v5, v{sc+k}, v{sc+k+1}")
    a.e(f"""
    v_max_f32 v5, v5, v{sc+15}
    s_nop 0
    v_mov_b32 v6, v5
    s_nop 1
    v_permlane32_swap_b32 v5, v6
    s_nop 1
    v_max3_f32 v5, v5, v6, v{m}
    v_sub_f32 v6, v{m}, v5
    v_exp_f32 v6, v6
    v_mov_b32 v{m}, v5
    """)
    for r in range(16): a.e(f"v_sub_f32 v{sc+r}, v{sc+r}, v5")
    for r in range(16): a.e(f"v_exp_f32 v{sc+r}, v{sc+r}")
    for r in range(16): a.e(f"v_mul_f32 v{Os+r}, v{Os+r}, v6")
    for k in range(8): a.e(f"v_cvt_pk_bf16_f32 v{P+k}, v{sc+2*k}, v{sc+2*k+1}")
    a.e(f"""
    s_nop 1
    {MF} {R16(Os)}, {R4(vA)}, {R4(P)}, {R16(Os)}
    {MF} {R16(Os)}, {R4(vB)}, {R4(P+4)}, {R16(Os)}
    s_nop 15
    s_add_u32 s60, s60, 4096
    s_cmp_lt_u32 s60, 0x40000
    s_cbranch_scc1 {L}_sin
    """)
    sl2=len(a.lines)
    a.e(f"s_mov_b32 s70, 1\ns_branch {L}_final")
    a.loops=[(sl1,sl2)]
    return dict(vgpr=144,sgpr=(100 if DBG else 72),lds=LDS_TOTAL,grid=256,block=512)

HDR=open("cdna_kernels/"+NAME+".s.ref").read().split("; Override")[0]
def build(path):
    name=NAME+"_kernel"
    a=Asm(); info=fused(a)
    errs=check(a.lines,name)
    for (s,e) in a.loops: errs+=check(a.lines[s:e]+a.lines[s:e],name+"-loop")
    t=HDR+f"; @launch grid=({info['grid']},1,1) block=({info['block']},1,1) lds={info['lds']}\n"
    t+='.amdgcn_target "amdgcn-amd-amdhsa--gfx950"\n.text\n'
    t+=f".globl {name}\n.p2align 8\n.type {name},@function\n{name}:\n"+a.text()
    t+=f""".section .rodata,"a"
.p2align 6
.amdhsa_kernel {name}
  .amdhsa_next_free_vgpr {info['vgpr']}
  .amdhsa_next_free_sgpr {info['sgpr']}
  .amdhsa_accum_offset {info['vgpr']}
  .amdhsa_group_segment_fixed_size 0
  .amdhsa_kernarg_size 80
  .amdhsa_user_sgpr_count 2
  .amdhsa_user_sgpr_kernarg_segment_ptr 1
  .amdhsa_system_sgpr_workgroup_id_x 1
.end_amdhsa_kernel
"""
    open(path,"w").write(t)
    open("launch.txt","w").write(f"{name} {info['grid']} {info['block']} {info['lds']}\n")
    for e in errs: print("HAZARD",e)
    print("hazard errors:",len(errs))
if __name__=="__main__":
    if len(sys.argv)>2 and sys.argv[2]=="dbg": DBG=True
    build(sys.argv[1] if len(sys.argv)>1 else "cdna_kernels/"+NAME+".s")
```

```python
import sys, math, struct
from asm import Asm, check
NAME="gated_mix__mha_block__softmax_full_mha__prompt"
WS_KV=0; WS_O=8<<20; WS_FKV=16<<20; WS_FO=(16<<20)+65536; WS_DBG=17<<20; WS_END=(18<<20)
XB=2048*448*2; WB=448*1344*2; WOB=448*448*2
QSCALE=math.log2(math.e)/math.sqrt(28.0)
def f2u(f): return struct.unpack("<I",struct.pack("<f",f))[0]
import os
DBG=False
DMASC=os.environ.get('DMASC','sc1')
STSC=os.environ.get('STSC','sc1')
NST=12
P1DBG=os.environ.get('P1DBG','')
def stamp1(a,i):
    if DBG and P1DBG: a.e(f"s_memtime s[{72+2*i}:{73+2*i}]\ns_waitcnt lgkmcnt(0)")
RTM=os.environ.get('RTM','')
STG=os.environ.get('STG','')
FST=os.environ.get('FST','')
def stampF(a,i):
    if DBG and FST: a.e(f"s_memtime s[{72+2*i}:{73+2*i}]\ns_waitcnt lgkmcnt(0)")
def stampS(a,i):
    if DBG and STG: a.e(f"s_memtime s[{72+2*i}:{73+2*i}]\ns_waitcnt lgkmcnt(0)")
TDBG=os.environ.get('TDBG','')
def stampT(a,i):
    if DBG and TDBG: a.e(f"s_memtime s[{72+2*i}:{73+2*i}]\ns_waitcnt lgkmcnt(0)")
def stamp(a,i):
    if FST and i in (2,3,4,5,6,7,8,9):
        if i==5: stampF(a,2)
        return
    if TDBG and i in (2,3,4,5): return
    if STG and i in (2,3,4,5,6,7,8,9):
        if i==5: stampS(a,2)
        if i==6: stampS(a,12)
        return
    if RTM and i in (3,9): return
    if RTM and i==5 and DBG: a.e("s_memrealtime s[78:79]\ns_waitcnt lgkmcnt(0)")
    if RTM and i==6 and DBG: a.e("s_memrealtime s[90:91]\ns_waitcnt lgkmcnt(0)")
    if P1DBG and i in (3,6,7,8,9): return
    if DBG: a.e(f"s_memtime s[{72+2*i}:{73+2*i}]\ns_waitcnt lgkmcnt(0)")
def stamp_rt(a,i):
    if DBG: a.e(f"s_memrealtime s[{72+2*i}:{73+2*i}]\ns_waitcnt lgkmcnt(0)")
def stamp_out(a,n,srdws,t0,tag):
    if not DBG: return
    a.e("s_cmp_lg_u32 s9, 0")
    a.e(f"s_cbranch_scc1 STMP{tag}_skip")
    a.e(f"s_lshl_b32 s70, s2, 6\ns_add_u32 s70, s70, {WS_DBG}")
    a.e(f"s_mov_b64 exec, 1\nv_mov_b32 v{t0+1}, 0")
    for i in range(n):
        a.e(f"v_mov_b32 v{t0}, s{72+2*i}")
        a.e(f"buffer_store_dword v{t0}, v{t0+1}, s[{srdws}:{srdws+3}], s70 offen offset:{4*i}")
        a.e("s_nop 1")
    a.e("s_mov_b64 exec, -1")
    a.label(f"STMP{tag}_skip")
def stamp_dbg(a,n,sdb,t0):
    if not (DBG and os.environ.get('TODBG')): return
    wg=int(os.environ['TODBG'])
    a.e(f"s_cmp_lg_u32 s9, 0\ns_cbranch_scc1 SDBG_skip\ns_cmp_lg_u32 s2, {wg}\ns_cbranch_scc1 SDBG_skip")
    a.e(f"s_mov_b64 exec, 1\nv_mov_b32 v{t0+1}, 0")
    for i in range(2,n):
        if i==11: a.e(f"s_sub_u32 s70, s{72+2*i}, s74")
        else: a.e(f"s_sub_u32 s70, s{72+2*i}, s72")
        a.e(f"v_mov_b32 v{t0}, s70")
        a.e(f"buffer_store_dword v{t0}, v{t0+1}, s[{sdb}:{sdb+3}], 0 offen offset:{4*(i-1)}")
        a.e("s_nop 1")
    a.e("s_mov_b64 exec, -1")
    a.label("SDBG_skip")
def srd(a, d, lo, hi, size):
    a.e(f"s_mov_b32 s{d}, {lo}\ns_mov_b32 s{d+1}, {hi}\ns_mov_b32 s{d+2}, {size}\ns_mov_b32 s{d+3}, 0x20000")
R4=lambda r: f"v[{r}:{r+3}]"
R16=lambda r: f"v[{r}:{r+15}]"
MF="v_mfma_f32_32x32x16_bf16"

def fused(a):
    L="F"
    WLDS=0; XLDS=49152; GLDS=XLDS+8*12288; LDS_TOTAL=163840
    QX=65536; WOA=98304; GX=157696; FLAG=158720
    SX=40; SW=44; SG=48; SWS=52; SKV=36; SDB=12
    vLane=1; vL=2; vD=3; vGate=4
    vX=[10,11]; vXw=[22,23]; xs=128; vW=12; vG=13; vXr=[14,15,16,17]; vWr=[18,19]; vGr=20; vOnes=21
    xf=24; wf=[[40,44,48],[52,56,60]]; acc=[64,80,96]
    a.e(f"s_cmp_ge_u32 s2, 256\ns_cbranch_scc1 {L}_done")
    stamp(a,0); stamp_rt(a,1)
    if os.environ.get("SHUF"):
        a.e("s_and_b32 s3, s2, 7\ns_lshl_b32 s3, s3, 5\ns_lshr_b32 s2, s2, 3\ns_or_b32 s2, s2, s3")
    a.e("""
    s_load_dwordx16 s[16:31], s[0:1], 0
    s_load_dwordx4 s[32:35], s[0:1], 64
    s_lshr_b32 s4, s2, 3
    s_bfe_u32 s7, s2, 0x10002
    s_bfe_u32 s3, s2, 0x10001
    s_lshl_b32 s3, s3, 3
    s_and_b32 s8, s4, 7
    s_add_u32 s8, s8, s3
    s_and_b32 s3, s2, 1
    s_lshl_b32 s3, s3, 2
    s_lshr_b32 s6, s4, 3
    s_add_u32 s6, s6, s3
    s_lshl_b32 s5, s7, 4
    s_add_u32 s5, s5, s8
    """)
    if os.environ.get("MAP")=="old":
        a.e("""
        s_and_b32 s3, s2, 7
        s_lshr_b32 s4, s2, 3
        s_and_b32 s5, s4, 3
        s_lshl_b32 s3, s3, 2
        s_add_u32 s5, s5, s3
        s_lshr_b32 s6, s4, 2
        s_lshr_b32 s7, s5, 4
        s_and_b32 s8, s5, 15
        """)
    cpf=os.environ.get("CPF","")
    CPF="s_nop 0"
    if cpf=="all":
        CPF=f"""s_getpc_b64 s[70:71]
    v_mul_u32_u24 v124, 24, v5
    v_add_u32 v124, v124, v{vLane}
    v_lshlrev_b32 v124, 7, v124
    v_mov_b32 v125, s71
    v_add_co_u32 v124, vcc, s70, v124
    v_addc_co_u32 v125, vcc, 0, v125, vcc
    s_mov_b32 exec_lo, 0xffffff
    s_mov_b32 exec_hi, 0
    global_load_dword v126, v[124:125], off
    s_mov_b64 exec, -1"""
    if cpf=="xcd":
        CPF=f"""s_getpc_b64 s[70:71]
    s_mul_i32 s3, s4, 6
    v_add_u32 v124, s3, v{vLane}
    v_lshlrev_b32 v124, 7, v124
    v_mov_b32 v125, s71
    v_add_co_u32 v124, vcc, s70, v124
    v_addc_co_u32 v125, vcc, 0, v125, vcc
    s_mov_b32 exec_lo, 0x3f
    s_mov_b32 exec_hi, 0
    global_load_dword v126, v[124:125], off
    s_mov_b64 exec, -1"""
    a.e(f"""
    v_and_b32 v{vLane}, 63, v0
    v_lshrrev_b32 v5, 6, v0
    v_lshrrev_b32 v6, 3, v{vLane}
    v_readfirstlane_b32 s9, v5
    {CPF}
    v_and_b32 v7, 7, v{vLane}
    v_lshrrev_b32 v5, 4, v{vLane}
    v_xor_b32 v7, v7, v5
    v_mul_u32_u24 v6, 896, v6
    v_lshl_add_u32 v{vX[0]}, v7, 4, v6
    v_xor_b32 v{vX[1]}, 64, v{vX[0]}
    v_mul_u32_u24 v6, 43, v{vLane}
    v_lshrrev_b32 v6, 9, v6
    v_mul_u32_u24 v7, 12, v6
    v_sub_u32 v7, v{vLane}, v7
    v_lshrrev_b32 v5, 2, v7
    v_and_b32 v7, 3, v7
    v_mul_u32_u24 v6, 2688, v6
    v_mul_u32_u24 v5, 896, v5
    v_lshlrev_b32 v7, 4, v7
    v_add3_u32 v{vW}, v6, v7, v5
    v_lshlrev_b32 v{vL}, 4, v{vLane}
    v_lshlrev_b32 v{vD}, 4, v0
    v_and_b32 v6, 31, v{vLane}
    v_lshrrev_b32 v7, 5, v{vLane}
    v_bfe_u32 v5, v{vLane}, 1, 3
    v_xor_b32 v5, v5, v7
    v_lshlrev_b32 v5, 4, v5
    v_lshl_add_u32 v5, v6, 7, v5
    s_mul_i32 s57, s9, 12288
    s_add_u32 s57, s57, {XLDS}
    v_add_u32 v{vXr[0]}, s57, v5
    v_xor_b32 v{vXr[1]}, 32, v{vXr[0]}
    v_xor_b32 v{vXr[2]}, 64, v{vXr[0]}
    v_xor_b32 v{vXr[3]}, 96, v{vXr[0]}
    v_lshlrev_b32 v7, 4, v7
    v_add_u32 v{vGr}, {GLDS}, v7
    v_cmp_eq_u32 vcc, 28, v6
    v_mov_b32 v6, 0x3f803f80
    v_mov_b32 v7, 0
    v_cndmask_b32 v{vOnes}, v7, v6, vcc
    v_lshrrev_b32 v5, 4, v{vLane}
    v_and_b32 v6, 1, v5
    v_lshrrev_b32 v5, 1, v5
    v_bfe_u32 v7, v{vLane}, 2, 2
    v_lshl_add_u32 v5, v5, 3, v7
    v_mul_u32_u24 v5, 192, v5
    v_lshl_add_u32 v5, v6, 5, v5
    v_and_b32 v6, 3, v{vLane}
    v_lshl_add_u32 v{vWr[0]}, v6, 3, v5
    """)
    assert XLDS%128==0
    a.e("""
    s_lshl_b32 s10, s6, 3
    s_add_u32 s10, s10, s9
    s_mul_i32 s56, s10, 28672
    s_mul_i32 s58, s9, 10752
    s_mul_i32 s59, s8, 56
    s_add_u32 s58, s58, s59
    s_mul_i32 s59, s9, 768
    s_mov_b32 s60, 0x10000000
    s_mov_b32 s61, 0x10000000
    s_waitcnt lgkmcnt(0)
    s_cmp_eq_u32 s7, 0
    s_cselect_b32 s38, s18, s24
    s_cselect_b32 s39, s19, s25
    """)
    stamp(a,2)
    srd(a,SX,"s16","s17",XB); srd(a,SW,"s38","s39",WB); srd(a,SG,"s28","s29",896)
    a.e("""
    s_mov_b32 s0, -1
    s_mov_b32 s1, 0xffff
    s_mov_b32 s66, -1
    s_mov_b32 s67, 0xffffff
    """)
    ROT2=os.environ.get("ROT","2")=="2"
    ROT=os.environ.get("ROT","2")=="1"
    if ROT2:
        a.e("""
        s_and_b32 s62, s8, 7
        s_and_b32 s63, s6, 3
        s_lshl_b32 s63, s63, 1
        s_add_u32 s62, s62, s63
        s_cmp_ge_u32 s62, 12
        s_cselect_b32 s63, 12, 0
        s_sub_u32 s62, s62, s63
        s_cmp_ge_u32 s62, 6
        s_cselect_b32 s63, 6, 0
        s_sub_u32 s62, s62, s63
        s_add_u32 s62, s62, 1
        s_lshl_b32 s62, s62, 7
        s_mov_b32 s4, s62
        """)
    elif ROT:
        a.e("""
        s_and_b32 s62, s8, 7
        s_and_b32 s63, s6, 3
        s_lshl_b32 s63, s63, 1
        s_add_u32 s62, s62, s63
        s_cmp_ge_u32 s62, 7
        s_cselect_b32 s63, 7, 0
        s_sub_u32 s62, s62, s63
        s_lshl_b32 s62, s62, 7
        s_mov_b32 s4, s62
        """)
    else:
        a.e("s_mov_b32 s62, 0\ns_mov_b32 s4, 0")
    def dmaX1(kc,j):
        slot=kc%3
        if j==0 and ROT2 and kc==0:
            a.e("s_mov_b32 s64, s56\ns_mov_b32 s63, s58")
        elif j==0 and ROT2:
            a.e("""
            s_add_u32 s64, s56, s62
            s_mul_i32 s63, s62, 1344
            s_add_u32 s63, s63, s58
            s_add_u32 s62, s62, 128
            s_cmp_eq_u32 s62, 896
            s_cselect_b32 s62, 128, s62
            """)
        elif j==0:
            a.e("""
            s_add_u32 s64, s56, s62
            s_mul_i32 s63, s62, 1344
            s_add_u32 s63, s63, s58
            s_add_u32 s62, s62, 128
            s_cmp_eq_u32 s62, 896
            s_cselect_b32 s62, 0, s62
            """)
        a.e(f"""
        s_add_u32 m0, s57, {slot*4096+j*1024}
        s_add_u32 s65, s64, {8*j*896}
        buffer_load_dwordx4 v{vX[j&1]}, s[{SX}:{SX+3}], s65 offen lds
        """)
    def dmaW1(kc,i):
        a.e(f"""
        s_mov_b64 exec, s[0:1]
        s_add_u32 m0, s59, {WLDS+(kc%4)*12288+i*6144}
        s_add_u32 s65, s63, {i*32*2688}
        buffer_load_dwordx4 v{vW}, s[{SW}:{SW+3}], s65 offen lds
        s_mov_b64 exec, -1
        """)
    vmq=[]
    def chunk_ops(kc):
        ops=[]
        for j in range(4): ops.append(lambda j=j: (dmaX1(kc,j), vmq.append(("c",kc))))
        for i in range(2): ops.append(lambda i=i: (dmaW1(kc,i), vmq.append(("c",kc))))
        return ops
    DEPTH=int(os.environ.get("P1DEPTH","2"))
    TD=int(os.environ.get("TOUCHD","0"))
    ST=52
    if TD:
        a.e(f"""
        s_lshr_b32 s3, s2, 3
        s_and_b32 s62, s2, 1
        s_lshl_b32 s62, s62, 10
        s_lshl_b32 s63, s3, 5
        s_add_u32 s62, s62, s63
        s_lshl_b32 s63, s9, 3
        s_add_u32 s62, s62, s63
        v_add_u32 v122, s62, v{vLane}
        v_mul_u32_u24 v122, 896, v122
        s_mul_i32 s62, s3, 24
        s_sub_u32 s63, s9, 4
        s_mul_i32 s63, s63, 6
        s_add_u32 s62, s62, s63
        v_add_u32 v123, s62, v{vLane}
        v_lshrrev_b32 v124, 2, v123
        v_and_b32 v123, 3, v123
        v_mul_u32_u24 v124, 896, v124
        v_lshl_add_u32 v123, v123, 7, v124
        s_bfe_u32 s63, s2, 0x10001
        s_mul_i32 s63, s63, 384
        v_add_u32 v123, s63, v123
        s_cmp_lt_u32 s9, 4
        s_cselect_b64 vcc, -1, 0
        v_cndmask_b32 v122, v123, v122, vcc
        s_cselect_b32 s{ST}, s{SX}, s{SW}
        s_cselect_b32 s{ST+1}, s{SX+1}, s{SW+1}
        s_cselect_b32 s{ST+2}, s{SX+2}, s{SW+2}
        s_mov_b32 s{ST+3}, 0x20000
        s_mov_b32 s64, 172032
        s_cselect_b32 s62, 128, s64
        s_mov_b32 s64, 0xff
        s_cselect_b32 s63, s64, 63
        """)
    def touch(c):
        a.e(f"""
        s_mul_i32 s64, s62, {c}
        s_mov_b32 exec_lo, s63
        s_mov_b32 exec_hi, 0
        buffer_load_dword v123, v122, s[{ST}:{ST+3}], s64 offen
        s_mov_b64 exec, -1
        """)
        vmq.append(("t",c))
    def vmwait(tag):
        idx=max(i for i,t in enumerate(vmq) if t==tag)
        a.e(f"s_waitcnt vmcnt({len(vmq)-idx-1})")
    a.e(f"""
    s_mov_b64 exec, s[66:67]
    s_mov_b32 m0, {GLDS}
    s_nop 0
    buffer_load_dwordx4 v{vL}, s[{SG}:{SG+3}], 0 offen lds
    s_mov_b64 exec, -1
    """)
    for kc in range(2):
        for op in chunk_ops(kc): op()
        if kc<1: a.e("s_barrier")
    stamp1(a,3)
    srd(a,SDB,"s32","s33",256)
    a.e(f"""
    s_or_b32 s3, s2, s9
    s_cmp_lg_u32 s3, 0
    s_cbranch_scc1 {L}_notag
    s_memrealtime s[70:71]
    s_waitcnt lgkmcnt(0)
    s_or_b32 s70, s70, 1
    v_mov_b32 v5, s70
    v_mov_b32 v6, 0
    s_mov_b64 exec, 1
    buffer_store_dword v5, v6, s[{SDB}:{SDB+3}], 0 offen sc1
    s_mov_b64 exec, -1
    """)
    a.label(f"{L}_notag")
    a.e("""
    s_lshl_b32 s3, s5, 18
    s_add_u32 s36, s34, s3
    s_addc_u32 s37, s35, 0
    s_mov_b32 s38, 0x40000
    s_mov_b32 s39, 0x20000
    """)
    for r in range(48): a.e(f"v_mov_b32 v{acc[0]+r}, 0")
    def wreads(ks,buf):
        o=((ks//4)%4)*12288+(ks%4)*3072
        for t in range(3):
            r=wf[buf][t]
            a.e(f"ds_read_b64_tr_b16 v[{r}:{r+1}], v{vWr[0]} offset:{o+t*64}")
            a.e(f"ds_read_b64_tr_b16 v[{r+2}:{r+3}], v{vWr[0]} offset:{o+t*64+768}")
        r=wf[buf][0]
        a.e(f"s_mov_b64 exec, s[60:61]\nds_read_b128 v[{r}:{r+3}], v22 offset:{(ks%4)*32}\ns_mov_b64 exec, -1")
    xfb=[xf,128]
    lq=[]
    def lwait(tag):
        if tag in lq:
            idx=max(i for i,t in enumerate(lq) if t==tag)
            a.e(f"s_waitcnt lgkmcnt({min(15,len(lq)-idx-1)})"); del lq[:idx+1]
    def wreads2(ks,buf):
        wreads(ks,buf); lq.extend([("w",ks)]*7)
    pend=[]
    def sync(k):
        vmwait(("c",k))
        if k in (0,1,3,6): stamp1(a,{0:6,1:7,3:8,6:9}[k])
        if k==6: a.e(f"v_mov_b32 v120, 0\nbuffer_load_dword v121, v120, s[{SDB}:{SDB+3}], 0 offen sc1")
        a.e("s_barrier")
        for kk in range(4):
            a.e(f"ds_read_b128 {R4(xfb[k%2]+4*kk)}, v{vXr[kk]} offset:{(k%3)*4096}"); lq.append(("x",k))
        if k+2<7: pend.extend(chunk_ops(k+2))
    gb_n=[0]
    def gate_base():
        if ROT2 and gb_n[0]==0:
            a.e(f"v_mov_b32 v22, v{vGr}")
        elif ROT2:
            a.e(f"v_add_u32 v22, s4, v{vGr}\ns_add_u32 s4, s4, 128\ns_cmp_eq_u32 s4, 896\ns_cselect_b32 s4, 128, s4")
        else:
            a.e(f"v_add_u32 v22, s4, v{vGr}\ns_add_u32 s4, s4, 128\ns_cmp_eq_u32 s4, 896\ns_cselect_b32 s4, 0, s4")
        gb_n[0]+=1
    sync(0)
    gate_base()
    wreads2(0,0)
    for kc in range(7):
        for kk in range(4):
            ks=4*kc+kk; buf=ks&1
            lwait(("w",ks)); lwait(("x",kc))
            if kk==2 and kc<6: sync(kc+1)
            if ks+1<28:
                if kk==3: gate_base()
                wreads2(ks+1,buf^1)
            x=R4(xfb[kc%2]+4*kk)
            for t in range(3):
                w=R4(wf[buf][t]); c=R16(acc[t])
                if t<2: a.e(f"{MF} {c}, {w}, {x}, {c}")
                else:   a.e(f"{MF} {c}, {x}, {w}, {c}")
            for _ in range(2):
                if pend: pend.pop(0)()
    assert not pend
    srd(a,SWS,"s34","s35",WS_END)
    stamp(a,4)
    a.e(f"""
    s_lshl_b32 s11, s10, 12
    s_mov_b32 s67, {hex(f2u(QSCALE))}
    s_mov_b32 s68, 0
    s_mov_b32 s69, -1
    s_mov_b32 s70, 0xf0000000
    s_mov_b32 s71, 0xf0000000
    s_nop 7
    """)
    for t in (1,2):
        for i in range(8): a.e(f"v_cvt_pk_bf16_f32 v{acc[t]+i}, v{acc[t]+2*i}, v{acc[t]+2*i+1}")
    a.e(f"""
    s_mov_b64 exec, s[68:69]
    v_mov_b32 v{acc[1]+6}, 0x3f80
    v_mov_b32 v{acc[1]+7}, 0
    s_mov_b64 exec, s[70:71]
    """)
    for i in range(8): a.e(f"v_mov_b32 v{acc[2]+i}, v{vOnes}")
    a.e("s_mov_b64 exec, -1")
    a.e(f"s_lshl_b32 s3, s9, 12\nv_add_u32 v5, s3, v{vL}")
    for t in (1,2):
        for c in range(2):
            r=acc[t]+4*c
            a.e(f"buffer_store_dwordx4 {R4(r)}, v{vL}, s[{SKV}:{SKV+3}], s11 offen offset:{(t-1)*2048+c*1024} {os.environ.get('KVST','sc1')}")
    a.e(f"""
    v_mul_f32 v6, {hex(f2u(-math.log2(math.e)))}, v{acc[0]+12}
    v_exp_f32 v6, v6
    s_nop 0
    v_add_f32 v6, 1.0, v6
    v_rcp_f32 v6, v6
    s_nop 0
    v_sub_f32 v7, 1.0, v6
    s_cmp_eq_u32 s7, 0
    s_cselect_b64 vcc, -1, 0
    v_cndmask_b32 v6, v7, v6, vcc
    """)
    for r in range(16): a.e(f"v_mul_f32 v{acc[0]+r}, s67, v{acc[0]+r}")
    for i in range(8): a.e(f"v_cvt_pk_bf16_f32 v{acc[0]+i}, v{acc[0]+2*i}, v{acc[0]+2*i+1}")
    a.e(f"""
    s_lshl_b32 s3, s9, 11
    s_add_u32 s3, s3, {QX}
    v_add_u32 v7, s3, v{vL}
    s_lshl_b32 s3, s9, 7
    s_add_u32 s3, s3, {GX-128}
    v_lshl_add_u32 v8, v{vLane}, 2, s3
    s_mov_b64 exec, s[68:69]
    v_mov_b32 v{acc[0]+6}, 0
    v_mov_b32 v{acc[0]+7}, 0
    s_mov_b64 exec, -1
    s_barrier
    """)
    for t in (1,2):
        for c in range(2):
            a.e(f"ds_write_b128 v5, {R4(acc[t]+4*c)} offset:{(t-1)*2048+c*1024}")
    for c in range(2): a.e(f"ds_write_b128 v7, {R4(acc[0]+4*c)} offset:{c*1024}")
    a.e(f"""
    s_mov_b64 exec, s[68:69]
    ds_write_b32 v8, v6
    s_mov_b64 exec, -1
    v_mov_b32 v123, {FLAG}
    v_mov_b32 v6, 0
    ds_write_b32 v123, v6
    """)
    Q=[[16,20],[24,28]]; S=[32,48]; P=64; kA=72; kB=76; vA=80; vB=84; O=[88,104]; vM=[8,14]; vR0=9; vR2=13
    a.e(f"""
    s_and_b32 s62, s9, 3
    s_lshr_b32 s63, s9, 2
    s_lshl_b32 s64, s62, 1
    s_add_u32 s64, s64, s63
    s_lshl_b32 s3, s63, 14
    v_add_u32 v{vR0}, s3, v{vL}
    v_add_u32 v{vR2}, 65536, v{vR0}
    s_lshl_b32 s57, s9, 10
    v_lshlrev_b32 v10, 7, v{vLane}
    s_lshl_b32 s61, s5, 10
    s_add_u32 s61, s61, {WS_FKV}
    s_lshl_b32 s58, 1, s6
    s_xor_b32 s58, s58, 0xff
    s_mov_b32 s59, 0
    s_waitcnt lgkmcnt(0)
    s_barrier
    """)
    stamp(a,5)
    def gettag():
        a.e("s_mov_b32 s65, 0")
        a.label(f"{L}_tag")
        a.e(f"""
        v_readfirstlane_b32 s71, v121
        s_add_u32 s65, s65, 1
        s_nop 2
        s_cmp_lg_u32 s71, 0
        s_cbranch_scc1 {L}_tagok
        s_cmp_gt_u32 s65, 0x200000
        s_cbranch_scc1 {L}_tagok
        s_sleep 2
        buffer_load_dword v121, v120, s[{SDB}:{SDB+3}], 0 offen sc1
        s_waitcnt vmcnt(0)
        s_branch {L}_tag
        """)
        a.label(f"{L}_tagok")
    def poll_check(soff,mask_lo,tag,first_issued,vaddr=10,sleep=2):
        if mask_lo is not None: a.e(f"s_mov_b32 exec_lo, {mask_lo}\ns_mov_b32 exec_hi, 0")
        a.e("s_mov_b32 s65, 0")
        if first_issued: a.e(f"s_branch {L}_pchk{tag}")
        a.label(f"{L}_poll{tag}")
        a.e(f"buffer_load_dword v12, v{vaddr}, s[{SWS}:{SWS+3}], {soff} offen sc1")
        a.label(f"{L}_pchk{tag}")
        a.e(f"""
        s_waitcnt vmcnt(0)
        v_cmp_ne_u32 vcc, s71, v12
        s_add_u32 s65, s65, 1
        s_nop 0
        s_cmp_eq_u64 vcc, 0
        s_cbranch_scc1 {L}_pdone{tag}
        s_cmp_gt_u32 s65, 0x200000
        s_cbranch_scc1 {L}_pdone{tag}
        s_mov_b64 exec, vcc
        s_sleep {sleep}
        s_branch {L}_poll{tag}
        """)
        a.label(f"{L}_pdone{tag}")
        a.e("s_mov_b64 exec, -1")
    def poll_pipe(soff,mask_lo,tag,regs=(12,11,8)):
        a.e(f"s_mov_b32 exec_lo, {mask_lo}\ns_mov_b32 exec_hi, 0")
        k=len(regs)
        for r in regs[:-1]:
            a.e(f"buffer_load_dword v{r}, v10, s[{SWS}:{SWS+3}], {soff} offen sc1\ns_sleep 2")
        a.e(f"buffer_load_dword v{regs[-1]}, v10, s[{SWS}:{SWS+3}], {soff} offen sc1")
        a.label(f"{L}_pp{tag}")
        for r in regs:
            a.e(f"""
            s_waitcnt vmcnt({k-1})
            v_cmp_ne_u32 vcc, s71, v{r}
            s_nop 1
            s_cmp_eq_u64 vcc, 0
            s_cbranch_scc1 {L}_ppd{tag}
            buffer_load_dword v{r}, v10, s[{SWS}:{SWS+3}], {soff} offen sc1
            """)
        a.e(f"s_branch {L}_pp{tag}")
        a.label(f"{L}_ppd{tag}")
        a.e("s_mov_b64 exec, -1")
    def signal(soff,tag):
        a.e(f"""
        v_mov_b32 v12, s71
        s_mov_b64 exec, 1
        buffer_store_dword v12, v120, s[{SWS}:{SWS+3}], {soff} offen sc1
        s_mov_b64 exec, -1
        """)
    a.e(f"""
    s_lshl_b32 s3, s64, 11
    s_add_u32 s3, s3, {QX}
    v_add_u32 v5, s3, v{vL}
    v_xor_b32 v6, 2048, v5
    ds_read_b128 {R4(Q[0][0])}, v5
    ds_read_b128 {R4(Q[0][1])}, v5 offset:1024
    ds_read_b128 {R4(Q[1][0])}, v6
    ds_read_b128 {R4(Q[1][1])}, v6 offset:1024
    ds_read_b128 {R4(kA)}, v{vL}
    ds_read_b128 {R4(kB)}, v{vL} offset:1024
    s_lshl_b32 s3, s64, 7
    s_add_u32 s3, s3, {GX}
    v_and_b32 v7, 31, v{vLane}
    v_lshl_add_u32 v7, v7, 2, s3
    ds_read_b32 v{vGate}, v7
    s_waitcnt lgkmcnt(0)
    """)
    assert QX%4096==0
    for X in range(2):
        a.e(f"{MF} {R16(S[X])}, {R4(kA)}, {R4(Q[X][0])}, 0")
        a.e(f"{MF} {R16(S[X])}, {R4(kB)}, {R4(Q[X][1])}, {R16(S[X])}")
    def toff(s,j):
        slot=s%3
        return (vR0,slot*32768+j*4096) if slot<2 else (vR2,j*4096)
    def rdk(r,s,j,o):
        b,off=toff(s,j)
        a.e(f"ds_read_b128 {R4(r)}, v{b} offset:{off+o}")
    rdk(kA,0,0,0); rdk(kB,0,0,1024); rdk(vA,0,0,2048)
    for r in range(32): a.e(f"v_mov_b32 v{O[0]+r}, 0")
    a.e("s_mov_b64 s[62:63], 0\ns_mov_b32 s60, 0x45000000")
    for X in range(2):
        s0=S[X]; m=vM[X]
        a.e(f"v_max3_f32 v{m}, v{s0}, v{s0+1}, v{s0+2}")
        for i in range(3,15,2): a.e(f"v_max3_f32 v{m}, v{m}, v{s0+i}, v{s0+i+1}")
        a.e(f"""
        v_max_f32 v{m}, v{m}, v{s0+15}
        v_mov_b32 v5, v{m}
        s_nop 0
        v_mov_b32 v6, v{m}
        s_nop 1
        v_permlane32_swap_b32 v5, v6
        s_nop 1
        v_max_f32 v{m}, v5, v6
        v_cmp_nge_f32 vcc, s60, abs(v{m})
        v_lshrrev_b32 v5, 16, v{m}
        v_xor_b32 v5, 0x8000, v5
        s_or_b64 s[62:63], s[62:63], vcc
        s_mov_b64 exec, s[68:69]
        v_mov_b32 v{Q[X][1]+2}, v5
        s_mov_b64 exec, -1
        """)
    a.e("s_waitcnt lgkmcnt(0)")
    a.e(f"{MF} {R16(S[0])}, {R4(kA)}, {R4(Q[0][0])}, 0")
    a.e(f"{MF} {R16(S[0])}, {R4(kB)}, {R4(Q[0][1])}, {R16(S[0])}")
    a.e("s_nop 7\ns_nop 3")
    def dma_stage_ops(s):
        slot=s%3
        def first():
            a.e(f"s_add_u32 s55x, s6, {s}")
        ops=[]
        for i in range(4):
            def op(i=i):
                if i==0: a.e(f"s_add_u32 s58x, s6, {s}\ns_and_b32 s58x, s58x, 7\ns_lshl_b32 s58x, s58x, 15".replace("s58x","s70"))
                a.e(f"""
                s_add_u32 m0, s57, {slot*32768+i*8192}
                s_add_u32 s65, s70, {i*8192}
                buffer_load_dwordx4 v{vD}, s[{SKV}:{SKV+3}], s65 offen {DMASC} lds
                """)
            ops.append(op)
        return ops
    def dma_stage(s):
        for op in dma_stage_ops(s): op()
    SWA=40; SWB=44; SO=48; vD3=15
    a.e(f"""
    s_mul_i32 s3, s5, 37
    s_lshr_b32 s4, s3, 8
    s_mul_i32 s3, s4, 7
    s_sub_u32 s3, s5, s3
    s_lshl_b32 s11, s6, 2
    s_add_u32 s4, s4, s11
    s_lshl_b32 s56, s3, 7
    v_lshrrev_b32 v6, 3, v{vLane}
    v_mul_u32_u24 v6, 896, v6
    v_and_b32 v7, 7, v{vLane}
    v_bfe_u32 v5, v{vLane}, 4, 1
    v_lshlrev_b32 v5, 2, v5
    v_xor_b32 v7, v7, v5
    v_lshl_add_u32 v{vD3}, v7, 4, v6
    """)
    srd(a,SWA,"s20","s21",WOB); srd(a,SWB,"s26","s27",WOB); srd(a,SO,"s30","s31",XB)
    wo_ctr=[0]
    def dma_wo(sw,ldsbase,m,tag):
        a.e(f"s_add_u32 s65, s9, {8*m}")
        if m==7: a.e("s_cmp_ge_u32 s65, 58\ns_cselect_b32 s66, 58, 0\ns_sub_u32 s65, s65, s66")
        a.e(f"""
        s_cmp_ge_u32 s65, 29
        s_cselect_b32 s66, 29, 0
        s_cselect_b32 s67, {224*896}, 0
        s_cselect_b32 s60, 29696, 0
        s_sub_u32 s65, s65, s66
        s_lshl_b32 s66, s65, 10
        s_add_u32 s66, s66, s60
        s_add_u32 m0, s66, {ldsbase}
        s_mul_i32 s65, s65, {8*896}
        s_add_u32 s65, s65, s67
        s_add_u32 s65, s65, s56
        buffer_load_dwordx4 v{vD3}, s[{sw}:{sw+3}], s65 offen lds
        """)
    def touch_wob():
        a.e(f"""
        s_mul_i32 s65, s9, {56*896}
        s_add_u32 s65, s65, s56
        v_mul_u32_u24 v5, 896, v{vLane}
        s_mov_b32 exec_lo, -1
        s_mov_b32 exec_hi, 0xffffff
        buffer_load_dword v11, v5, s[{SWB}:{SWB+3}], s65 offen
        s_mov_b64 exec, -1
        """)
    units=[(s,j,X) for s in range(8) for j in range(4) for X in (0,1)]
    KVP=[int(x) for x in os.environ.get('KVP','1,3').split(',')]
    SIGN=int(os.environ.get('SIGN','0'))
    lastpr=[-1]
    outst=[]; deferred=[]
    def rd(name,r,s,j,o):
        rdk(r,s,j,o); outst.append(name)
    def need(name):
        if name in outst:
            idx=outst.index(name); a.e(f"s_waitcnt lgkmcnt({len(outst)-idx-1})"); del outst[:idx+1]
    a.loopstart=len(a.lines)
    for n,(s,j,X) in enumerate(units):
        sc=S[n%2]; sn=S[(n+1)%2]
        nxt=units[n+1] if n+1<64 else None
        prv=units[n-1] if n>0 else None
        nt=(s,j+1) if j<3 else ((s+1,0) if s<7 else None)
        if n==SIGN:
            stampF(a,3); outst.clear() if (FST and DBG) else None
            a.e("s_waitcnt vmcnt(0)\ns_barrier")
            stampF(a,4)
            gettag()
            a.e(f"s_cmp_lg_u32 s9, 0\ns_cbranch_scc1 {L}_nsig")
            a.e("s_lshl_b32 s3, s6, 7\ns_add_u32 s3, s3, s61")
            signal("s3","kv")
            a.label(f"{L}_nsig")
        if n==KVP[0]:
            a.e(f"s_cmp_lg_u32 s9, 0\ns_cbranch_scc1 {L}_npi")
            a.e(f"s_mov_b64 exec, s[58:59]\nbuffer_load_dword v12, v10, s[{SWS}:{SWS+3}], s61 offen sc1\ns_mov_b64 exec, -1")
            a.label(f"{L}_npi")
        if n==KVP[1]:
            stampF(a,5); outst.clear() if (FST and DBG) else None
            a.e(f"s_cmp_lg_u32 s9, 0\ns_cbranch_scc1 {L}_npc")
            a.e("s_mov_b64 exec, s[58:59]")
            poll_check("s61",None,"kv",True,vaddr=10,sleep=1)
            a.e(f"v_mov_b32 v12, 1\nds_write_b32 v123, v12")
            a.label(f"{L}_npc")
            a.e("s_mov_b32 s60, 0")
        if n in (KVP[1],KVP[1]+1) :
            last = (n==KVP[1]+1)
            a.e(f"s_cmp_lg_u32 s60, 0\ns_cbranch_scc1 {L}_go{n}x")
            a.label(f"{L}_go{n}")
            a.e(f"""
            ds_read_b32 v12, v123
            s_waitcnt lgkmcnt(0)
            v_readfirstlane_b32 s60, v12
            s_nop 3
            s_cmp_lg_u32 s60, 0
            """)
            if last: a.e(f"s_cbranch_scc0 {L}_go{n}")
            else: a.e(f"s_cbranch_scc0 {L}_go{n}x")
            if last: stampF(a,6)
            dma_stage(1)
            a.label(f"{L}_go{n}x")
        if j==3 and X==0 and s<7:
            if s==0 and FST and DBG:
                stampF(a,7); outst.clear(); a.e("s_waitcnt vmcnt(0)"); stampF(a,8)
            a.e("s_waitcnt vmcnt(0)\ns_barrier")
            if s==0: stampF(a,9)
            if STG and DBG:
                stampS(a,3+s); outst.clear()
            if s+2<8: deferred+=dma_stage_ops(s+2)
            if s==5: deferred+=[touch_wob]
            if 1<=s<=4:
                deferred+=[lambda s=s: dma_wo(SWA,WOA,2*(s-1),f"a{s}0"), lambda s=s: dma_wo(SWA,WOA,2*(s-1)+1,f"a{s}1")]
        if n<6: pr=3-(n*4)//6
        elif n>=54: pr=3-((n-54)*4)//10
        else: pr=3-((n-6)%8)//2
        if pr!=lastpr[0] or (j==3 and X==0): a.e(f"s_setprio {pr}")
        lastpr[0]=pr
        def grp(g):
            for k in range(4): a.e(f"v_exp_f32 v{sc+4*g+k}, v{sc+4*g+k}")
            a.e(f"v_cvt_pk_bf16_f32 v{P+2*g}, v{sc+4*g}, v{sc+4*g+1}")
            a.e(f"v_cvt_pk_bf16_f32 v{P+2*g+1}, v{sc+4*g+2}, v{sc+4*g+3}")
        ORD=os.environ.get("ORD","0")
        def E(g,ks=range(4)):
            for k in ks: a.e(f"v_exp_f32 v{sc+4*g+k}, v{sc+4*g+k}")
        def C(g,base=None):
            b=sc if base is None else base
            a.e(f"v_cvt_pk_bf16_f32 v{P+2*g}, v{b+4*g}, v{b+4*g+1}")
            a.e(f"v_cvt_pk_bf16_f32 v{P+2*g+1}, v{b+4*g+2}, v{b+4*g+3}")
        def M1():
            if nxt:
                need("kA"); a.e(f"{MF} {R16(sn)}, {R4(kA)}, {R4(Q[nxt[2]][0])}, 0")
            if X==0 and nt: rd("kA",kA,nt[0],nt[1],0)
        def M2():
            if nxt:
                need("kB"); a.e(f"{MF} {R16(sn)}, {R4(kB)}, {R4(Q[nxt[2]][1])}, {R16(sn)}")
            if X==0 and nt: rd("kB",kB,nt[0],nt[1],1024)
        def M3():
            if prv:
                need("vB"); a.e(f"{MF} {R16(O[prv[2]])}, {R4(vB)}, {R4(P+4)}, {R16(O[prv[2]])}")
            if X==0: rd("vB",vB,s,j,3072)
        def M4():
            need("vA"); a.e(f"{MF} {R16(O[X])}, {R4(vA)}, {R4(P)}, {R16(O[X])}")
            if X==1 and nt: rd("vA",vA,nt[0],nt[1],2048)
        if ORD=="0":
            M1(); E(0); C(0); M2(); E(1,(0,1))
            if deferred: deferred.pop(0)()
            E(1,(2,3)); C(1); M3(); E(2); C(2); M4(); E(3); C(3)
        elif ORD=="1":
            if prv: C(3,sn)
            M1(); E(0)
            M2(); E(1); C(0)
            if prv: a.e("s_nop 0") if False else None
            M3(); E(2); C(1)
            E(3,(0,1)); M4(); E(3,(2,3)); C(2)
            if n==63: C(3)
    a.loopend=len(a.lines)
    a.e("s_setprio 0")
    stamp(a,6)
    a.e("s_nop 1")
    a.e(f"{MF} {R16(O[1])}, {R4(vB)}, {R4(P+4)}, {R16(O[1])}")
    a.e("s_nop 15")
    a.e(f"""
    s_lshl_b32 s3, s9, 12
    s_add_u32 s3, s3, 65536
    v_add_u32 v6, s3, v{vL}
    """)
    for g in range(4): a.e(f"ds_write_b128 v6, {R4(O[1]+4*g)} offset:{g*1024}")
    a.e(f"""
    v_xor_b32 v6, 16384, v6
    s_waitcnt lgkmcnt(0)
    s_barrier
    """)
    stampT(a,2)
    for g in range(4): a.e(f"ds_read_b128 {R4(O[1]+4*g)}, v6 offset:{g*1024}")
    a.e("s_waitcnt lgkmcnt(0)")
    for r in range(16): a.e(f"v_add_f32 v{O[0]+r}, v{O[0]+r}, v{O[1]+r}")
    a.e("s_mov_b32 s70, 0")
    a.label(f"{L}_final")
    Of=O[0]; On=O[1]; Opk=S[0]
    a.e(f"v_mov_b32 v5, v{Of+12}\nv_mov_b32 v6, v{Of+12}\ns_nop 1\nv_permlane32_swap_b32 v5, v6")
    a.e(f"""
    v_rcp_f32 v7, v6
    s_lshl_b32 s11, s5, 17
    v_mul_f32 v7, v7, v{vGate}
    s_lshl_b32 s3, s6, 3
    s_add_u32 s3, s3, s64
    """)
    for r in range(16): a.e(f"v_mul_f32 v{On+r}, v{Of+r}, v7")
    for i in range(8): a.e(f"v_cvt_pk_bf16_f32 v{Opk+i}, v{On+2*i}, v{On+2*i+1}")
    a.e(f"""
    s_lshl_b32 s59, s3, 12
    s_add_u32 s59, s59, {WS_FO}
    s_lshl_b32 s3, s3, 11
    s_add_u32 s11, s11, s3
    s_add_u32 s11, s11, {WS_O}
    s_mov_b64 exec, s[68:69]
    v_mov_b32 v{Opk+6}, 0
    v_mov_b32 v{Opk+7}, 0
    s_mov_b64 exec, -1
    s_lshl_b32 s3, s5, 7
    s_add_u32 s3, s3, s59
    buffer_store_dwordx4 {R4(Opk)}, v{vL}, s[{SWS}:{SWS+3}], s11 offen sc1
    buffer_store_dwordx4 {R4(Opk+4)}, v{vL}, s[{SWS}:{SWS+3}], s11 offen offset:1024 sc1
    """)
    stampT(a,3)
    a.e(f"s_cmp_lg_u32 s70, 0\ns_cbranch_scc1 {L}_chkd")
    a.e(f"v_mul_f32 v7, 0, v{On}")
    for r in range(1,16): a.e(f"v_fmac_f32 v7, 0, v{On+r}")
    a.e(f"""
    v_cmp_u_f32 vcc, v7, v7
    s_nop 0
    s_or_b64 s[62:63], s[62:63], vcc
    v_cmp_nge_f32 vcc, 0x4e800000, v6
    s_nop 0
    s_or_b64 s[62:63], s[62:63], vcc
    v_cmp_nle_f32 vcc, 0x35800000, v6
    s_nop 0
    s_or_b64 s[62:63], s[62:63], vcc
    s_cmp_lg_u64 s[62:63], 0
    s_cbranch_scc1 {L}_slow
    """)
    a.label(f"{L}_chkd")
    for m in range(8): dma_wo(SWB,0,m,f"b{m}")
    a.e("s_waitcnt vmcnt(8)")
    stampT(a,4)
    signal("s3","o")
    stamp(a,7)
    a.e(f"s_cmp_ge_u32 s5, 28\ns_cbranch_scc1 {L}_end")
    of=16; wfo=[[80,84],[88,92]]; acc3=[96,112]; vA3=[14,15]
    a.e(f"""
    s_and_b32 s60, s9, 1
    s_lshr_b32 s61, s9, 1
    v_lshrrev_b32 v6, 4, v{vLane}
    v_and_b32 v7, 1, v6
    v_lshrrev_b32 v6, 1, v6
    v_bfe_u32 v5, v{vLane}, 2, 2
    v_lshl_add_u32 v6, v6, 2, v5
    v_lshlrev_b32 v6, 7, v6
    v_lshrrev_b32 v5, 1, v5
    v_lshl_add_u32 v6, v5, 6, v6
    v_lshl_add_u32 v6, v7, 5, v6
    v_and_b32 v7, 3, v{vLane}
    v_lshl_add_u32 v6, v7, 3, v6
    s_and_b32 s63, s61, 1
    s_mul_i32 s63, s63, 29696
    s_cmp_lt_u32 s61, 2
    s_cselect_b32 s62, {WOA}, 0
    s_add_u32 s62, s62, s63
    v_add_u32 v{vA3[0]}, s62, v6
    v_xor_b32 v{vA3[1]}, 64, v{vA3[0]}
    s_lshl_b32 s62, s4, 1
    s_add_u32 s62, s62, s60
    s_lshl_b32 s62, s62, 11
    s_lshl_b32 s63, s61, 20
    s_add_u32 s62, s62, s63
    s_add_u32 s62, s62, {WS_O}
    """)
    for r in range(32): a.e(f"v_mov_b32 v{acc3[0]+r}, 0")
    a.e(f"""
    s_lshl_b32 s3, s4, 1
    s_add_u32 s3, s3, s60
    s_lshl_b32 s59, s3, 12
    s_lshl_b32 s3, s61, 10
    s_add_u32 s59, s59, s3
    s_add_u32 s59, s59, {WS_FO}
    s_waitcnt vmcnt(0)
    s_barrier
    """)
    if os.environ.get("PIPE","0")=="1": poll_pipe("s59","0xff","o")
    else: poll_check("s59","0xff","o",False,sleep=int(os.environ.get("SLP","2")))
    stamp(a,8)
    for i in range(8):
        a.e(f"s_add_u32 s63, s62, {i*131072}")
        for c in range(2):
            a.e(f"buffer_load_dwordx4 {R4(of+8*i+4*c)}, v{vL}, s[{SWS}:{SWS+3}], s63 offen offset:{c*1024} sc1")
    stampT(a,5)
    def wr(step,buf):
        i,c=step//2,step%2
        o=(i*28+16*c)*128
        for nt in range(2):
            r=wfo[buf][nt]
            a.e(f"ds_read_b64_tr_b16 v[{r}:{r+1}], v{vA3[nt]} offset:{o}")
            a.e(f"ds_read_b64_tr_b16 v[{r+2}:{r+3}], v{vA3[nt]} offset:{o+1024}")
    wr(0,0)
    for step in range(16):
        buf=step&1
        if step<15:
            wr(step+1,buf^1); a.e(f"s_waitcnt vmcnt({15-step}) lgkmcnt(4)")
        else: a.e("s_waitcnt vmcnt(0) lgkmcnt(0)")
        i,c=step//2,step%2
        for nt in range(2):
            cc=R16(acc3[nt])
            a.e(f"{MF} {cc}, {R4(wfo[buf][nt])}, {R4(of+8*i+4*c)}, {cc}")
    a.e("s_nop 15\ns_barrier")
    stamp(a,9)
    a.e(f"s_lshl_b32 s62, s9, 13\nv_add_u32 v6, s62, v{vL}")
    for nt in range(2):
        for g in range(4):
            a.e(f"ds_write_b128 v6, {R4(acc3[nt]+4*g)} offset:{nt*4096+g*1024}")
    a.e(f"""
    s_waitcnt lgkmcnt(0)
    s_barrier
    s_lshr_b32 s61, s9, 1
    s_and_b32 s61, s61, 1
    s_lshr_b32 s57, s9, 2
    s_lshl_b32 s62, s60, 13
    s_lshl_b32 s63, s61, 12
    s_add_u32 s62, s62, s63
    s_lshl_b32 s63, s57, 11
    s_add_u32 s62, s62, s63
    v_add_u32 v6, s62, v{vL}
    """)
    for kq in range(4):
        if kq==2: a.e(f"v_add_u32 v6, {4*8192}, v6")
        for g in range(2):
            a.e(f"ds_read_b128 {R4(16+kq*8+g*4)}, v6 offset:{(kq&1)*16384+g*1024}")
    a.e("s_waitcnt lgkmcnt(0)")
    for k in range(8):
        a.e(f"v_add_f32 v{16+k}, v{16+k}, v{24+k}")
        a.e(f"v_add_f32 v{32+k}, v{32+k}, v{40+k}")
    for k in range(8): a.e(f"v_add_f32 v{16+k}, v{16+k}, v{32+k}")
    a.e(f"""
    v_cvt_pk_bf16_f32 v48, v16, v17
    v_cvt_pk_bf16_f32 v49, v18, v19
    v_cvt_pk_bf16_f32 v50, v20, v21
    v_cvt_pk_bf16_f32 v51, v22, v23
    v_and_b32 v6, 31, v{vLane}
    v_lshrrev_b32 v7, 5, v{vLane}
    v_permlane32_swap_b32 v48, v50
    v_permlane32_swap_b32 v49, v51
    v_mul_u32_u24 v6, 896, v6
    v_lshl_add_u32 v6, v7, 4, v6
    s_lshl_b32 s62, s4, 1
    s_add_u32 s62, s62, s60
    s_mul_i32 s62, s62, {32*896}
    s_add_u32 s62, s62, s56
    s_lshl_b32 s63, s61, 6
    s_add_u32 s62, s62, s63
    s_lshl_b32 s63, s57, 5
    s_add_u32 s62, s62, s63
    buffer_store_dwordx4 v[48:51], v6, s[{SO}:{SO+3}], s62 offen
    """)
    a.label(f"{L}_end")
    if DBG:
        a.e("s_waitcnt vmcnt(0)"); stamp(a,10); stamp_rt(a,11); stamp_out(a,13,SWS,60,"f"); stamp_dbg(a,12,SDB,60)
    a.label(f"{L}_done")
    a.e("s_endpgm")
    a.label(f"{L}_slow")
    m=vM[0]; Os=O[0]; sc=S[0]; q0=Q[0][0]; q1=Q[0][1]
    a.e(f"""
    s_mov_b64 exec, s[68:69]
    v_mov_b32 v{q1+2}, 0
    s_mov_b64 exec, -1
    v_mov_b32 v{m}, 0xff800000
    s_mov_b32 s60, 0
    """)
    for r in range(16): a.e(f"v_mov_b32 v{Os+r}, 0")
    a.label(f"{L}_sin")
    sl1=len(a.lines)
    a.e(f"""
    buffer_load_dwordx4 {R4(kA)}, v{vL}, s[{SKV}:{SKV+3}], s60 offen sc1
    buffer_load_dwordx4 {R4(kB)}, v{vL}, s[{SKV}:{SKV+3}], s60 offen offset:1024 sc1
    buffer_load_dwordx4 {R4(vA)}, v{vL}, s[{SKV}:{SKV+3}], s60 offen offset:2048 sc1
    buffer_load_dwordx4 {R4(vB)}, v{vL}, s[{SKV}:{SKV+3}], s60 offen offset:3072 sc1
    s_waitcnt vmcnt(0)
    {MF} {R16(sc)}, {R4(kA)}, {R4(q0)}, 0
    {MF} {R16(sc)}, {R4(kB)}, {R4(q1)}, {R16(sc)}
    s_nop 15
    v_max3_f32 v5, v{sc}, v{sc+1}, v{sc+2}
    """)
    for k in range(3,15,2): a.e(f"v_max3_f32 v5, v5, v{sc+k}, v{sc+k+1}")
    a.e(f"""
    v_max_f32 v5, v5, v{sc+15}
    s_nop 0
    v_mov_b32 v6, v5
    s_nop 1
    v_permlane32_swap_b32 v5, v6
    s_nop 1
    v_max3_f32 v5, v5, v6, v{m}
    v_sub_f32 v6, v{m}, v5
    v_exp_f32 v6, v6
    v_mov_b32 v{m}, v5
    """)
    for r in range(16): a.e(f"v_sub_f32 v{sc+r}, v{sc+r}, v5")
    for r in range(16): a.e(f"v_exp_f32 v{sc+r}, v{sc+r}")
    for r in range(16): a.e(f"v_mul_f32 v{Os+r}, v{Os+r}, v6")
    for k in range(8): a.e(f"v_cvt_pk_bf16_f32 v{P+k}, v{sc+2*k}, v{sc+2*k+1}")
    a.e(f"""
    s_nop 1
    {MF} {R16(Os)}, {R4(vA)}, {R4(P)}, {R16(Os)}
    {MF} {R16(Os)}, {R4(vB)}, {R4(P+4)}, {R16(Os)}
    s_nop 15
    s_add_u32 s60, s60, 4096
    s_cmp_lt_u32 s60, 0x40000
    s_cbranch_scc1 {L}_sin
    """)
    sl2=len(a.lines)
    a.e(f"s_mov_b32 s70, 1\ns_branch {L}_final")
    a.loops=[(sl1,sl2)]
    return dict(vgpr=144,sgpr=(100 if DBG else 72),lds=LDS_TOTAL,grid=256,block=512)

HDR=open("cdna_kernels/"+NAME+".s.ref").read().split("; Override")[0]
def build(path):
    name=NAME+"_kernel"
    a=Asm(); info=fused(a)
    errs=check(a.lines,name)
    for (s,e) in a.loops: errs+=check(a.lines[s:e]+a.lines[s:e],name+"-loop")
    t=HDR+f"; @launch grid=({info['grid']},1,1) block=({info['block']},1,1) lds={info['lds']}\n"
    t+='.amdgcn_target "amdgcn-amd-amdhsa--gfx950"\n.text\n'
    t+=f".globl {name}\n.p2align 8\n.type {name},@function\n{name}:\n"+a.text()
    t+=f""".section .rodata,"a"
.p2align 6
.amdhsa_kernel {name}
  .amdhsa_next_free_vgpr {info['vgpr']}
  .amdhsa_next_free_sgpr {info['sgpr']}
  .amdhsa_accum_offset {info['vgpr']}
  .amdhsa_group_segment_fixed_size 0
  .amdhsa_kernarg_size 80
  .amdhsa_user_sgpr_count 2
  .amdhsa_user_sgpr_kernarg_segment_ptr 1
  .amdhsa_system_sgpr_workgroup_id_x 1
.end_amdhsa_kernel
"""
    open(path,"w").write(t)
    open("launch.txt","w").write(f"{name} {info['grid']} {info['block']} {info['lds']}\n")
    for e in errs: print("HAZARD",e)
    print("hazard errors:",len(errs))
if __name__=="__main__":
    if len(sys.argv)>2 and sys.argv[2]=="dbg": DBG=True
    build(sys.argv[1] if len(sys.argv)>1 else "cdna_kernels/"+NAME+".s")
```
